```python
import torch

def _softmax(x, axis=-1):
    return torch.softmax(x, dim=axis)
def _gelu(x):
    return torch.nn.functional.gelu(x, approximate="tanh")
def _silu(x):
    return torch.nn.functional.silu(x)
def _sigmoid(x):
    return torch.sigmoid(x)
def _layernorm(x, axis=-1, eps=1e-5):
    m = x.mean(dim=axis, keepdim=True)
    v = x.var(dim=axis, keepdim=True, unbiased=False)
    return (x - m) / torch.sqrt(v + eps)
def _scatter_add(tgt, idx, src, axis=0):
    return tgt.clone().index_add_(axis, idx, src)
def _segment_sum(src, seg, n):
    out = torch.zeros((n,) + src.shape[1:], dtype=src.dtype)
    return out.index_add_(0, seg, src)
def _pad(x, pw):
    flat = tuple(v for pair in reversed(pw) for v in pair)
    return torch.nn.functional.pad(x, flat)

kernel_name = 'standalone__window_attn_swin__vision'

def setup_inputs():

    _w = (lambda a: (lambda t: t.to(torch.bfloat16) if t.is_floating_point() else t)(torch.as_tensor(a)))
    H = W = 224
    C = 96
    ws = 7
    nh = 4
    shift = ws // 2
    coords = torch.stack(torch.meshgrid(torch.arange(ws), torch.arange(ws), indexing='ij'), 0).reshape(2, -1)
    rel = coords[:, :, None] - coords[:, None, :]
    rel[0] += ws - 1
    rel[1] += ws - 1
    rel[0] *= 2 * ws - 1
    rp_idx = rel.sum(0).to(torch.int64)
    img_mask = torch.zeros((1, H, W, 1), dtype=float)
    cnt = 0
    for hs in (slice(0, H - ws), slice(H - ws, H - shift), slice(H - shift, H)):
        for vs in (slice(0, W - ws), slice(W - ws, W - shift), slice(W - shift, W)):
            img_mask[:, hs, vs, :] = cnt
            cnt += 1
    mw = img_mask.reshape(1, H // ws, ws, W // ws, ws, 1).permute(0, 1, 3, 2, 4, 5).reshape(-1, ws * ws)
    am = mw[:, :, None] - mw[:, None, :]
    attn_mask = torch.where(am != 0, -100.0, 0.0).to(float)
    return {
        "x": _w((lambda *s: torch.randn(*s, dtype=torch.bfloat16) * 1.6)(1, H, W, C)),
        "wqkv": _w((lambda *s: torch.randn(*s, dtype=torch.bfloat16) * 1.6)(C, 3 * C) * 0.02),
        "wo": _w((lambda *s: torch.randn(*s, dtype=torch.bfloat16) * 0.05)(C, C) * 0.02),
        "rpb": _w((lambda *s: torch.randn(*s, dtype=torch.bfloat16) * 0.4)((2 * ws - 1) * (2 * ws - 1), nh)),
        "rp_idx": _w(rp_idx),
        "attn_mask": _w(attn_mask),
    }

def reference(x, wqkv, wo, rpb, rp_idx, attn_mask):
    B, H, W, C = x.shape
    N = rp_idx.shape[0]
    ws = int(round(N ** 0.5))
    nh = rpb.shape[-1]
    hd = C // nh
    shift = ws // 2
    xs = torch.roll(x, (-shift, -shift), (1, 2))
    nWh = H // ws
    nWw = W // ws
    xw = (lambda x, *d: x.permute(*d))(xs.reshape(B, nWh, ws, nWw, ws, C), 0, 1, 3, 2, 4, 5).reshape(B * nWh * nWw, N, C)
    qkv = (lambda x, *d: x.permute(*d))(torch.einsum('wnc,cd->wnd', xw, wqkv).reshape(-1, N, 3, nh, hd), 2, 0, 3, 1, 4)
    q, k, v = qkv[0], qkv[1], qkv[2]
    attn = torch.einsum('whid,whjd->whij', q, k) * (hd ** -0.5)
    bias = (lambda x, *d: x.permute(*d))(rpb[rp_idx.reshape(-1)].reshape(N, N, nh), 2, 0, 1)
    attn = attn + bias[None, :, :, :]
    attn = (attn.reshape(B, nWh * nWw, nh, N, N) + attn_mask[None, :, None, :, :]).reshape(-1, nh, N, N)
    attn = _softmax(attn, axis=-1)
    out = (lambda x, *d: x.permute(*d))(torch.einsum('whij,whjd->whid', attn, v), 0, 2, 1, 3).reshape(-1, N, C)
    out = torch.einsum('wnc,cd->wnd', out, wo)
    out = (lambda x, *d: x.permute(*d))(out.reshape(B, nWh, nWw, ws, ws, C), 0, 1, 3, 2, 4, 5).reshape(B, H, W, C)
    return torch.roll(out, (shift, shift), (1, 2))
```

```python
import re
VR = re.compile(r'\bv\[(\d+):(\d+)\]|\bv(\d+)\b')
TRANS = ('v_exp_f32', 'v_rcp_f32', 'v_log_f32', 'v_rsq_f32', 'v_sqrt_f32')

def vregs(tok):
    out = []
    for m in VR.finditer(tok):
        if m.group(1) is not None:
            out += list(range(int(m.group(1)), int(m.group(2)) + 1))
        else:
            out.append(int(m.group(3)))
    return out

def split_ops(s):
    out, depth, cur = [], 0, ''
    for ch in s:
        if ch == '[': depth += 1
        if ch == ']': depth -= 1
        if ch == ',' and depth == 0:
            out.append(cur.strip()); cur = ''
        else:
            cur += ch
    if cur.strip(): out.append(cur.strip())
    return out

class Ins:
    __slots__ = ('text', 'op', 'kind', 'rd', 'wr', 'rdA', 'rdC', 'states', 'raw')
    def __init__(self, text):
        self.text = text
        self.raw = False
        t = text.split(';')[0].strip()
        parts = t.split(None, 1)
        self.op = parts[0] if parts else ''
        ops = split_ops(parts[1]) if len(parts) > 1 else []
        op = self.op
        self.rd, self.wr, self.rdA, self.rdC = set(), set(), set(), set()
        self.states = 1
        if op.endswith(':') or op.startswith('.') or op == '':
            self.kind = 'label'; self.states = 0
        elif op == 's_nop':
            self.kind = 'nop'; self.states = int(ops[0], 0) + 1
        elif op.startswith('v_mfma'):
            self.kind = 'mfma'
            self.wr = set(vregs(ops[0])); self.rdA = set(vregs(ops[1])) | set(vregs(ops[2])); self.rdC = set(vregs(ops[3]))
            self.rd = self.rdA | self.rdC
        elif op.startswith('v_permlane'):
            self.kind = 'perm'
            self.wr = set(vregs(ops[0])) | set(vregs(ops[1])); self.rd = set(self.wr)
        elif op.startswith('v_readfirstlane') or op.startswith('v_readlane'):
            self.kind = 'rdlane'; self.rd = set(vregs(ops[1]))
        elif op.startswith('v_cmp'):
            self.kind = 'valu'
            for o in ops[1:]: self.rd |= set(vregs(o))
        elif op.startswith('v_'):
            self.kind = 'trans' if op.replace('_e32', '').replace('_e64', '') in TRANS else 'valu'
            self.wr = set(vregs(ops[0]))
            for o in ops[1:]: self.rd |= set(vregs(o))
            if op.startswith('v_fmac') or op.startswith('v_pk_fmac'): self.rd |= self.wr
        elif op.startswith('ds_read') :
            self.kind = 'dsr'; self.wr = set(vregs(ops[0])); self.rd = set(vregs(ops[1]))
            if 'd16' in op: self.rd |= self.wr
        elif op.startswith('ds_add_rtn'):
            self.kind = 'dsr'; self.wr = set(vregs(ops[0])); self.rd = set(vregs(ops[1])) | set(vregs(ops[2]))
        elif op.startswith('ds_'):
            self.kind = 'dsw'
            for o in ops: self.rd |= set(vregs(o))
        elif op.startswith('buffer_load') and ' lds' in (' ' + t):
            self.kind = 'dma'; self.rd = set(vregs(ops[0]))
        elif op.startswith('buffer_load') or op.startswith('global_load'):
            self.kind = 'vld'; self.wr = set(vregs(ops[0])); self.rd = set(vregs(ops[1]))
        elif op.startswith('buffer_store') or op.startswith('global_store'):
            self.kind = 'vst'
            for o in ops[:2]: self.rd |= set(vregs(o))
        elif op.startswith('s_waitcnt'):
            self.kind = 'wait'
        else:
            self.kind = 'salu'

class Asm:
    def __init__(self):
        self.ins = []
    def __call__(self, text):
        for line in text.strip('\n').split('\n'):
            line = line.strip()
            if line: self.ins.append(Ins(line))
    def fence(self):
        self('s_waitcnt lgkmcnt(0)'); self('s_nop 7'); self('s_nop 1')
    def finalize(self):
        out = []
        pos = 0
        lastw = {}
        lastC = {}
        lastst = {}
        lgkm = []
        nnops = 0
        for I in self.ins:
            need = 0
            def req(p, n):
                nonlocal need
                need = max(need, n - (pos - p - 1))
            touch = I.rd | I.wr
            idx = -1
            for j, d in enumerate(lgkm):
                if d & touch: idx = j
            if I.kind == 'wait' and 'lgkmcnt' in I.text:
                n = int(re.search(r'lgkmcnt\((\d+)\)', I.text).group(1))
                lgkm = lgkm[len(lgkm) - n:] if n < len(lgkm) else lgkm
                if n == 0: lgkm = []
            elif idx >= 0:
                n = len(lgkm) - 1 - idx
                n = min(n, 15)
                out.append(Ins('s_waitcnt lgkmcnt(%d)' % n)); pos += 1
                lgkm = lgkm[len(lgkm) - n:] if n > 0 else []
            for r in I.rd:
                if r in lastw:
                    p, k, D = lastw[r]
                    if k == 'mfma':
                        if I.kind == 'mfma':
                            if r in I.rdA: req(p, 8)
                            if r in I.rdC: req(p, 0 if I.rdC == D else 6)
                        else: req(p, 8)
                    elif k in ('valu', 'trans', 'perm'):
                        if I.kind == 'mfma': req(p, 2)
                        elif I.kind == 'perm': req(p, 2)
                        elif I.kind == 'rdlane': req(p, 1)
                        elif k == 'trans' and I.kind in ('valu',): req(p, 1)
                        elif k == 'trans' and I.kind in ('dsw', 'vst', 'dsr', 'dma', 'vld'): req(p, 1)
            for r in I.wr:
                if r in lastw:
                    p, k, D = lastw[r]
                    if k == 'mfma' and not (I.kind == 'mfma' and I.rdC == D and I.wr == D): req(p, 8)
                if r in lastC and I.kind in ('valu', 'trans', 'perm'): req(lastC[r], 3)
                if r in lastst: req(lastst[r], 2)
            if need > 0:
                nnops += need
                while need > 0:
                    n = min(need, 16)
                    out.append(Ins('s_nop %d' % (n - 1))); pos += n; need -= n
            out.append(I)
            p = pos
            pos += I.states
            for r in I.wr:
                lastw[r] = (p, I.kind, I.wr)
            if I.kind == 'mfma':
                for r in I.rdC: lastC[r] = p
            if I.kind == 'vst':
                for r in I.rd: lastst[r] = p
            if I.kind == 'dsr': lgkm.append(set(I.wr))
            if I.kind == 'dsw': lgkm.append(set())
        self.nnops = nnops
        return '\n'.join(('    ' + i.text) if i.kind != 'label' else i.text for i in out) + '\n'
```

```python
import struct, sys
from asmlib import Asm
def f32(x): return '0x%08x' % struct.unpack('<I', struct.pack('<f', x))[0]
SCALE = 24 ** -0.5
import math
C_EXP = SCALE * math.log2(math.e)
INV = 24 ** 0.5
MASKV = -100.0 * INV

L_WQ, L_WO, L_X, L_OB = 0, 55296, 73728, 122880
L_JUNK = 147456
L_CNT = L_JUNK + 10240
L_SIZE = L_CNT + 64

WQ, WK, WR, WV0, WV1 = 4, 16, 28, 40, 52
BIAS = 64
CV1 = 100
E0A, E0B = 104, 105
vXr, vOw0, vOw1, vOr, vTo, vSoff, vCnt = 106, 107, 108, 109, 110, 111, 112
T0, T1, T2, T3 = 113, 114, 115, 1
Qf, Kf, Vf = 116, 132, 148
XF, ACC = 164, 188
S_, P_, O_, TMP = 164, 196, 212, 228
WoF, OF, OACC, ST = 116, 188, 200, 224
def q4(b): return 'v[%d:%d]' % (b, b + 3)
def q2(b): return 'v[%d:%d]' % (b, b + 1)

A = Asm()
def mfma(d, a, b, c): A('v_mfma_f32_16x16x32_bf16 %s, %s, %s, %s' % (q4(d), q4(a), q4(b), q4(c) if c is not None else '0'))
def pk(d, a, b): A('v_cvt_pk_bf16_f32 v%d, v%d, %s' % (d, a, ('v%d' % b) if b is not None else '0'))

A('''
s_cmp_ge_u32 s2, 256
s_cbranch_scc1 L_end
s_load_dwordx8 s[4:11], s[0:1], 0
s_load_dwordx2 s[12:13], s[0:1], 48
v_readfirstlane_b32 s36, v0
v_and_b32 v2, 63, v0                  ; lane
v_and_b32 v3, 15, v0                  ; c
v_bfe_u32 v113, v0, 4, 2              ; g
v_lshlrev_b32 v106, 4, v2             ; lane*16
s_lshr_b32 s36, s36, 6                ; wave
s_and_b32 s37, s36, 3                 ; h = t
s_lshr_b32 s38, s36, 2                ; grp
s_lshr_b32 s39, s2, 3                 ; wy
s_and_b32 s40, s2, 7
s_lshl_b32 s40, s40, 2                ; wx0
s_add_u32 s40, s40, s38               ; wx of round 0
; ybase
s_mul_i32 s44, s39, 7
s_lshr_b32 s45, s37, 1
s_lshl_b32 s45, s45, 2
s_add_u32 s44, s44, s45
s_add_u32 s44, s44, 3
s_sub_u32 s45, s44, 224
s_cmp_ge_u32 s44, 224
s_cselect_b32 s44, s45, s44           ; ybase
s_mul_i32 s44, s44, 43008             ; *224*192
; xbase round 0
s_mul_i32 s45, s40, 7
s_and_b32 s46, s37, 1
s_lshl_b32 s46, s46, 2
s_add_u32 s45, s45, s46
s_add_u32 s45, s45, 3                 ; xbase r0 (never wraps: wx<=29)
s_add_u32 s46, s45, 14                ; xbase r1
s_sub_u32 s47, s46, 224
s_cmp_ge_u32 s46, 224
s_cselect_b32 s46, s47, s46
s_mul_i32 s45, s45, 192
s_mul_i32 s46, s46, 192
s_add_u32 s41, s44, s45               ; soff round0
s_add_u32 s42, s44, s46               ; soff round1
s_mov_b32 s43, %s                     ; c_exp
s_mov_b32 s48, %s                     ; 1/scale
s_mov_b32 s49, %s                     ; mask/scale
; lane token offset
v_lshrrev_b32 v114, 2, v3             ; c>>2
v_and_b32 v115, 3, v3                 ; c&3
v_mul_u32_u24 v1, 224, v114
v_add_u32 v1, v1, v115
v_mul_u32_u24 v1, 192, v1             ; tokoff
; validity: invalid if ((t&1) && (c&3)==3) || ((t>>1) && (c>>2)==3)
s_and_b32 s50, s37, 1
s_lshr_b32 s51, s37, 1
s_cmp_eq_u32 s50, 1
s_cselect_b32 s50, 3, 99
s_cmp_eq_u32 s51, 1
s_cselect_b32 s51, 3, 99
v_cmp_eq_u32 vcc, s50, v115
v_cmp_eq_u32 s[52:53], s51, v114
s_nop 1
s_or_b64 s[52:53], s[52:53], vcc      ; invalid lanes
v_lshl_add_u32 v116, v113, 4, v1      ; tokoff + g*16
v_mul_u32_u24 v117, 48, v113
v_add_u32 v111, v117, v1              ; tokoff + g*48
v_mov_b32 v117, 0x80000000
s_nop 0
v_cndmask_b32 v116, v116, v117, s[52:53]   ; vXoff
v_cndmask_b32 v111, v111, v117, s[52:53]   ; vSoff
; rpb dma offsets
s_lshr_b32 s50, s37, 1
s_lshl_b32 s50, s50, 2
s_sub_u32 s50, s50, 128
v_lshl_add_u32 v118, v2, 3, s50       ; lane*8 + (h>>1)*4 - 128
v_add_u32 v119, 512, v118
s_waitcnt lgkmcnt(0)
s_mov_b32 s16, s4
s_mov_b32 s17, s5
s_mov_b32 s18, 9633792
s_mov_b32 s19, 0x00020000
s_mov_b32 s20, s6
s_mov_b32 s21, s7
s_mov_b32 s22, 55296
s_mov_b32 s23, 0x00020000
s_mov_b32 s24, s8
s_mov_b32 s25, s9
s_mov_b32 s26, 18432
s_mov_b32 s27, 0x00020000
s_mov_b32 s28, s10
s_mov_b32 s29, s11
s_mov_b32 s30, 1352
s_mov_b32 s31, 0x00020000
s_mov_b32 s32, s12
s_mov_b32 s33, s13
s_mov_b32 s34, 9633792
s_mov_b32 s35, 0x00020000
; ---- rpb table (private per wave): L_OB + w*1024
s_lshl_b32 s50, s36, 10
s_add_u32 s50, s50, %d                ; table base
s_mov_b32 m0, s50
s_mov_b32 s51, 512
buffer_load_dword v118, s[28:31], 0 offen lds
s_add_u32 m0, s50, 256
s_mov_b32 s54, 1024
buffer_load_dword v119, s[28:31], 0 offen lds
s_add_u32 m0, s50, 512
s_nop 0
buffer_load_dword v119, s[28:31], s51 offen lds
s_add_u32 m0, s50, 768
s_nop 0
buffer_load_dword v119, s[28:31], s54 offen lds
; ---- wqkv chunks w*7 .. w*7+6
s_mul_i32 s51, s36, 7168
s_mov_b32 m0, s51
s_add_u32 s54, s51, 4096
buffer_load_dwordx4 v106, s[20:23], s51 offen lds
buffer_load_dwordx4 v106, s[20:23], s51 offen offset:1024 lds
buffer_load_dwordx4 v106, s[20:23], s51 offen offset:2048 lds
buffer_load_dwordx4 v106, s[20:23], s51 offen offset:3072 lds
s_mov_b32 m0, s54
s_cmp_eq_u32 s36, 7
buffer_load_dwordx4 v106, s[20:23], s54 offen lds
s_cbranch_scc1 L_w7
buffer_load_dwordx4 v106, s[20:23], s54 offen offset:1024 lds
buffer_load_dwordx4 v106, s[20:23], s54 offen offset:2048 lds
s_branch L_w7e
L_w7:
s_mov_b32 m0, %d
s_mov_b32 s54, 16384
buffer_load_dwordx4 v106, s[24:27], s54 offen lds
buffer_load_dwordx4 v106, s[24:27], s54 offen offset:1024 lds
L_w7e:
; ---- x window round 0: tile t
s_mul_i32 s54, s38, 12288
s_mul_i32 s55, s37, 3072
s_add_u32 s54, s54, s55
s_add_u32 s54, s54, %d                ; lds addr of (win grp, tile t)
s_mov_b32 m0, s54
s_nop 0
buffer_load_dwordx4 v116, s[16:19], s41 offen lds
s_add_u32 m0, s54, 960
s_nop 0
buffer_load_dwordx4 v116, s[16:19], s41 offen offset:64 lds
s_add_u32 m0, s54, 1920
s_nop 0
buffer_load_dwordx4 v116, s[16:19], s41 offen offset:128 lds
; ---- wo chunks 2w, 2w+1
s_lshl_b32 s55, s36, 11
s_add_u32 m0, s55, %d
s_nop 0
buffer_load_dwordx4 v106, s[24:27], s55 offen lds
buffer_load_dwordx4 v106, s[24:27], s55 offen offset:1024 lds
; ---- x window round 1
s_add_u32 m0, s54, 24576
s_nop 0
buffer_load_dwordx4 v116, s[16:19], s42 offen lds
s_add_u32 m0, s54, 24576+960
s_nop 0
buffer_load_dwordx4 v116, s[16:19], s42 offen offset:64 lds
s_add_u32 m0, s54, 24576+1920
s_nop 0
buffer_load_dwordx4 v116, s[16:19], s42 offen offset:128 lds
''' % (f32(C_EXP), f32(INV), f32(MASKV), L_OB, L_WO + 16384, L_X, L_WO))

A('''
; bias gather base: tab + (lanepart+16-59)*4 + (h&1)*2 ; lanepart=((c>>2)-g+6)*13+(c&3)+6
v_sub_u32 v118, v114, v113
v_add_u32 v118, 6, v118
v_mul_u32_u24 v118, 13, v118
v_add_u32 v118, v118, v115
v_lshlrev_b32 v118, 2, v118
s_and_b32 s55, s37, 1
s_lshl_b32 s55, s55, 1
s_add_u32 s55, s55, s50
s_add_u32 s55, s55, %d                ; (6+16-59)*4 = -148
v_add_u32 v118, s55, v118             ; gather base
; mask addend for du != 0
s_cmp_eq_u32 s39, 31
s_cselect_b32 s56, s49, 0
s_cselect_b32 s57, 0, s49             ; addend for (du!=0, dt!=0) in wx==31 fixup
v_mov_b32 v119, s56
; E0A/E0B
v_mov_b32 v120, 0x3f80
v_cmp_gt_u32 vcc, 16, v2
s_nop 1
v_cndmask_b32 v104, 0, v120, vcc
v_lshrrev_b32 v120, 2, v2
v_cmp_eq_u32 vcc, 11, v120
v_mov_b32 v120, 0xff00
s_nop 1
v_cndmask_b32 v105, v104, v120, vcc
; CV1 and WV1 mask
v_cmp_lt_u32 vcc, 7, v3
s_nop 1
v_cndmask_b32 v100, 0, 1.0, vcc
v_cndmask_b32 v101, 0, 1.0, vcc
v_cndmask_b32 v102, 0, 1.0, vcc
v_cndmask_b32 v103, 0, 1.0, vcc
v_cndmask_b32 v121, -1, 0, vcc        ; and-mask for WV1
; tr-read addresses for wqkv: (g*8+r)*576 + (h*24 + c'*4)*2 ; r = c>>2, c' = c&3
v_lshl_add_u32 v122, v113, 3, v114
v_mul_u32_u24 v122, 576, v122
s_mul_i32 s55, s37, 48
v_add_u32 v122, s55, v122             ; row part + h*48
v_lshl_add_u32 v123, v115, 3, v122    ; vTq
v_and_b32 v124, 1, v115
v_lshl_add_u32 v124, v124, 3, v122
v_lshrrev_b32 v125, 1, v115
v_mul_u32_u24 v125, 192, v125
v_add3_u32 v124, v124, v125, 32       ; vTr
; Wo tr-read base: L_WO + (24g + r)*192 + c'*48
v_mul_u32_u24 v110, 24, v113
v_add_u32 v110, v110, v114
v_mul_u32_u24 v110, 192, v110
v_mul_u32_u24 v125, 48, v115
v_add3_u32 v110, v110, v125, s58
''' % ((6 + 16 - 59) * 4 & 0xffffffff))
A.ins.insert(len(A.ins) - 6, A.ins[0].__class__('s_mov_b32 s58, %d' % L_WO))
A('''
; O write addresses
s_mul_i32 s55, s38, 12288
s_lshl_b32 s59, s37, 8
s_add_u32 s55, s55, s59
s_add_u32 s55, s55, %d                ; OB + grp*12288 + h*256
v_min_u32 v125, 2, v113
v_lshlrev_b32 v125, 10, v125
v_lshl_add_u32 v125, v3, 4, v125      ; s(g)*1024 + c*16
v_add_u32 v125, s55, v125
v_add_u32 v126, 8, v125
v_cmp_eq_u32 vcc, 3, v113
s_nop 1
v_cndmask_b32 v107, v125, v126, vcc   ; vOw0
v_lshlrev_b32 v127, 3, v2
v_add_u32 v127, %d, v127              ; junk + lane*8
v_cmp_gt_u32 vcc, 2, v113
s_nop 1
v_cndmask_b32 v108, v127, v126, vcc   ; vOw1
; O read address
s_mul_i32 s55, s38, 12288
s_mul_i32 s59, s37, 3072
s_add_u32 s59, s59, s55
s_add_u32 s59, s59, %d
v_add_u32 v109, s59, v106             ; vOr
s_add_u32 s55, s55, %d
v_add_u32 v106, s55, v106             ; vXr (lane*16 no longer needed for dma)
s_waitcnt vmcnt(15)
''' % (L_OB, L_JUNK, L_OB, L_X))
for du in (-1, 0, 1):
    for dt in (-1, 0, 1):
        for r in range(4):
            b = BIAS + ((du + 1) * 3 + dt + 1) * 4 + r
            A('ds_read_u16 v%d, v118 offset:%d' % (b, (52 * du + 4 * dt - r + 59) * 4))
for du in (-1, 0, 1):
    for dt in (-1, 0, 1):
        for r in range(4):
            b = BIAS + ((du + 1) * 3 + dt + 1) * 4 + r
            A('v_lshlrev_b32 v%d, 16, v%d' % (b, b))
            if du: A('v_fma_f32 v%d, v%d, s48, v119' % (b, b))
            else: A('v_mul_f32 v%d, s48, v%d' % (b, b))
A('''
s_waitcnt vmcnt(5)
s_barrier
''')
for s in range(3):
    for half in range(2):
        imm = (s * 32 + half * 4) * 576
        A('ds_read_b64_tr_b16 %s, v123 offset:%d' % (q2(WQ + s * 4 + half * 2), imm))
        A('ds_read_b64_tr_b16 %s, v123 offset:%d' % (q2(WK + s * 4 + half * 2), imm + 192))
        A('ds_read_b64_tr_b16 %s, v124 offset:%d' % (q2(WR + s * 4 + half * 2), imm))
        A('ds_read_b64_tr_b16 %s, v123 offset:%d' % (q2(WV0 + s * 4 + half * 2), imm + 384))
        A('ds_read_b64_tr_b16 %s, v123 offset:%d' % (q2(WV1 + s * 4 + half * 2), imm + 416))
for i in range(12):
    A('v_and_b32 v%d, v%d, v121' % (WV1 + i, WV1 + i))
A('s_mov_b32 s60, 0   ; round')
A.fence()
A('L_round:')

def xread(t):
    for s in range(3):
        A('ds_read_b128 %s, v%d offset:%d' % (q4(XF + (t & 1) * 12 + s * 4), vXr, (t * 3 + s) * 1024))
def proj_mfma(t):
    a = ACC + (t & 1) * 20; x = XF + (t & 1) * 12
    for s in range(3):
        mfma(a + 0, WQ + s * 4, x + s * 4, a + 0 if s else None)
        mfma(a + 4, WK + s * 4, x + s * 4, a + 4 if s else None)
        mfma(a + 8, WR + s * 4, x + s * 4, a + 8 if s else None)
        mfma(a + 12, x + s * 4, WV0 + s * 4, a + 12 if s else None)
        mfma(a + 16, x + s * 4, WV1 + s * 4, a + 16 if s else CV1)
def proj_cvt(t):
    a = ACC + (t & 1) * 20
    q = Qf + t * 4; k = Kf + t * 4
    A('v_mov_b32 v%d, v%d' % (k + 2, E0B if t >= 2 else E0A))
    A('v_mov_b32 v%d, 0' % (k + 3))
    pk(q + 0, a + 0, a + 1); pk(q + 1, a + 2, a + 3)
    pk(k + 0, a + 4, a + 5); pk(k + 1, a + 6, a + 7)
    pk(q + 2, a + 8, a + 9); pk(q + 3, a + 10, a + 11)
    for d in range(2):
        v = Vf + (d * 2 + (t >> 1)) * 4 + (t & 1) * 2
        pk(v + 0, a + 12 + d * 4, a + 13 + d * 4); pk(v + 1, a + 14 + d * 4, a + 15 + d * 4)
    A('v_permlane32_swap_b32 v%d, v%d' % (q + 2, k + 2))
    A('v_permlane32_swap_b32 v%d, v%d' % (q + 3, k + 3))

xread(0); xread(1)
proj_mfma(0)
proj_mfma(1); proj_cvt(0); xread(2)
proj_mfma(2); proj_cvt(1); xread(3)
proj_mfma(3); proj_cvt(2)
proj_cvt(3)

def s_mfma(tq):
    s = S_ + (tq & 1) * 16
    for tk in range(4):
        du = (tq >> 1) - (tk >> 1); dt = (tq & 1) - (tk & 1)
        mfma(s + tk * 4, Kf + tk * 4, Qf + tq * 4, BIAS + ((du + 1) * 3 + dt + 1) * 4)
def softmax(tq):
    s = S_ + (tq & 1) * 16; p = P_ + (tq & 1) * 8
    m, t = TMP + (tq & 1) * 2, TMP + (tq & 1) * 2 + 1
    regs = [s + tk * 4 + r for tk in range(4) for r in range(4) if not ((tk & 1) and r == 3)]
    A('v_max3_f32 v%d, v%d, v%d, v%d' % (m, regs[0], regs[1], regs[2]))
    i = 3
    while i < len(regs):
        if i + 1 < len(regs):
            A('v_max3_f32 v%d, v%d, v%d, v%d' % (m, m, regs[i], regs[i + 1])); i += 2
        else:
            A('v_max_f32 v%d, v%d, v%d' % (m, m, regs[i])); i += 1
    A('v_mov_b32 v%d, v%d' % (t, m))
    A('v_permlane32_swap_b32 v%d, v%d' % (m, t))
    A('v_max_f32 v%d, v%d, v%d' % (m, m, t))
    A('v_mov_b32 v%d, v%d' % (t, m))
    A('v_permlane16_swap_b32 v%d, v%d' % (m, t))
    A('v_max_f32 v%d, v%d, v%d' % (m, m, t))
    A('v_mul_f32 v%d, s43, v%d' % (m, m))
    for r in regs:
        A('v_fma_f32 v%d, v%d, s43, -v%d' % (r, r, m))
    for r in regs:
        A('v_exp_f32 v%d, v%d' % (r, r))
    for tk in range(4):
        b = s + tk * 4
        pk(p + tk * 2, b, b + 1)
        pk(p + tk * 2 + 1, b + 2, None if (tk & 1) else b + 3)
def pv_mfma(tq):
    p = P_ + (tq & 1) * 8; o = O_ + (tq & 1) * 8
    for pp in range(2):
        for d in range(2):
            mfma(o + d * 4, Vf + (d * 2 + pp) * 4, p + pp * 4, o + d * 4 if pp else None)
def onorm(tq):
    o = O_ + (tq & 1) * 8
    b = TMP + 4 + (tq & 1); w = TMP + 8 + (tq & 1) * 4
    A('v_mov_b32 v%d, v%d' % (b, o + 5))
    A('v_permlane32_swap_b32 v%d, v%d' % (o + 4, b))
    A('v_rcp_f32 v%d, v%d' % (b, b))
    for i in range(8):
        A('v_mul_f32 v%d, v%d, v%d' % (o + i, o + i, b))
    for i in range(4):
        pk(w + i, o + 2 * i, o + 2 * i + 1)
    A('ds_write_b64 v%d, %s offset:%d' % (vOw0, q2(w), tq * 3072))
    A('ds_write_b64 v%d, %s offset:%d' % (vOw1, q2(w + 2), tq * 3072))

s_mfma(0)
for tq in range(4):
    if tq < 3: s_mfma(tq + 1)
    softmax(tq)
    pv_mfma(tq)
    if tq > 0: onorm(tq - 1)
onorm(3)
A('''
s_waitcnt vmcnt(0) lgkmcnt(0)
s_barrier
''')
for s in range(3):
    A('ds_read_b128 %s, v%d offset:%d' % (q4(OF + s * 4), vOr, s * 1024))
KR = {0: (0, 16), 1: (4, 20), 2: (8, 12)}
for T in range(6):
    for s in range(3):
        for half in range(2):
            A('ds_read_b64_tr_b16 %s, v%d offset:%d' % (q2(WoF + (T * 3 + s) * 4 + half * 2), vTo, KR[s][half] * 192 + T * 8))
for T in range(6):
    for s in range(3):
        mfma(OACC + T * 4, WoF + (T * 3 + s) * 4, OF + s * 4, OACC + T * 4 if s else None)
for T in range(6):
    pk(ST + T * 2, OACC + T * 4, OACC + T * 4 + 1); pk(ST + T * 2 + 1, OACC + T * 4 + 2, OACC + T * 4 + 3)
for j in range(3):
    A('buffer_store_dwordx4 %s, v%d, s[32:35], s41 offen offset:%d' % (q4(ST + j * 4), vSoff, j * 16))
A('''
s_cmp_eq_u32 s60, 1
s_cbranch_scc1 L_end
s_mov_b32 s60, 1
s_mov_b32 s41, s42
v_add_u32 v%d, 24576, v%d
v_subrev_u32 v%d, %d, v%d
v_subrev_u32 v%d, %d, v%d
v_subrev_u32 v%d, %d, v%d
s_cmp_eq_u32 s40, 29
s_cbranch_scc0 L_nofix
''' % (vXr, vXr, vOw0, L_OB, vOw0, vOw1, L_OB, vOw1, vOr, L_OB, vOr))
for du in (-1, 0, 1):
    for dt in (-1, 1):
        for r in range(4):
            b = BIAS + ((du + 1) * 3 + dt + 1) * 4 + r
            A('v_add_f32 v%d, %s, v%d' % (b, 's57' if du else 's49', b))
A('L_nofix:')
A.fence()
A('s_branch L_round')
A('L_end:')
A('s_endpgm')
body = A.finalize()

hdr = open('standalone__window_attn_swin__vision.s.ref').read().split('\n')
hdr = [l for l in hdr if l.startswith(';') and '@launch' not in l]
out = '\n'.join(hdr) + '\n; @launch grid=(256,1,1) block=(512,1,1) lds=%d\n' % L_SIZE
out += '''.amdgcn_target "amdgcn-amd-amdhsa--gfx950"
.text
.globl standalone__window_attn_swin__vision_kernel
.p2align 8
.type standalone__window_attn_swin__vision_kernel,@function
standalone__window_attn_swin__vision_kernel:
''' + body + '''.section .rodata,"a"
.p2align 6
.amdhsa_kernel standalone__window_attn_swin__vision_kernel
  .amdhsa_next_free_vgpr 256
  .amdhsa_next_free_sgpr 96
  .amdhsa_accum_offset 256
  .amdhsa_group_segment_fixed_size 0
  .amdhsa_kernarg_size 72
  .amdhsa_user_sgpr_count 2
  .amdhsa_user_sgpr_kernarg_segment_ptr 1
  .amdhsa_system_sgpr_workgroup_id_x 1
.end_amdhsa_kernel
'''
dst = sys.argv[1] if len(sys.argv) > 1 else 'standalone__window_attn_swin__vision.s'
open(dst, 'w').write(out)
print('instructions:', len(body.split('\n')), 'nop states:', A.nnops)
```

```python
import re
VR = re.compile(r'\bv\[(\d+):(\d+)\]|\bv(\d+)\b')
TRANS = ('v_exp_f32', 'v_rcp_f32', 'v_log_f32', 'v_rsq_f32', 'v_sqrt_f32')

def vregs(tok):
    out = []
    for m in VR.finditer(tok):
        if m.group(1) is not None:
            out += list(range(int(m.group(1)), int(m.group(2)) + 1))
        else:
            out.append(int(m.group(3)))
    return out

def split_ops(s):
    out, depth, cur = [], 0, ''
    for ch in s:
        if ch == '[': depth += 1
        if ch == ']': depth -= 1
        if ch == ',' and depth == 0:
            out.append(cur.strip()); cur = ''
        else:
            cur += ch
    if cur.strip(): out.append(cur.strip())
    return out

class Ins:
    __slots__ = ('text', 'op', 'kind', 'rd', 'wr', 'rdA', 'rdC', 'states', 'raw')
    def __init__(self, text):
        self.text = text
        self.raw = False
        t = text.split(';')[0].strip()
        parts = t.split(None, 1)
        self.op = parts[0] if parts else ''
        ops = split_ops(parts[1]) if len(parts) > 1 else []
        op = self.op
        self.rd, self.wr, self.rdA, self.rdC = set(), set(), set(), set()
        self.states = 1
        if op.endswith(':') or op.startswith('.') or op == '':
            self.kind = 'label'; self.states = 0
        elif op == 's_nop':
            self.kind = 'nop'; self.states = int(ops[0], 0) + 1
        elif op.startswith('v_mfma'):
            self.kind = 'mfma'
            self.wr = set(vregs(ops[0])); self.rdA = set(vregs(ops[1])) | set(vregs(ops[2])); self.rdC = set(vregs(ops[3]))
            self.rd = self.rdA | self.rdC
        elif op.startswith('v_permlane'):
            self.kind = 'perm'
            self.wr = set(vregs(ops[0])) | set(vregs(ops[1])); self.rd = set(self.wr)
        elif op.startswith('v_readfirstlane') or op.startswith('v_readlane'):
            self.kind = 'rdlane'; self.rd = set(vregs(ops[1]))
        elif op.startswith('v_cmp'):
            self.kind = 'valu'
            for o in ops[1:]: self.rd |= set(vregs(o))
        elif op.startswith('v_'):
            self.kind = 'trans' if op.replace('_e32', '').replace('_e64', '') in TRANS else 'valu'
            self.wr = set(vregs(ops[0]))
            for o in ops[1:]: self.rd |= set(vregs(o))
            if op.startswith('v_fmac') or op.startswith('v_pk_fmac'): self.rd |= self.wr
        elif op.startswith('ds_read') :
            self.kind = 'dsr'; self.wr = set(vregs(ops[0])); self.rd = set(vregs(ops[1]))
            if 'd16' in op: self.rd |= self.wr
        elif op.startswith('ds_bpermute') or op.startswith('ds_permute'):
            self.kind = 'dsr'; self.wr = set(vregs(ops[0])); self.rd = set(vregs(ops[1])) | set(vregs(ops[2]))
        elif op.startswith('ds_swizzle'):
            self.kind = 'dsr'; self.wr = set(vregs(ops[0])); self.rd = set(vregs(ops[1]))
        elif op.startswith('ds_add_rtn'):
            self.kind = 'dsr'; self.wr = set(vregs(ops[0])); self.rd = set(vregs(ops[1])) | set(vregs(ops[2]))
        elif op.startswith('ds_'):
            self.kind = 'dsw'
            for o in ops: self.rd |= set(vregs(o))
        elif op.startswith('buffer_load') and ' lds' in (' ' + t):
            self.kind = 'dma'; self.rd = set(vregs(ops[0]))
        elif op.startswith('buffer_load') or op.startswith('global_load'):
            self.kind = 'vld'; self.wr = set(vregs(ops[0])); self.rd = set(vregs(ops[1]))
        elif op.startswith('buffer_store') or op.startswith('global_store'):
            self.kind = 'vst'
            for o in ops[:2]: self.rd |= set(vregs(o))
        elif op.startswith('s_waitcnt'):
            self.kind = 'wait'
        else:
            self.kind = 'salu'

class Asm:
    def __init__(self):
        self.ins = []
    def __call__(self, text):
        for line in text.strip('\n').split('\n'):
            line = line.strip()
            if line: self.ins.append(Ins(line))
    def fence(self):
        self('s_waitcnt lgkmcnt(0)'); self('s_nop 7'); self('s_nop 1')
    def finalize(self):
        out = []
        pos = 0
        lastw = {}
        lastC = {}
        lastst = {}
        lgkm = []
        nnops = 0
        for I in self.ins:
            need = 0
            def req(p, n):
                nonlocal need
                need = max(need, n - (pos - p - 1))
            touch = I.rd | I.wr
            idx = -1
            for j, d in enumerate(lgkm):
                if d & touch: idx = j
            if I.kind == 'wait' and 'lgkmcnt' in I.text:
                n = int(re.search(r'lgkmcnt\((\d+)\)', I.text).group(1))
                lgkm = lgkm[len(lgkm) - n:] if n < len(lgkm) else lgkm
                if n == 0: lgkm = []
            elif idx >= 0:
                n = len(lgkm) - 1 - idx
                n = min(n, 15)
                out.append(Ins('s_waitcnt lgkmcnt(%d)' % n)); pos += 1
                lgkm = lgkm[len(lgkm) - n:] if n > 0 else []
            for r in I.rd:
                if r in lastw:
                    p, k, D = lastw[r]
                    if k == 'mfma':
                        if I.kind == 'mfma':
                            if r in I.rdA: req(p, 8)
                            if r in I.rdC: req(p, 0 if I.rdC == D else 6)
                        else: req(p, 8)
                    elif k in ('valu', 'trans', 'perm'):
                        if I.kind == 'mfma': req(p, 2)
                        elif I.kind == 'perm': req(p, 2)
                        elif I.kind == 'rdlane': req(p, 1)
                        elif k == 'trans' and I.kind in ('valu',): req(p, 1)
                        elif k == 'trans' and I.kind in ('dsw', 'vst', 'dsr', 'dma', 'vld'): req(p, 1)
            for r in I.wr:
                if r in lastw:
                    p, k, D = lastw[r]
                    if k == 'mfma' and not (I.kind == 'mfma' and I.rdC == D and I.wr == D): req(p, 8)
                if r in lastC and I.kind in ('valu', 'trans', 'perm'): req(lastC[r], 3)
                if r in lastst: req(lastst[r], 2)
            if need > 0:
                nnops += need
                while need > 0:
                    n = min(need, 16)
                    out.append(Ins('s_nop %d' % (n - 1))); pos += n; need -= n
            out.append(I)
            p = pos
            pos += I.states
            for r in I.wr:
                lastw[r] = (p, I.kind, I.wr)
            if I.kind == 'mfma':
                for r in I.rdC: lastC[r] = p
            if I.kind == 'vst':
                for r in I.rd: lastst[r] = p
            if I.kind == 'dsr': lgkm.append(set(I.wr))
            if I.kind == 'dsw': lgkm.append(set())
        self.nnops = nnops
        return '\n'.join(('    ' + i.text) if i.kind != 'label' else i.text for i in out) + '\n'
```

```python
import struct, sys, math
from asmlib import Asm
def f32(x): return '0x%08x' % struct.unpack('<I', struct.pack('<f', x))[0]
SCALE = 24 ** -0.5
C_EXP = SCALE * math.log2(math.e)
INV = 24 ** 0.5
MASKV = -100.0 * INV
STAMP = '--stamp' in sys.argv or '--dbg' in sys.argv
DBG = '--dbg' in sys.argv
PRIO = '--prio' in sys.argv

L_WQ, L_WO, L_X, L_OB = 0, 55296, 73728, 122880
L_CNT = 147456
L_SIZE = L_CNT + 64

WQ, WK, WR, WV0, WV1 = 4, 16, 28, 40, 52
BIAS = 64
CV1 = 100
vXr, vOw0, vOw1, vOr, vTo, vSoff, vCnt, vB32, vB48, vOne = 104, 105, 106, 107, 108, 109, 110, 111, 112, 113
Qf, Kf, Vf = 116, 132, 148
XF, ACC = 164, 188
S_, P_, O_, TMP = 164, 196, 212, 228
WoF, OF, OACC, ST = 148, 220, 232, 148
tL, tC, tG, tR, tCc, tTok, tXoff, tA, tB, tD, tE, tTq, tTr, tBP, tMask, tMY = 2, 3, 200, 201, 202, 203, 204, 205, 206, 207, 208, 209, 210, 211, 212, 213
def q4(b): return 'v[%d:%d]' % (b, b + 3)
def q2(b): return 'v[%d:%d]' % (b, b + 1)

A = Asm()
def stamp(i, real=False):
    if not STAMP: return
    A('s_waitcnt lgkmcnt(0)')
    A('%s s[62:63]' % ('s_memrealtime' if real else 's_memtime'))
    A('s_waitcnt lgkmcnt(0)')
    A('s_mov_b32 s%d, s62' % (64 + i))
def mfma(d, a, b, c): A('v_mfma_f32_16x16x32_bf16 %s, %s, %s, %s' % (q4(d), q4(a), q4(b), q4(c) if c is not None else '0'))
def pk(d, a, b): A('v_cvt_pk_bf16_f32 v%d, v%d, %s' % (d, a, ('v%d' % b) if b is not None else '0'))
class D(dict):
    def __missing__(self, k): return globals()[k]
def B(t): A(t.format_map(D()))

B('''
s_cmp_ge_u32 s2, 256
s_cbranch_scc1 L_end
''')
stamp(0, True); stamp(1)
B('''
s_load_dwordx8 s[4:11], s[0:1], 0
s_load_dwordx2 s[12:13], s[0:1], 48
v_readfirstlane_b32 s36, v0
v_and_b32 v{tL}, 63, v0                  ; lane
v_and_b32 v{tC}, 15, v0                  ; c
v_bfe_u32 v{tG}, v0, 4, 2                ; g
v_lshlrev_b32 v{vXr}, 4, v{tL}           ; lane*16
s_lshr_b32 s36, s36, 6                ; wave
s_and_b32 s37, s36, 3                 ; h = t
s_lshr_b32 s38, s36, 2                ; grp
s_lshr_b32 s39, s2, 3                 ; wy
s_and_b32 s40, s2, 7
s_lshl_b32 s40, s40, 2                ; wx0
s_add_u32 s40, s40, s38
s_mul_i32 s44, s39, 7
s_lshr_b32 s45, s37, 1
s_lshl_b32 s45, s45, 2
s_add_u32 s44, s44, s45
s_add_u32 s44, s44, 3
s_sub_u32 s45, s44, 224
s_cmp_ge_u32 s44, 224
s_cselect_b32 s44, s45, s44           ; ybase
s_mul_i32 s44, s44, 43008
s_mul_i32 s45, s40, 7
s_and_b32 s46, s37, 1
s_lshl_b32 s46, s46, 2
s_add_u32 s45, s45, s46
s_add_u32 s45, s45, 3
s_add_u32 s46, s45, 14                ; xbase r1
s_sub_u32 s47, s46, 224
s_cmp_ge_u32 s46, 224
s_cselect_b32 s46, s47, s46
s_mul_i32 s45, s45, 192
s_mul_i32 s46, s46, 192
s_add_u32 s41, s44, s45
s_add_u32 s42, s44, s46
v_lshrrev_b32 v{tR}, 2, v{tC}            ; c>>2
v_and_b32 v{tCc}, 3, v{tC}               ; c&3
v_mul_u32_u24 v{tTok}, 224, v{tR}
v_add_u32 v{tTok}, v{tTok}, v{tCc}
v_mul_u32_u24 v{tTok}, 192, v{tTok}      ; tokoff
s_and_b32 s50, s37, 1
s_lshr_b32 s51, s37, 1
s_cmp_eq_u32 s50, 1
s_cselect_b32 s50, 3, 99
s_cmp_eq_u32 s51, 1
s_cselect_b32 s51, 3, 99
v_cmp_eq_u32 vcc, s50, v{tCc}
v_cmp_eq_u32 s[52:53], s51, v{tR}
v_lshl_add_u32 v{tXoff}, v{tG}, 4, v{tTok}
s_or_b64 s[52:53], s[52:53], vcc
v_mul_u32_u24 v{tA}, 48, v{tG}
v_add_u32 v{vSoff}, v{tA}, v{tTok}
v_mov_b32 v{tA}, 0x80000000
s_lshr_b32 s50, s37, 1
s_lshl_b32 s50, s50, 2
s_sub_u32 s50, s50, 128
v_cndmask_b32 v{tXoff}, v{tXoff}, v{tA}, s[52:53]
v_cndmask_b32 v{vSoff}, v{vSoff}, v{tA}, s[52:53]
v_lshl_add_u32 v{tA}, v{tL}, 3, s50      ; lane*8 + (h>>1)*4 - 128
v_add_u32 v{tB}, 512, v{tA}
s_lshl_b32 s50, s36, 10
s_add_u32 s50, s50, {L_OB}
s_mul_i32 s54, s38, 12288
s_mul_i32 s55, s37, 3072
s_add_u32 s54, s54, s55
s_add_u32 s54, s54, {L_X}
s_mul_i32 s51, s36, 7168
s_add_u32 s55, s51, 4096
s_mov_b32 s19, 0x00020000
s_mov_b32 s23, 0x00020000
s_mov_b32 s27, 0x00020000
s_mov_b32 s31, 0x00020000
s_mov_b32 s35, 0x00020000
s_mov_b32 s18, 9633792
s_mov_b32 s22, 55296
s_mov_b32 s26, 18432
s_mov_b32 s30, 1352
s_mov_b32 s34, 9633792
s_mov_b32 s56, 512
s_mov_b32 s57, 1024
s_mov_b32 m0, s50
s_waitcnt lgkmcnt(0)
s_mov_b32 s16, s4
s_mov_b32 s17, s5
s_mov_b32 s20, s6
s_mov_b32 s21, s7
s_mov_b32 s24, s8
s_mov_b32 s25, s9
s_mov_b32 s28, s10
s_mov_b32 s29, s11
s_mov_b32 s32, s12
s_mov_b32 s33, s13
buffer_load_dword v{tA}, s[28:31], 0 offen lds
s_add_u32 m0, s50, 256
s_nop 0
buffer_load_dword v{tB}, s[28:31], 0 offen lds
s_add_u32 m0, s50, 512
s_nop 0
buffer_load_dword v{tB}, s[28:31], s56 offen lds
s_add_u32 m0, s50, 768
s_cmp_eq_u32 s38, 1
buffer_load_dword v{tB}, s[28:31], s57 offen lds
s_cbranch_scc1 L_skipx0
''')
def xdma(off, sreg):
    B('''
s_add_u32 m0, s54, %d
s_nop 0
buffer_load_dwordx4 v{tXoff}, s[16:19], %s offen lds
s_add_u32 m0, s54, %d
s_nop 0
buffer_load_dwordx4 v{tXoff}, s[16:19], %s offen offset:64 lds
s_add_u32 m0, s54, %d
s_nop 0
buffer_load_dwordx4 v{tXoff}, s[16:19], %s offen offset:128 lds
''' % (off, sreg, off + 960, sreg, off + 1920, sreg))
xdma(0, 's41')
B('''
L_skipx0:
s_mov_b32 m0, s51
s_nop 0
buffer_load_dwordx4 v{vXr}, s[20:23], s51 offen lds
buffer_load_dwordx4 v{vXr}, s[20:23], s51 offen offset:1024 lds
buffer_load_dwordx4 v{vXr}, s[20:23], s51 offen offset:2048 lds
buffer_load_dwordx4 v{vXr}, s[20:23], s51 offen offset:3072 lds
s_mov_b32 m0, s55
s_cmp_eq_u32 s36, 7
buffer_load_dwordx4 v{vXr}, s[20:23], s55 offen lds
s_cbranch_scc1 L_w7
buffer_load_dwordx4 v{vXr}, s[20:23], s55 offen offset:1024 lds
buffer_load_dwordx4 v{vXr}, s[20:23], s55 offen offset:2048 lds
s_branch L_w7e
L_w7:
s_mov_b32 m0, %d
s_mov_b32 s55, 16384
buffer_load_dwordx4 v{vXr}, s[24:27], s55 offen lds
buffer_load_dwordx4 v{vXr}, s[24:27], s55 offen offset:1024 lds
L_w7e:
; zero the counters (every wave writes the same zeros; ordered before first use by the barrier)
v_mov_b32 v{vCnt}, {L_CNT}
v_mov_b32 v{tB}, 0
v_mov_b32 v{tD}, 0
ds_write_b64 v{vCnt}, v[{tB}:{tD}]
ds_write_b64 v{vCnt}, v[{tB}:{tD}] offset:8
ds_write_b64 v{vCnt}, v[{tB}:{tD}] offset:16
s_waitcnt lgkmcnt(0)
s_barrier
s_cmp_eq_u32 s38, 0
s_cbranch_scc1 L_skipx1
''' % (L_WO + 16384))
xdma(0, 's41')
B('''
L_skipx1:
s_lshl_b32 s55, s36, 11
s_add_u32 m0, s55, {L_WO}
s_nop 0
buffer_load_dwordx4 v{vXr}, s[24:27], s55 offen lds
buffer_load_dwordx4 v{vXr}, s[24:27], s55 offen offset:1024 lds
''')
xdma(24576, 's42')
stamp(2)
B('''
s_mov_b32 s43, %s                     ; c_exp
s_mov_b32 s48, %s                     ; 1/scale
s_mov_b32 s49, %s                     ; mask/scale
v_sub_u32 v{tA}, v{tR}, v{tG}
v_add_u32 v{tA}, 6, v{tA}
v_mul_u32_u24 v{tA}, 13, v{tA}
v_add_u32 v{tA}, v{tA}, v{tCc}
v_lshlrev_b32 v{tA}, 2, v{tA}
s_and_b32 s55, s37, 1
s_lshl_b32 s55, s55, 1
s_add_u32 s55, s55, s50
s_sub_u32 s55, s55, 148
v_add_u32 v{tA}, s55, v{tA}              ; bias gather base
s_cmp_eq_u32 s39, 31
s_cselect_b32 s56, s49, 0
s_cselect_b32 s57, 0, s49
v_mov_b32 v{tMY}, s56
; ext constants
v_mov_b32 v{tB}, 0x3f80
v_cmp_gt_u32 vcc, 16, v{tL}
v_lshrrev_b32 v{tD}, 2, v{tL}
v_mov_b32 v{tE}, 0xff00
v_cndmask_b32 v{q0}, 0, v{tB}, vcc
v_cndmask_b32 v{q1}, 0, v{tB}, vcc
v_cndmask_b32 v{q2_}, 0, v{tB}, vcc
v_cndmask_b32 v{q3}, 0, v{tB}, vcc
v_cmp_eq_u32 vcc, 3, v{tD}
v_mov_b32 v{k0}, 0
v_mov_b32 v{k1}, 0
v_cndmask_b32 v{k2}, 0, v{tE}, vcc
v_cndmask_b32 v{k3}, 0, v{tE}, vcc
; CV1 / mask
v_cmp_lt_u32 vcc, 1, v{tCc}
v_mov_b32 v{vOne}, 1
s_nop 0
v_cndmask_b32 v100, 0, 1.0, vcc
v_cndmask_b32 v101, 0, 1.0, vcc
v_cndmask_b32 v102, 0, 1.0, vcc
v_cndmask_b32 v103, 0, 1.0, vcc
v_cndmask_b32 v{tMask}, -1, 0, vcc
; bpermute source lane for rem tiles: g*16 + 2*(c>>2) + (c&1) + ((c&2)?8:0)
v_and_b32 v{tB}, 1, v{tCc}
v_lshl_add_u32 v{tB}, v{tR}, 1, v{tB}
v_and_b32 v{tD}, 2, v{tCc}
v_lshl_add_u32 v{tB}, v{tD}, 2, v{tB}
v_lshl_add_u32 v{tB}, v{tG}, 4, v{tB}
v_lshlrev_b32 v{tBP}, 2, v{tB}
v_xor_b32 v{tB}, 32, v{tL}
v_lshlrev_b32 v{vB32}, 2, v{tB}
v_xor_b32 v{tB}, 48, v{tL}
v_lshlrev_b32 v{vB48}, 2, v{tB}
; tr-read addresses for wqkv
v_lshl_add_u32 v{tB}, v{tG}, 3, v{tR}
v_mul_u32_u24 v{tB}, 576, v{tB}
s_mul_i32 s55, s37, 48
v_add_u32 v{tB}, s55, v{tB}
v_lshl_add_u32 v{tTq}, v{tCc}, 3, v{tB}
v_and_b32 v{tTr}, 1, v{tCc}
v_lshl_add_u32 v{tTr}, v{tTr}, 3, v{tB}
v_lshrrev_b32 v{tD}, 1, v{tCc}
v_mul_u32_u24 v{tD}, 192, v{tD}
v_add3_u32 v{tTr}, v{tTr}, v{tD}, 32
; Wo tr-read base
s_mov_b32 s58, {L_WO}
v_mul_u32_u24 v{vTo}, 24, v{tG}
v_add_u32 v{vTo}, v{vTo}, v{tR}
v_mul_u32_u24 v{vTo}, 192, v{vTo}
v_mul_u32_u24 v{tD}, 48, v{tCc}
v_add3_u32 v{vTo}, v{vTo}, v{tD}, s58
; O write addresses
s_mul_i32 s55, s38, 12288
s_lshl_b32 s59, s37, 8
s_add_u32 s59, s55, s59
s_add_u32 s59, s59, {L_OB}            ; OB + grp*12288 + h*256
v_lshl_add_u32 v{tB}, v{tC}, 4, s59      ; + c*16
v_lshrrev_b32 v{tD}, 1, v{tG}
v_lshl_add_u32 v{vOw0}, v{tD}, 10, v{tB}
v_and_b32 v{tD}, 1, v{tG}
v_lshl_add_u32 v{vOw0}, v{tD}, 3, v{vOw0}
v_lshl_add_u32 v{vOw1}, v{tG}, 2, v{tB}
v_add_u32 v{vOw1}, 2048, v{vOw1}
s_mul_i32 s59, s37, 3072
s_add_u32 s59, s59, s55
s_add_u32 s59, s59, {L_OB}
v_add_u32 v{vOr}, s59, v{vXr}
s_add_u32 s55, s55, {L_X}
v_add_u32 v{vXr}, s55, v{vXr}
s_lshl_b32 s55, s38, 3
v_add_u32 v{vCnt}, s55, v{vCnt}          ; per-group counters: +0 cX, +4 cO ; cD at L_CNT+16
s_waitcnt vmcnt(15)
'''.replace('{q0}', str(Qf + 3)).replace('{q1}', str(Qf + 7)).replace('{q2_}', str(Qf + 11)).replace('{q3}', str(Qf + 15))
   .replace('{k0}', str(Kf + 3)).replace('{k1}', str(Kf + 7)).replace('{k2}', str(Kf + 11)).replace('{k3}', str(Kf + 15)) % (f32(C_EXP), f32(INV), f32(MASKV)))
stamp(3)
for du in (-1, 0, 1):
    for dt in (-1, 0, 1):
        for r in range(4):
            b = BIAS + ((du + 1) * 3 + dt + 1) * 4 + r
            A('ds_read_u16 v%d, v%d offset:%d' % (b, tA, (52 * du + 4 * dt - r + 59) * 4))
for du in (-1, 0, 1):
    for dt in (-1, 0, 1):
        for r in range(4):
            b = BIAS + ((du + 1) * 3 + dt + 1) * 4 + r
            A('v_lshlrev_b32 v%d, 16, v%d' % (b, b))
            if du: A('v_fma_f32 v%d, v%d, s48, v%d' % (b, b, tMY))
            else: A('v_mul_f32 v%d, s48, v%d' % (b, b))
stamp(4)
B('''
s_cmp_eq_u32 s38, 1
s_cbranch_scc1 L_wB
s_waitcnt vmcnt(5)
L_wB:
s_waitcnt vmcnt(8)
s_barrier
''')
stamp(5)
for s in range(3):
    for half in range(2):
        imm = (s * 32 + half * 4) * 576
        A('ds_read_b64_tr_b16 %s, v%d offset:%d' % (q2(WR + s * 4 + half * 2), tTr, imm))
        A('ds_read_b64_tr_b16 %s, v%d offset:%d' % (q2(WV1 + s * 4 + half * 2), tTq, imm + 416))
for s in range(3):
    for half in range(2):
        imm = (s * 32 + half * 4) * 576
        A('ds_read_b64_tr_b16 %s, v%d offset:%d' % (q2(WQ + s * 4 + half * 2), tTq, imm))
        A('ds_read_b64_tr_b16 %s, v%d offset:%d' % (q2(WK + s * 4 + half * 2), tTq, imm + 192))
        A('ds_read_b64_tr_b16 %s, v%d offset:%d' % (q2(WV0 + s * 4 + half * 2), tTq, imm + 384))
for i in range(12):
    A('ds_bpermute_b32 v%d, v%d, v%d' % (WR + i, tBP, WR + i))
    A('ds_bpermute_b32 v%d, v%d, v%d' % (WV1 + i, tBP, WV1 + i))
for i in range(12):
    A('v_and_b32 v%d, v%d, v%d' % (WV1 + i, WV1 + i, tMask))
stamp(6)
B('''
s_waitcnt vmcnt(5)
ds_add_u32 v{vCnt}, v{vOne}
L_pollx:
ds_read_b32 v{tA}, v{vCnt}
s_waitcnt lgkmcnt(0)
v_readfirstlane_b32 s55, v{tA}
s_cmp_lt_u32 s55, 256
s_cbranch_scc1 L_pollx
s_mov_b32 s60, 256
''')
if PRIO:
    B('''
s_cmp_eq_u32 s38, 1
s_cbranch_scc1 L_noprio
s_setprio 1
L_noprio:
''')
A.fence()
stamp(7)
A('L_round:')

def xread(t):
    for s in range(3):
        A('ds_read_b128 %s, v%d offset:%d' % (q4(XF + (t & 1) * 12 + s * 4), vXr, (t * 3 + s) * 1024))
def proj_mfma(t):
    a = ACC + (t & 1) * 20; x = XF + (t & 1) * 12
    for s in range(3):
        mfma(a + 0, WQ + s * 4, x + s * 4, a + 0 if s else None)
        mfma(a + 4, WK + s * 4, x + s * 4, a + 4 if s else None)
        mfma(a + 8, WR + s * 4, x + s * 4, a + 8 if s else None)
        mfma(a + 12, x + s * 4, WV0 + s * 4, a + 12 if s else None)
        mfma(a + 16, x + s * 4, WV1 + s * 4, a + 16 if s else CV1)
def proj_cvt(t):
    a = ACC + (t & 1) * 20
    q = Qf + t * 4; k = Kf + t * 4
    pk(q + 0, a + 0, a + 1); pk(q + 1, a + 2, a + 3)
    pk(k + 0, a + 4, a + 5); pk(k + 1, a + 6, a + 7)
    pk(q + 2, a + 8, a + 9); pk(k + 2, a + 10, a + 11)
    for d in range(2):
        v = Vf + (d * 2 + (t >> 1)) * 4 + (t & 1) * 2
        pk(v + 0, a + 12 + d * 4, a + 13 + d * 4); pk(v + 1, a + 14 + d * 4, a + 15 + d * 4)

xread(0); xread(1)
proj_mfma(0)
proj_mfma(1); proj_cvt(0); xread(2)
proj_mfma(2); proj_cvt(1); xread(3)
proj_mfma(3); proj_cvt(2)
proj_cvt(3)
stamp(12)
B('''
s_waitcnt vmcnt(0)
ds_add_u32 v{vCnt}, v{vOne} offset:0
''') if False else None

def s_mfma(tq):
    s = S_ + (tq & 1) * 16
    for tk in range(4):
        du = (tq >> 1) - (tk >> 1); dt = (tq & 1) - (tk & 1)
        mfma(s + tk * 4, Kf + tk * 4, Qf + tq * 4, BIAS + ((du + 1) * 3 + dt + 1) * 4)
def sregs(tq):
    s = S_ + (tq & 1) * 16
    return [s + tk * 4 + r for tk in range(4) for r in range(4) if not ((tk & 1) and r == 3)]
def smax(tq):
    m = TMP + (tq & 1) * 4
    regs = sregs(tq)
    A('v_max3_f32 v%d, v%d, v%d, v%d' % (m, regs[0], regs[1], regs[2]))
    i = 3
    while i < len(regs):
        if i + 1 < len(regs):
            A('v_max3_f32 v%d, v%d, v%d, v%d' % (m, m, regs[i], regs[i + 1])); i += 2
        else:
            A('v_max_f32 v%d, v%d, v%d' % (m, m, regs[i])); i += 1
    A('ds_swizzle_b32 v%d, v%d offset:0x401F' % (m + 1, m))
    A('ds_bpermute_b32 v%d, v%d, v%d' % (m + 2, vB32, m))
    A('ds_bpermute_b32 v%d, v%d, v%d' % (m + 3, vB48, m))
def sexp(tq):
    s = S_ + (tq & 1) * 16; p = P_ + (tq & 1) * 8
    m = TMP + (tq & 1) * 4
    regs = sregs(tq)
    A('v_max_f32 v%d, v%d, v%d' % (m, m, m + 1))
    A('v_max3_f32 v%d, v%d, v%d, v%d' % (m, m, m + 2, m + 3))
    A('v_mul_f32 v%d, s43, v%d' % (m, m))
    for i, r in enumerate(regs):
        A('v_fma_f32 v%d, v%d, s43, -v%d' % (r, r, m))
        if i > 0: A('v_exp_f32 v%d, v%d' % (regs[i - 1], regs[i - 1]))
    A('v_exp_f32 v%d, v%d' % (regs[-1], regs[-1]))
    for tk in range(4):
        b = s + tk * 4
        pk(p + tk * 2, b, b + 1)
        pk(p + tk * 2 + 1, b + 2, None if (tk & 1) else b + 3)
def pv_mfma(tq):
    p = P_ + (tq & 1) * 8; o = O_ + (tq & 1) * 8
    for pp in range(2):
        for d in range(2):
            mfma(o + d * 4, Vf + (d * 2 + pp) * 4, p + pp * 4, o + d * 4 if pp else None)
def onorm(tq):
    o = O_ + (tq & 1) * 8
    b = TMP + 8; w = TMP + 12 + (tq & 1) * 4
    A('v_rcp_f32 v%d, v%d' % (b, o + 6))
    for i in range(6):
        A('v_mul_f32 v%d, v%d, v%d' % (o + i, o + i, b))
    for i in range(3):
        pk(w + i, o + 2 * i, o + 2 * i + 1)
    A('ds_write_b64 v%d, %s offset:%d' % (vOw0, q2(w), tq * 3072))
    A('ds_write_b32 v%d, v%d offset:%d' % (vOw1, w + 2, tq * 3072))

s_mfma(0)
for tq in range(4):
    if tq < 3: s_mfma(tq + 1)
    smax(tq)
    if tq > 0: onorm(tq - 1)
    sexp(tq)
    pv_mfma(tq)
    if tq == 1:
        B('s_cmp_eq_u32 s60, 512\ns_cbranch_scc1 L_skipw\ns_waitcnt vmcnt(0)\nL_skipw:')
        B('v_mov_b32 v{TMPD}, {L_CNT}'.replace('{TMPD}', str(TMP + 9)))
        A('ds_add_u32 v%d, v%d offset:16' % (TMP + 9, vOne))
onorm(3)
B('ds_add_u32 v{vCnt}, v{vOne} offset:4')
stamp(13)
B('''
v_mov_b32 v%d, {L_CNT}
L_pollo:
ds_read_b32 v%d, v{vCnt} offset:4
ds_read_b32 v%d, v%d offset:16
s_waitcnt lgkmcnt(0)
v_readfirstlane_b32 s55, v%d
v_readfirstlane_b32 s56, v%d
s_cmp_lt_u32 s55, s60
s_cbranch_scc1 L_pollo
s_cmp_lt_u32 s56, 512
s_cbranch_scc1 L_pollo
''' % (TMP + 9, TMP + 10, TMP + 11, TMP + 9, TMP + 10, TMP + 11))
stamp(14)
for s in range(3):
    A('ds_read_b128 %s, v%d offset:%d' % (q4(OF + s * 4), vOr, s * 1024))
for T in range(6):
    for s in range(3):
        for half in range(2):
            A('ds_read_b64_tr_b16 %s, v%d offset:%d' % (q2(WoF + (T * 3 + s) * 4 + half * 2), vTo, (8 * s + 4 * half) * 192 + T * 8))
for T in range(6):
    for s in range(3):
        mfma(OACC + T * 4, WoF + (T * 3 + s) * 4, OF + s * 4, OACC + T * 4 if s else None)
for j in range(3):
    for T in (2 * j, 2 * j + 1):
        pk(ST + T * 2, OACC + T * 4, OACC + T * 4 + 1); pk(ST + T * 2 + 1, OACC + T * 4 + 2, OACC + T * 4 + 3)
    A('buffer_store_dwordx4 %s, v%d, s[32:35], s41 offen offset:%d' % (q4(ST + j * 4), vSoff, j * 16))
stamp(15)
B('''
s_cmp_eq_u32 s60, 512
s_cbranch_scc1 L_fin
s_mov_b32 s60, 512
s_mov_b32 s41, s42
v_add_u32 v{vXr}, 24576, v{vXr}
v_subrev_u32 v{vOw0}, {L_OB}, v{vOw0}
v_subrev_u32 v{vOw1}, {L_OB}, v{vOw1}
v_subrev_u32 v{vOr}, {L_OB}, v{vOr}
''')
if STAMP: B('s_mov_b32 s72, s76\ns_mov_b32 s73, s77\ns_mov_b32 s74, s78\ns_mov_b32 s75, s79')
B('''
s_cmp_eq_u32 s40, 29
s_cbranch_scc0 L_nofix
''')
for du in (-1, 0, 1):
    for dt in (-1, 1):
        for r in range(4):
            b = BIAS + ((du + 1) * 3 + dt + 1) * 4 + r
            A('v_add_f32 v%d, %s, v%d' % (b, 's57' if du else 's49', b))
A('L_nofix:')
A.fence()
A('s_branch L_round')
A('L_fin:')
if STAMP:
    A('s_waitcnt vmcnt(0)')
    stamp(16); stamp(17, True)
if DBG:
    A('s_load_dwordx2 s[50:51], s[0:1], 56')
    A('s_waitcnt lgkmcnt(0)')
    A('s_mov_b32 s52, s50\ns_mov_b32 s53, s51\ns_mov_b32 s54, 256\ns_mov_b32 s55, 0x00020000')
    A('v_mov_b32 v1, 0')
    A('s_mov_b64 exec, 1')
    A('v_mov_b32 v2, s81')
    A('buffer_atomic_umax v2, v1, s[52:55], 0 offen')
    A('s_not_b32 s56, s64')
    A('v_mov_b32 v3, s56')
    A('buffer_atomic_umax v3, v1, s[52:55], 0 offen offset:4')
    A('s_sub_u32 s56, s81, s64')
    A('v_mov_b32 v4, s56')
    A('buffer_atomic_umax v4, v1, s[52:55], 0 offen offset:8')
    A('s_sub_u32 s56, s80, s65')
    A('v_mov_b32 v5, s56')
    A('buffer_atomic_umax v5, v1, s[52:55], 0 offen offset:12')
    A('s_lshl_b32 s56, s2, 3\ns_add_u32 s56, s56, s36')
    A('s_cmp_eq_u32 s56, 800')
    A('s_cbranch_scc0 L_end')
    for j, i in enumerate([2, 3, 4, 5, 6, 7, 8, 9, 10, 11, 15, 16]):
        A('s_sub_u32 s56, s%d, s65' % (64 + i))
        A('v_mov_b32 v%d, s56' % (6 + j))
        A('buffer_store_dword v%d, v1, s[52:55], 0 offen offset:%d' % (6 + j, 16 + j * 4))
elif STAMP:
    A('s_load_dwordx2 s[50:51], s[0:1], 64')
    A('s_waitcnt lgkmcnt(0)')
    A('s_mov_b32 s52, s50\ns_mov_b32 s53, s51\ns_mov_b32 s54, 0x100000\ns_mov_b32 s55, 0x00020000')
    A('s_lshl_b32 s56, s2, 3\ns_add_u32 s56, s56, s36\ns_lshl_b32 s56, s56, 7')
    A('v_mov_b32 v1, 0')
    for i in range(18):
        A('v_mov_b32 v2, s%d' % (64 + i))
        A('buffer_store_dword v2, v1, s[52:55], s56 offen offset:%d' % (i * 4))
A('L_end:')
A('s_endpgm')
body = A.finalize()

hdr = open('standalone__window_attn_swin__vision.s.ref').read().split('\n')
hdr = [l for l in hdr if l.startswith(';') and '@launch' not in l]
out = '\n'.join(hdr) + '\n; @launch grid=(256,1,1) block=(512,1,1) lds=%d\n' % L_SIZE
out += '''.amdgcn_target "amdgcn-amd-amdhsa--gfx950"
.text
.globl standalone__window_attn_swin__vision_kernel
.p2align 8
.type standalone__window_attn_swin__vision_kernel,@function
standalone__window_attn_swin__vision_kernel:
''' + body + '''.section .rodata,"a"
.p2align 6
.amdhsa_kernel standalone__window_attn_swin__vision_kernel
  .amdhsa_next_free_vgpr 256
  .amdhsa_next_free_sgpr 96
  .amdhsa_accum_offset 256
  .amdhsa_group_segment_fixed_size 0
  .amdhsa_kernarg_size 72
  .amdhsa_user_sgpr_count 2
  .amdhsa_user_sgpr_kernarg_segment_ptr 1
  .amdhsa_system_sgpr_workgroup_id_x 1
.end_amdhsa_kernel
'''
dst = sys.argv[1]
open(dst, 'w').write(out)
print('instructions:', len(body.split('\n')), 'nop states:', A.nnops)
```

```python
import struct, sys, math
from asmlib import Asm
def f32(x): return '0x%08x' % struct.unpack('<I', struct.pack('<f', x))[0]
SCALE = 24 ** -0.5
C_EXP = SCALE * math.log2(math.e)
INV = 24 ** 0.5
MASKV = -100.0 * INV
STAMP = '--stamp' in sys.argv or '--dbg' in sys.argv
DBG = '--dbg' in sys.argv
PRIO = '--prio' in sys.argv

L_WQ, L_WO, L_X, L_OB = 0, 55296, 73728, 122880
L_CNT = 147456
L_SIZE = L_CNT + 64

WQ, WK, WR, WV0, WV1 = 4, 16, 28, 40, 52
BIAS = 64
CV1 = 100
vXr, vOw0, vOw1, vOr, vTo, vSoff, vCnt, vB32, vB48, vOne = 104, 105, 106, 107, 108, 109, 110, 111, 112, 113
Qf, Kf, Vf = 116, 132, 148
XF, ACC = 164, 188
S_, P_, O_, TMP = 164, 196, 212, 228
WoF, OF, OACC, ST = 148, 220, 232, 148
tL, tC, tG, tR, tCc, tTok, tXoff, tA, tB, tD, tE, tTq, tTr, tBP, tMask, tMY = 2, 3, 200, 201, 202, 203, 204, 205, 206, 207, 208, 209, 210, 211, 212, 213
def q4(b): return 'v[%d:%d]' % (b, b + 3)
def q2(b): return 'v[%d:%d]' % (b, b + 1)

A = Asm()
def stamp(i, real=False):
    if not STAMP: return
    A('s_waitcnt lgkmcnt(0)')
    A('%s s[62:63]' % ('s_memrealtime' if real else 's_memtime'))
    A('s_waitcnt lgkmcnt(0)')
    A('s_mov_b32 s%d, s62' % (64 + i))
def mfma(d, a, b, c): A('v_mfma_f32_16x16x32_bf16 %s, %s, %s, %s' % (q4(d), q4(a), q4(b), q4(c) if c is not None else '0'))
def pk(d, a, b): A('v_cvt_pk_bf16_f32 v%d, v%d, %s' % (d, a, ('v%d' % b) if b is not None else '0'))
class D(dict):
    def __missing__(self, k): return globals()[k]
def B(t): A(t.format_map(D()))

B('''
s_cmp_ge_u32 s2, 256
s_cbranch_scc1 L_end
''')
stamp(0, True); stamp(1)
B('''
s_load_dwordx8 s[4:11], s[0:1], 0
s_load_dwordx2 s[12:13], s[0:1], 48
v_readfirstlane_b32 s36, v0
v_and_b32 v{tL}, 63, v0                  ; lane
v_and_b32 v{tC}, 15, v0                  ; c
v_bfe_u32 v{tG}, v0, 4, 2                ; g
v_lshlrev_b32 v{vXr}, 4, v{tL}           ; lane*16
s_lshr_b32 s36, s36, 6                ; wave
s_and_b32 s37, s36, 3                 ; h = t
s_lshr_b32 s38, s36, 2                ; grp
s_lshr_b32 s39, s2, 3                 ; wy
s_and_b32 s40, s2, 7
s_lshl_b32 s40, s40, 2                ; wx0
s_add_u32 s40, s40, s38
s_mul_i32 s44, s39, 7
s_lshr_b32 s45, s37, 1
s_lshl_b32 s45, s45, 2
s_add_u32 s44, s44, s45
s_add_u32 s44, s44, 3
s_sub_u32 s45, s44, 224
s_cmp_ge_u32 s44, 224
s_cselect_b32 s44, s45, s44           ; ybase
s_mul_i32 s44, s44, 43008
s_mul_i32 s45, s40, 7
s_and_b32 s46, s37, 1
s_lshl_b32 s46, s46, 2
s_add_u32 s45, s45, s46
s_add_u32 s45, s45, 3
s_add_u32 s46, s45, 14                ; xbase r1
s_sub_u32 s47, s46, 224
s_cmp_ge_u32 s46, 224
s_cselect_b32 s46, s47, s46
s_mul_i32 s45, s45, 192
s_mul_i32 s46, s46, 192
s_add_u32 s41, s44, s45
s_add_u32 s42, s44, s46
v_lshrrev_b32 v{tR}, 2, v{tC}            ; c>>2
v_and_b32 v{tCc}, 3, v{tC}               ; c&3
v_mul_u32_u24 v{tTok}, 224, v{tR}
v_add_u32 v{tTok}, v{tTok}, v{tCc}
v_mul_u32_u24 v{tTok}, 192, v{tTok}      ; tokoff
s_and_b32 s50, s37, 1
s_lshr_b32 s51, s37, 1
s_cmp_eq_u32 s50, 1
s_cselect_b32 s50, 3, 99
s_cmp_eq_u32 s51, 1
s_cselect_b32 s51, 3, 99
v_cmp_eq_u32 vcc, s50, v{tCc}
v_cmp_eq_u32 s[52:53], s51, v{tR}
v_lshl_add_u32 v{tXoff}, v{tG}, 4, v{tTok}
s_or_b64 s[52:53], s[52:53], vcc
v_mul_u32_u24 v{tA}, 48, v{tG}
v_add_u32 v{vSoff}, v{tA}, v{tTok}
v_mov_b32 v{tA}, 0x80000000
s_lshr_b32 s50, s37, 1
s_lshl_b32 s50, s50, 2
s_sub_u32 s50, s50, 128
v_cndmask_b32 v{tXoff}, v{tXoff}, v{tA}, s[52:53]
v_cndmask_b32 v{vSoff}, v{vSoff}, v{tA}, s[52:53]
v_lshl_add_u32 v{tA}, v{tL}, 3, s50      ; lane*8 + (h>>1)*4 - 128
v_add_u32 v{tB}, 512, v{tA}
s_lshl_b32 s50, s36, 10
s_add_u32 s50, s50, {L_OB}
s_mul_i32 s54, s38, 12288
s_mul_i32 s55, s37, 3072
s_add_u32 s54, s54, s55
s_add_u32 s54, s54, {L_X}
s_mul_i32 s51, s36, 7168
s_add_u32 s55, s51, 4096
s_mov_b32 s19, 0x00020000
s_mov_b32 s23, 0x00020000
s_mov_b32 s27, 0x00020000
s_mov_b32 s31, 0x00020000
s_mov_b32 s35, 0x00020000
s_mov_b32 s18, 9633792
s_mov_b32 s22, 55296
s_mov_b32 s26, 18432
s_mov_b32 s30, 1352
s_mov_b32 s34, 9633792
s_mov_b32 s56, 512
s_mov_b32 s57, 1024
s_mov_b32 m0, s50
s_waitcnt lgkmcnt(0)
s_mov_b32 s16, s4
s_mov_b32 s17, s5
s_mov_b32 s20, s6
s_mov_b32 s21, s7
s_mov_b32 s24, s8
s_mov_b32 s25, s9
s_mov_b32 s28, s10
s_mov_b32 s29, s11
s_mov_b32 s32, s12
s_mov_b32 s33, s13
buffer_load_dword v{tA}, s[28:31], 0 offen lds
s_add_u32 m0, s50, 256
s_nop 0
buffer_load_dword v{tB}, s[28:31], 0 offen lds
s_add_u32 m0, s50, 512
s_nop 0
buffer_load_dword v{tB}, s[28:31], s56 offen lds
s_add_u32 m0, s50, 768
s_cmp_eq_u32 s38, 1
buffer_load_dword v{tB}, s[28:31], s57 offen lds
s_cbranch_scc1 L_skipx0
''')
def xdma(off, sreg):
    B('''
s_add_u32 m0, s54, %d
s_nop 0
buffer_load_dwordx4 v{tXoff}, s[16:19], %s offen lds
s_add_u32 m0, s54, %d
s_nop 0
buffer_load_dwordx4 v{tXoff}, s[16:19], %s offen offset:64 lds
s_add_u32 m0, s54, %d
s_nop 0
buffer_load_dwordx4 v{tXoff}, s[16:19], %s offen offset:128 lds
''' % (off, sreg, off + 960, sreg, off + 1920, sreg))
xdma(0, 's41')
B('''
L_skipx0:
s_mov_b32 m0, s51
s_nop 0
buffer_load_dwordx4 v{vXr}, s[20:23], s51 offen lds
buffer_load_dwordx4 v{vXr}, s[20:23], s51 offen offset:1024 lds
buffer_load_dwordx4 v{vXr}, s[20:23], s51 offen offset:2048 lds
buffer_load_dwordx4 v{vXr}, s[20:23], s51 offen offset:3072 lds
s_mov_b32 m0, s55
s_cmp_eq_u32 s36, 7
buffer_load_dwordx4 v{vXr}, s[20:23], s55 offen lds
s_cbranch_scc1 L_w7
buffer_load_dwordx4 v{vXr}, s[20:23], s55 offen offset:1024 lds
buffer_load_dwordx4 v{vXr}, s[20:23], s55 offen offset:2048 lds
s_branch L_w7e
L_w7:
s_mov_b32 m0, %d
s_mov_b32 s55, 16384
buffer_load_dwordx4 v{vXr}, s[24:27], s55 offen lds
buffer_load_dwordx4 v{vXr}, s[24:27], s55 offen offset:1024 lds
L_w7e:
; zero the counters (every wave writes the same zeros; ordered before first use by the barrier)
v_mov_b32 v{vCnt}, {L_CNT}
v_mov_b32 v{tB}, 0
v_mov_b32 v{tD}, 0
ds_write_b64 v{vCnt}, v[{tB}:{tD}]
ds_write_b64 v{vCnt}, v[{tB}:{tD}] offset:8
ds_write_b64 v{vCnt}, v[{tB}:{tD}] offset:16
s_waitcnt lgkmcnt(0)
s_barrier
s_cmp_eq_u32 s38, 0
s_cbranch_scc1 L_skipx1
''' % (L_WO + 16384))
xdma(0, 's41')
B('''
L_skipx1:
s_lshl_b32 s55, s36, 11
s_add_u32 m0, s55, {L_WO}
s_nop 0
buffer_load_dwordx4 v{vXr}, s[24:27], s55 offen lds
buffer_load_dwordx4 v{vXr}, s[24:27], s55 offen offset:1024 lds
''')
xdma(24576, 's42')
stamp(2)
B('''
s_mov_b32 s43, %s                     ; c_exp
s_mov_b32 s48, %s                     ; 1/scale
s_mov_b32 s49, %s                     ; mask/scale
v_sub_u32 v{tA}, v{tR}, v{tG}
v_add_u32 v{tA}, 6, v{tA}
v_mul_u32_u24 v{tA}, 13, v{tA}
v_add_u32 v{tA}, v{tA}, v{tCc}
v_lshlrev_b32 v{tA}, 2, v{tA}
s_and_b32 s55, s37, 1
s_lshl_b32 s55, s55, 1
s_add_u32 s55, s55, s50
s_sub_u32 s55, s55, 148
v_add_u32 v{tA}, s55, v{tA}              ; bias gather base
s_cmp_eq_u32 s39, 31
s_cselect_b32 s56, s49, 0
s_cselect_b32 s57, 0, s49
v_mov_b32 v{tMY}, s56
; ext constants
v_mov_b32 v{tB}, 0x3f80
v_cmp_gt_u32 vcc, 16, v{tL}
v_lshrrev_b32 v{tD}, 2, v{tL}
v_mov_b32 v{tE}, 0xff00
v_cndmask_b32 v{q0}, 0, v{tB}, vcc
v_cndmask_b32 v{q1}, 0, v{tB}, vcc
v_cndmask_b32 v{q2_}, 0, v{tB}, vcc
v_cndmask_b32 v{q3}, 0, v{tB}, vcc
v_cmp_eq_u32 vcc, 3, v{tD}
v_mov_b32 v{k0}, 0
v_mov_b32 v{k1}, 0
v_cndmask_b32 v{k2}, 0, v{tE}, vcc
v_cndmask_b32 v{k3}, 0, v{tE}, vcc
; CV1 / mask
v_cmp_lt_u32 vcc, 1, v{tCc}
v_mov_b32 v{vOne}, 1
s_nop 0
v_cndmask_b32 v100, 0, 1.0, vcc
v_cndmask_b32 v101, 0, 1.0, vcc
v_cndmask_b32 v102, 0, 1.0, vcc
v_cndmask_b32 v103, 0, 1.0, vcc
v_cndmask_b32 v{tMask}, -1, 0, vcc
; bpermute source lane for rem tiles: g*16 + 2*(c>>2) + (c&1) + ((c&2)?8:0)
v_and_b32 v{tB}, 1, v{tCc}
v_lshl_add_u32 v{tB}, v{tR}, 1, v{tB}
v_and_b32 v{tD}, 2, v{tCc}
v_lshl_add_u32 v{tB}, v{tD}, 2, v{tB}
v_lshl_add_u32 v{tB}, v{tG}, 4, v{tB}
v_lshlrev_b32 v{tBP}, 2, v{tB}
v_xor_b32 v{tB}, 32, v{tL}
v_lshlrev_b32 v{vB32}, 2, v{tB}
v_xor_b32 v{tB}, 48, v{tL}
v_lshlrev_b32 v{vB48}, 2, v{tB}
; tr-read addresses for wqkv
v_lshl_add_u32 v{tB}, v{tG}, 3, v{tR}
v_mul_u32_u24 v{tB}, 576, v{tB}
s_mul_i32 s55, s37, 48
v_add_u32 v{tB}, s55, v{tB}
v_lshl_add_u32 v{tTq}, v{tCc}, 3, v{tB}
v_and_b32 v{tTr}, 1, v{tCc}
v_lshl_add_u32 v{tTr}, v{tTr}, 3, v{tB}
v_lshrrev_b32 v{tD}, 1, v{tCc}
v_mul_u32_u24 v{tD}, 192, v{tD}
v_add3_u32 v{tTr}, v{tTr}, v{tD}, 32
; Wo tr-read base
s_mov_b32 s58, {L_WO}
v_mul_u32_u24 v{vTo}, 24, v{tG}
v_add_u32 v{vTo}, v{vTo}, v{tR}
v_mul_u32_u24 v{vTo}, 192, v{vTo}
v_mul_u32_u24 v{tD}, 48, v{tCc}
v_add3_u32 v{vTo}, v{vTo}, v{tD}, s58
; O write addresses
s_mul_i32 s55, s38, 12288
s_lshl_b32 s59, s37, 8
s_add_u32 s59, s55, s59
s_add_u32 s59, s59, {L_OB}            ; OB + grp*12288 + h*256
v_lshl_add_u32 v{tB}, v{tC}, 4, s59      ; + c*16
v_lshrrev_b32 v{tD}, 1, v{tG}
v_lshl_add_u32 v{vOw0}, v{tD}, 10, v{tB}
v_and_b32 v{tD}, 1, v{tG}
v_lshl_add_u32 v{vOw0}, v{tD}, 3, v{vOw0}
v_lshl_add_u32 v{vOw1}, v{tG}, 2, v{tB}
v_add_u32 v{vOw1}, 2048, v{vOw1}
s_mul_i32 s59, s37, 3072
s_add_u32 s59, s59, s55
s_add_u32 s59, s59, {L_OB}
v_add_u32 v{vOr}, s59, v{vXr}
s_add_u32 s55, s55, {L_X}
v_add_u32 v{vXr}, s55, v{vXr}
s_lshl_b32 s55, s38, 3
v_add_u32 v{vCnt}, s55, v{vCnt}          ; per-group counters: +0 cX, +4 cO ; cD at L_CNT+16
s_waitcnt vmcnt(15)
'''.replace('{q0}', str(Qf + 3)).replace('{q1}', str(Qf + 7)).replace('{q2_}', str(Qf + 11)).replace('{q3}', str(Qf + 15))
   .replace('{k0}', str(Kf + 3)).replace('{k1}', str(Kf + 7)).replace('{k2}', str(Kf + 11)).replace('{k3}', str(Kf + 15)) % (f32(C_EXP), f32(INV), f32(MASKV)))
stamp(3)
for du in (-1, 0, 1):
    for dt in (-1, 0, 1):
        for r in range(4):
            b = BIAS + ((du + 1) * 3 + dt + 1) * 4 + r
            A('ds_read_u16 v%d, v%d offset:%d' % (b, tA, (52 * du + 4 * dt - r + 59) * 4))
for du in (-1, 0, 1):
    for dt in (-1, 0, 1):
        for r in range(4):
            b = BIAS + ((du + 1) * 3 + dt + 1) * 4 + r
            A('v_lshlrev_b32 v%d, 16, v%d' % (b, b))
            if du: A('v_fma_f32 v%d, v%d, s48, v%d' % (b, b, tMY))
            else: A('v_mul_f32 v%d, s48, v%d' % (b, b))
stamp(4)
B('''
s_cmp_eq_u32 s38, 1
s_cbranch_scc1 L_wB
s_waitcnt vmcnt(5)
L_wB:
s_waitcnt vmcnt(8)
s_barrier
''')
stamp(5)
for s in range(3):
    for half in range(2):
        imm = (s * 32 + half * 4) * 576
        A('ds_read_b64_tr_b16 %s, v%d offset:%d' % (q2(WR + s * 4 + half * 2), tTr, imm))
        A('ds_read_b64_tr_b16 %s, v%d offset:%d' % (q2(WV1 + s * 4 + half * 2), tTq, imm + 416))
for s in range(3):
    for half in range(2):
        imm = (s * 32 + half * 4) * 576
        A('ds_read_b64_tr_b16 %s, v%d offset:%d' % (q2(WQ + s * 4 + half * 2), tTq, imm))
        A('ds_read_b64_tr_b16 %s, v%d offset:%d' % (q2(WK + s * 4 + half * 2), tTq, imm + 192))
        A('ds_read_b64_tr_b16 %s, v%d offset:%d' % (q2(WV0 + s * 4 + half * 2), tTq, imm + 384))
for i in range(12):
    A('ds_bpermute_b32 v%d, v%d, v%d' % (WR + i, tBP, WR + i))
    A('ds_bpermute_b32 v%d, v%d, v%d' % (WV1 + i, tBP, WV1 + i))
for i in range(12):
    A('v_and_b32 v%d, v%d, v%d' % (WV1 + i, WV1 + i, tMask))
stamp(6)
B('''
s_waitcnt vmcnt(5)
ds_add_u32 v{vCnt}, v{vOne}
L_pollx:
ds_read_b32 v{tA}, v{vCnt}
s_waitcnt lgkmcnt(0)
v_readfirstlane_b32 s55, v{tA}
s_cmp_lt_u32 s55, 256
s_cbranch_scc1 L_pollx
s_mov_b32 s60, 256
''')
if PRIO:
    B('''
s_cmp_eq_u32 s38, 1
s_cbranch_scc1 L_noprio
s_setprio 1
L_noprio:
''')
A.fence()
stamp(7)
A('L_round:')

def xread(t):
    for s in range(3):
        A('ds_read_b128 %s, v%d offset:%d' % (q4(XF + (t & 1) * 12 + s * 4), vXr, (t * 3 + s) * 1024))
def proj_mfma(t):
    a = ACC + (t & 1) * 20; x = XF + (t & 1) * 12
    for s in range(3):
        mfma(a + 0, WQ + s * 4, x + s * 4, a + 0 if s else None)
        mfma(a + 4, WK + s * 4, x + s * 4, a + 4 if s else None)
        mfma(a + 8, WR + s * 4, x + s * 4, a + 8 if s else None)
        mfma(a + 12, x + s * 4, WV0 + s * 4, a + 12 if s else None)
        mfma(a + 16, x + s * 4, WV1 + s * 4, a + 16 if s else CV1)
def proj_cvt(t):
    a = ACC + (t & 1) * 20
    q = Qf + t * 4; k = Kf + t * 4
    pk(q + 0, a + 0, a + 1); pk(q + 1, a + 2, a + 3)
    pk(k + 0, a + 4, a + 5); pk(k + 1, a + 6, a + 7)
    pk(q + 2, a + 8, a + 9); pk(k + 2, a + 10, a + 11)
    for d in range(2):
        v = Vf + (d * 2 + (t >> 1)) * 4 + (t & 1) * 2
        pk(v + 0, a + 12 + d * 4, a + 13 + d * 4); pk(v + 1, a + 14 + d * 4, a + 15 + d * 4)

xread(0); xread(1)
proj_mfma(0)
proj_mfma(1); proj_cvt(0); xread(2)
proj_mfma(2); proj_cvt(1); xread(3)
proj_mfma(3); proj_cvt(2)
proj_cvt(3)
stamp(12)
B('''
s_waitcnt vmcnt(0)
ds_add_u32 v{vCnt}, v{vOne} offset:0
''') if False else None

def s_mfma(tq):
    s = S_ + (tq & 1) * 16
    for tk in range(4):
        du = (tq >> 1) - (tk >> 1); dt = (tq & 1) - (tk & 1)
        mfma(s + tk * 4, Kf + tk * 4, Qf + tq * 4, BIAS + ((du + 1) * 3 + dt + 1) * 4)
def sregs(tq):
    s = S_ + (tq & 1) * 16
    return [s + tk * 4 + r for tk in range(4) for r in range(4) if not ((tk & 1) and r == 3)]
def smax(tq):
    m = TMP + (tq & 1) * 4
    regs = sregs(tq)
    A('v_max3_f32 v%d, v%d, v%d, v%d' % (m, regs[0], regs[1], regs[2]))
    i = 3
    while i < len(regs):
        if i + 1 < len(regs):
            A('v_max3_f32 v%d, v%d, v%d, v%d' % (m, m, regs[i], regs[i + 1])); i += 2
        else:
            A('v_max_f32 v%d, v%d, v%d' % (m, m, regs[i])); i += 1
    A('ds_swizzle_b32 v%d, v%d offset:0x401F' % (m + 1, m))
    A('ds_bpermute_b32 v%d, v%d, v%d' % (m + 2, vB32, m))
    A('ds_bpermute_b32 v%d, v%d, v%d' % (m + 3, vB48, m))
def sexp(tq):
    s = S_ + (tq & 1) * 16; p = P_ + (tq & 1) * 8
    m = TMP + (tq & 1) * 4
    regs = sregs(tq)
    A('v_max_f32 v%d, v%d, v%d' % (m, m, m + 1))
    A('v_max3_f32 v%d, v%d, v%d, v%d' % (m, m, m + 2, m + 3))
    A('v_mul_f32 v%d, s43, v%d' % (m, m))
    for i, r in enumerate(regs):
        A('v_fma_f32 v%d, v%d, s43, -v%d' % (r, r, m))
        if i > 0: A('v_exp_f32 v%d, v%d' % (regs[i - 1], regs[i - 1]))
    A('v_exp_f32 v%d, v%d' % (regs[-1], regs[-1]))
    for tk in range(4):
        b = s + tk * 4
        pk(p + tk * 2, b, b + 1)
        pk(p + tk * 2 + 1, b + 2, None if (tk & 1) else b + 3)
def pv_mfma(tq):
    p = P_ + (tq & 1) * 8; o = O_ + (tq & 1) * 8
    for pp in range(2):
        for d in range(2):
            mfma(o + d * 4, Vf + (d * 2 + pp) * 4, p + pp * 4, o + d * 4 if pp else None)
def onorm(tq):
    o = O_ + (tq & 1) * 8
    b = TMP + 8; w = TMP + 12 + (tq & 1) * 4
    A('v_rcp_f32 v%d, v%d' % (b, o + 6))
    for i in range(6):
        A('v_mul_f32 v%d, v%d, v%d' % (o + i, o + i, b))
    for i in range(3):
        pk(w + i, o + 2 * i, o + 2 * i + 1)
    A('ds_write_b64 v%d, %s offset:%d' % (vOw0, q2(w), tq * 3072))
    A('ds_write_b32 v%d, v%d offset:%d' % (vOw1, w + 2, tq * 3072))

s_mfma(0)
for tq in range(4):
    if tq < 3: s_mfma(tq + 1)
    smax(tq)
    if tq > 0: onorm(tq - 1)
    sexp(tq)
    pv_mfma(tq)
    if tq == 1:
        B('s_cmp_eq_u32 s60, 512\ns_cbranch_scc1 L_skipw\ns_waitcnt vmcnt(0)\nL_skipw:')
        B('v_mov_b32 v{TMPD}, {L_CNT}'.replace('{TMPD}', str(TMP + 9)))
        A('ds_add_u32 v%d, v%d offset:16' % (TMP + 9, vOne))
onorm(3)
B('ds_add_u32 v{vCnt}, v{vOne} offset:4')
stamp(13)
B('''
v_mov_b32 v%d, {L_CNT}
L_pollo:
ds_read_b32 v%d, v{vCnt} offset:4
ds_read_b32 v%d, v%d offset:16
s_waitcnt lgkmcnt(0)
v_readfirstlane_b32 s55, v%d
v_readfirstlane_b32 s56, v%d
s_cmp_lt_u32 s55, s60
s_cbranch_scc1 L_pollo
s_cmp_lt_u32 s56, 512
s_cbranch_scc1 L_pollo
''' % (TMP + 9, TMP + 10, TMP + 11, TMP + 9, TMP + 10, TMP + 11))
stamp(14)
for s in range(3):
    A('ds_read_b128 %s, v%d offset:%d' % (q4(OF + s * 4), vOr, s * 1024))
for T in range(6):
    for s in range(3):
        for half in range(2):
            A('ds_read_b64_tr_b16 %s, v%d offset:%d' % (q2(WoF + (T * 3 + s) * 4 + half * 2), vTo, (8 * s + 4 * half) * 192 + T * 8))
for T in range(6):
    for s in range(3):
        mfma(OACC + T * 4, WoF + (T * 3 + s) * 4, OF + s * 4, OACC + T * 4 if s else None)
for j in range(3):
    for T in (2 * j, 2 * j + 1):
        pk(ST + T * 2, OACC + T * 4, OACC + T * 4 + 1); pk(ST + T * 2 + 1, OACC + T * 4 + 2, OACC + T * 4 + 3)
    A('buffer_store_dwordx4 %s, v%d, s[32:35], s41 offen offset:%d' % (q4(ST + j * 4), vSoff, j * 16))
stamp(15)
B('''
s_cmp_eq_u32 s60, 512
s_cbranch_scc1 L_fin
s_mov_b32 s60, 512
s_mov_b32 s41, s42
v_add_u32 v{vXr}, 24576, v{vXr}
v_subrev_u32 v{vOw0}, {L_OB}, v{vOw0}
v_subrev_u32 v{vOw1}, {L_OB}, v{vOw1}
v_subrev_u32 v{vOr}, {L_OB}, v{vOr}
''')
if STAMP: B('s_mov_b32 s72, s76\ns_mov_b32 s73, s77\ns_mov_b32 s74, s78\ns_mov_b32 s75, s79')
B('''
s_cmp_eq_u32 s40, 29
s_cbranch_scc0 L_nofix
''')
for du in (-1, 0, 1):
    for dt in (-1, 1):
        for r in range(4):
            b = BIAS + ((du + 1) * 3 + dt + 1) * 4 + r
            A('v_add_f32 v%d, %s, v%d' % (b, 's57' if du else 's49', b))
A('L_nofix:')
A.fence()
A('s_branch L_round')
A('L_fin:')
if STAMP:
    A('s_waitcnt vmcnt(0)')
    stamp(16); stamp(17, True)
if DBG:
    A('s_load_dwordx2 s[50:51], s[0:1], 56')
    A('s_waitcnt lgkmcnt(0)')
    A('s_mov_b32 s52, s50\ns_mov_b32 s53, s51\ns_mov_b32 s54, 256\ns_mov_b32 s55, 0x00020000')
    A('v_mov_b32 v1, 0')
    A('s_mov_b64 exec, 1')
    A('s_cmp_eq_u32 s36, 7')
    A('s_cbranch_scc0 L_end')
    A('s_mul_i32 s56, s2, 1286')
    A('s_lshr_b32 s56, s56, 16')
    A('s_mul_i32 s57, s56, 51')
    A('s_cmp_eq_u32 s57, s2')
    A('s_cbranch_scc0 L_end')
    A('s_mul_i32 s56, s56, 12')
    A('s_sub_u32 s57, s80, s65')
    A('v_mov_b32 v2, s64')
    A('v_mov_b32 v3, s81')
    A('v_mov_b32 v4, s57')
    A('buffer_store_dword v2, v1, s[52:55], s56 offen')
    A('buffer_store_dword v3, v1, s[52:55], s56 offen offset:4')
    A('buffer_store_dword v4, v1, s[52:55], s56 offen offset:8')
elif STAMP:
    A('s_load_dwordx2 s[50:51], s[0:1], 64')
    A('s_waitcnt lgkmcnt(0)')
    A('s_mov_b32 s52, s50\ns_mov_b32 s53, s51\ns_mov_b32 s54, 0x100000\ns_mov_b32 s55, 0x00020000')
    A('s_lshl_b32 s56, s2, 3\ns_add_u32 s56, s56, s36\ns_lshl_b32 s56, s56, 7')
    A('v_mov_b32 v1, 0')
    for i in range(18):
        A('v_mov_b32 v2, s%d' % (64 + i))
        A('buffer_store_dword v2, v1, s[52:55], s56 offen offset:%d' % (i * 4))
A('L_end:')
A('s_endpgm')
body = A.finalize()

hdr = open('standalone__window_attn_swin__vision.s.ref').read().split('\n')
hdr = [l for l in hdr if l.startswith(';') and '@launch' not in l]
out = '\n'.join(hdr) + '\n; @launch grid=(256,1,1) block=(512,1,1) lds=%d\n' % L_SIZE
out += '''.amdgcn_target "amdgcn-amd-amdhsa--gfx950"
.text
.globl standalone__window_attn_swin__vision_kernel
.p2align 8
.type standalone__window_attn_swin__vision_kernel,@function
standalone__window_attn_swin__vision_kernel:
''' + body + '''.section .rodata,"a"
.p2align 6
.amdhsa_kernel standalone__window_attn_swin__vision_kernel
  .amdhsa_next_free_vgpr 256
  .amdhsa_next_free_sgpr 96
  .amdhsa_accum_offset 256
  .amdhsa_group_segment_fixed_size 0
  .amdhsa_kernarg_size 72
  .amdhsa_user_sgpr_count 2
  .amdhsa_user_sgpr_kernarg_segment_ptr 1
  .amdhsa_system_sgpr_workgroup_id_x 1
.end_amdhsa_kernel
'''
dst = sys.argv[1]
open(dst, 'w').write(out)
print('instructions:', len(body.split('\n')), 'nop states:', A.nnops)
```

```python
import re
VR = re.compile(r'\bv\[(\d+):(\d+)\]|\bv(\d+)\b')
TRANS = ('v_exp_f32', 'v_rcp_f32', 'v_log_f32', 'v_rsq_f32', 'v_sqrt_f32')

def vregs(tok):
    out = []
    for m in VR.finditer(tok):
        if m.group(1) is not None:
            out += list(range(int(m.group(1)), int(m.group(2)) + 1))
        else:
            out.append(int(m.group(3)))
    return out

def split_ops(s):
    out, depth, cur = [], 0, ''
    for ch in s:
        if ch == '[': depth += 1
        if ch == ']': depth -= 1
        if ch == ',' and depth == 0:
            out.append(cur.strip()); cur = ''
        else:
            cur += ch
    if cur.strip(): out.append(cur.strip())
    return out

class Ins:
    __slots__ = ('text', 'op', 'kind', 'rd', 'wr', 'rdA', 'rdC', 'states', 'raw')
    def __init__(self, text):
        self.text = text
        self.raw = False
        t = text.split(';')[0].strip()
        parts = t.split(None, 1)
        self.op = parts[0] if parts else ''
        ops = split_ops(parts[1]) if len(parts) > 1 else []
        op = self.op
        self.rd, self.wr, self.rdA, self.rdC = set(), set(), set(), set()
        self.states = 1
        if op.endswith(':') or op.startswith('.') or op == '':
            self.kind = 'label'; self.states = 0
        elif op == 's_nop':
            self.kind = 'nop'; self.states = int(ops[0], 0) + 1
        elif op.startswith('v_mfma'):
            self.kind = 'mfma'
            self.wr = set(vregs(ops[0])); self.rdA = set(vregs(ops[1])) | set(vregs(ops[2])); self.rdC = set(vregs(ops[3]))
            self.rd = self.rdA | self.rdC
        elif op.startswith('v_permlane'):
            self.kind = 'perm'
            self.wr = set(vregs(ops[0])) | set(vregs(ops[1])); self.rd = set(self.wr)
        elif op.startswith('v_readfirstlane') or op.startswith('v_readlane'):
            self.kind = 'rdlane'; self.rd = set(vregs(ops[1]))
        elif op.startswith('v_cmp'):
            self.kind = 'valu'
            for o in ops[1:]: self.rd |= set(vregs(o))
        elif op.startswith('v_'):
            self.kind = 'trans' if op.replace('_e32', '').replace('_e64', '') in TRANS else 'valu'
            self.wr = set(vregs(ops[0]))
            for o in ops[1:]: self.rd |= set(vregs(o))
            if op.startswith('v_fmac') or op.startswith('v_pk_fmac'): self.rd |= self.wr
        elif op.startswith('ds_read') :
            self.kind = 'dsr'; self.wr = set(vregs(ops[0])); self.rd = set(vregs(ops[1]))
            if 'd16' in op: self.rd |= self.wr
        elif op.startswith('ds_bpermute') or op.startswith('ds_permute'):
            self.kind = 'dsr'; self.wr = set(vregs(ops[0])); self.rd = set(vregs(ops[1])) | set(vregs(ops[2]))
        elif op.startswith('ds_swizzle'):
            self.kind = 'dsr'; self.wr = set(vregs(ops[0])); self.rd = set(vregs(ops[1]))
        elif op.startswith('ds_add_rtn'):
            self.kind = 'dsr'; self.wr = set(vregs(ops[0])); self.rd = set(vregs(ops[1])) | set(vregs(ops[2]))
        elif op.startswith('ds_'):
            self.kind = 'dsw'
            for o in ops: self.rd |= set(vregs(o))
        elif op.startswith('buffer_load') and ' lds' in (' ' + t):
            self.kind = 'dma'; self.rd = set(vregs(ops[0]))
        elif op.startswith('buffer_load') or op.startswith('global_load'):
            self.kind = 'vld'; self.wr = set(vregs(ops[0])); self.rd = set(vregs(ops[1]))
        elif op.startswith('buffer_store') or op.startswith('global_store'):
            self.kind = 'vst'
            for o in ops[:2]: self.rd |= set(vregs(o))
        elif op.startswith('s_waitcnt'):
            self.kind = 'wait'
        else:
            self.kind = 'salu'

class Asm:
    def __init__(self):
        self.ins = []
        self.rawmode = False
    def __call__(self, text):
        for line in text.strip('\n').split('\n'):
            line = line.strip()
            if line:
                I = Ins(line); I.raw = self.rawmode
                self.ins.append(I)
    def fence(self):
        self('s_waitcnt lgkmcnt(0)'); self('s_nop 7'); self('s_nop 1')
    def finalize(self):
        out = []
        pos = 0
        lastw = {}
        lastC = {}
        lastst = {}
        lgkm = []
        nnops = 0
        for I in self.ins:
            if I.raw:
                out.append(I); continue
            need = 0
            def req(p, n):
                nonlocal need
                need = max(need, n - (pos - p - 1))
            touch = I.rd | I.wr
            idx = -1
            for j, d in enumerate(lgkm):
                if d & touch: idx = j
            if I.kind == 'wait' and 'lgkmcnt' in I.text:
                n = int(re.search(r'lgkmcnt\((\d+)\)', I.text).group(1))
                lgkm = lgkm[len(lgkm) - n:] if n < len(lgkm) else lgkm
                if n == 0: lgkm = []
            elif idx >= 0:
                n = len(lgkm) - 1 - idx
                n = min(n, 15)
                out.append(Ins('s_waitcnt lgkmcnt(%d)' % n)); pos += 1
                lgkm = lgkm[len(lgkm) - n:] if n > 0 else []
            for r in I.rd:
                if r in lastw:
                    p, k, D = lastw[r]
                    if k == 'mfma':
                        if I.kind == 'mfma':
                            if r in I.rdA: req(p, 8)
                            if r in I.rdC: req(p, 0 if I.rdC == D else 6)
                        else: req(p, 8)
                    elif k in ('valu', 'trans', 'perm'):
                        if I.kind == 'mfma': req(p, 2)
                        elif I.kind == 'perm': req(p, 2)
                        elif I.kind == 'rdlane': req(p, 1)
                        elif k == 'trans' and I.kind in ('valu',): req(p, 1)
                        elif k == 'trans' and I.kind in ('dsw', 'vst', 'dsr', 'dma', 'vld'): req(p, 1)
            for r in I.wr:
                if r in lastw:
                    p, k, D = lastw[r]
                    if k == 'mfma' and not (I.kind == 'mfma' and I.rdC == D and I.wr == D): req(p, 8)
                if r in lastC and I.kind in ('valu', 'trans', 'perm'): req(lastC[r], 3)
                if r in lastst: req(lastst[r], 2)
            if need > 0:
                nnops += need
                while need > 0:
                    n = min(need, 16)
                    out.append(Ins('s_nop %d' % (n - 1))); pos += n; need -= n
            out.append(I)
            p = pos
            pos += I.states
            for r in I.wr:
                lastw[r] = (p, I.kind, I.wr)
            if I.kind == 'mfma':
                for r in I.rdC: lastC[r] = p
            if I.kind == 'vst':
                for r in I.rd: lastst[r] = p
            if I.kind == 'dsr': lgkm.append(set(I.wr))
            if I.kind == 'dsw': lgkm.append(set())
        self.nnops = nnops
        return '\n'.join(('    ' + i.text) if i.kind != 'label' else i.text for i in out) + '\n'
```

```python
import struct, sys, math
from asmlib import Asm
def f32(x): return '0x%08x' % struct.unpack('<I', struct.pack('<f', x))[0]
SCALE = 24 ** -0.5
C_EXP = SCALE * math.log2(math.e)
INV = 24 ** 0.5
MASKV = -100.0 * INV
DBG = '--dbg' in sys.argv
STAMP = '--stamp' in sys.argv or DBG
PRIO = '--prio' in sys.argv
XNT = ' nt' if '--xnt' in sys.argv else ''
STM = ''
if '--stnt' in sys.argv: STM = ' nt'
if '--stsc' in sys.argv: STM = ' sc0 sc1'
if '--stsc1' in sys.argv: STM = ' sc1'

L_WQ, L_WO, L_X, L_OB = 0, 55296, 73728, 122880
L_CNT = 147456
L_RPB = 147712
L_SIZE = L_RPB + 2048

WQ, WK, WR, WV0, WV1 = 4, 16, 28, 40, 52
BIAS = 64
CV1 = 100
vXr, vOw0, vOw1, vOr, vTo, vSoff, vFl, vB32, vB48, vRnd, vFw = 104, 105, 106, 107, 108, 109, 110, 111, 112, 113, 114
Qf, Kf, Vf = 116, 132, 148
XF, ACC = 164, 188
SB = {}
early = [164, 168, 172, 188, 192, 196, 200, 204, 228]
late = [176, 180, 184, 208, 212, 216, 220]
i = 0
for tq in range(3):
    for tk in range(3):
        SB[(tq, tk)] = early[i]; i += 1
i = 0
for tq in range(3):
    SB[(tq, 3)] = late[i]; i += 1
for tk in range(4):
    SB[(3, tk)] = late[i]; i += 1
O_, M_, RCP = 232, 248, 252
WoF, OF, OACC, ST = 148, 220, 232, 148
PL = 232
PL1, PL2, PL3, PL4, PL5, PL6, PL7 = range(233, 240)
tL, tC, tG, tR, tCc, tTok, tXoff, tA, tB, tD, tE, tTq, tTr, tBP, tMask, tMY = 2, 3, 200, 201, 202, 203, 204, 205, 206, 207, 208, 209, 210, 211, 212, 213
def q4(b): return 'v[%d:%d]' % (b, b + 3)
def q2(b): return 'v[%d:%d]' % (b, b + 1)

A = Asm()
def stamp(i, real=False):
    if not STAMP: return
    A('s_waitcnt lgkmcnt(0)')
    A('%s s[62:63]' % ('s_memrealtime' if real else 's_memtime'))
    A('s_waitcnt lgkmcnt(0)')
    A('s_mov_b32 s%d, s62' % (64 + i))
def mfma(d, a, b, c): A('v_mfma_f32_16x16x32_bf16 %s, %s, %s, %s' % (q4(d), q4(a), q4(b), q4(c) if c is not None else '0'))
def pk(d, a, b): A('v_cvt_pk_bf16_f32 v%d, v%d, %s' % (d, a, ('v%d' % b) if b is not None else '0'))
class D(dict):
    def __missing__(self, k): return globals()[k]
def B(t): A(t.format_map(D()))

B('''
s_cmp_ge_u32 s2, 256
s_cbranch_scc1 L_end
''')
stamp(0, True); stamp(1)
B('''
s_load_dwordx8 s[4:11], s[0:1], 0
s_load_dwordx2 s[12:13], s[0:1], 48
v_and_b32 v{tD}, 63, v0
v_mov_b32 v{tE}, 0
v_lshlrev_b32 v{tD}, 2, v{tD}
v_add_u32 v{tD}, {L_CNT}, v{tD}
v_readfirstlane_b32 s36, v0
ds_write_b32 v{tD}, v{tE}
v_and_b32 v{tL}, 63, v0                  ; lane
v_and_b32 v{tC}, 15, v0                  ; c
v_bfe_u32 v{tG}, v0, 4, 2                ; g
v_lshlrev_b32 v{vXr}, 4, v{tL}           ; lane*16
s_lshr_b32 s36, s36, 6                ; wave
s_and_b32 s37, s36, 3                 ; h = t
s_lshr_b32 s38, s36, 2                ; grp
s_lshr_b32 s39, s2, 3                 ; wy
s_and_b32 s40, s2, 7
s_lshl_b32 s40, s40, 2                ; wx0
s_mul_i32 s44, s39, 7
s_lshr_b32 s45, s37, 1
s_lshl_b32 s45, s45, 2
s_add_u32 s44, s44, s45
s_add_u32 s44, s44, 3
s_sub_u32 s45, s44, 224
s_cmp_ge_u32 s44, 224
s_cselect_b32 s44, s45, s44           ; ybase
s_mul_i32 s44, s44, 43008
s_mul_i32 s45, s40, 7
s_and_b32 s46, s37, 1
s_lshl_b32 s46, s46, 2
s_add_u32 s45, s45, s46
s_add_u32 s45, s45, 3
s_add_u32 s46, s45, 21
s_sub_u32 s47, s46, 224
s_cmp_ge_u32 s46, 224
s_cselect_b32 s46, s47, s46
s_mul_i32 s45, s45, 192
s_mul_i32 s46, s46, 192
s_add_u32 s45, s44, s45
s_add_u32 s46, s44, s46
s_add_u32 s47, s45, 2688
s_mul_i32 s41, s38, 1344
s_add_u32 s41, s41, s45
s_cmp_eq_u32 s38, 0
s_cselect_b32 s42, s47, s46
s_add_u32 s40, s40, s38
v_lshrrev_b32 v{tR}, 2, v{tC}            ; c>>2
v_and_b32 v{tCc}, 3, v{tC}               ; c&3
v_mul_u32_u24 v{tTok}, 224, v{tR}
v_add_u32 v{tTok}, v{tTok}, v{tCc}
v_mul_u32_u24 v{tTok}, 192, v{tTok}
v_mul_u32_u24 v{tXoff}, 224, v{tG}
v_add_u32 v{tXoff}, v{tXoff}, v{tR}
v_mul_u32_u24 v{tXoff}, 192, v{tXoff}
v_and_b32 v{tB}, 2, v{tG}
v_xor_b32 v{tB}, v{tB}, v{tCc}
v_lshl_add_u32 v{tXoff}, v{tB}, 4, v{tXoff}
s_and_b32 s50, s37, 1
s_lshr_b32 s51, s37, 1
s_cmp_eq_u32 s50, 1
s_cselect_b32 s50, 3, 99
s_cmp_eq_u32 s51, 1
s_cselect_b32 s51, 3, 99
v_cmp_eq_u32 vcc, s50, v{tCc}
v_cmp_eq_u32 s[52:53], s51, v{tR}
v_cmp_eq_u32 s[58:59], s50, v{tR}
v_cmp_eq_u32 s[56:57], s51, v{tG}
s_or_b64 s[52:53], s[52:53], vcc
s_or_b64 s[58:59], s[58:59], s[56:57]
v_mul_u32_u24 v{tA}, 48, v{tG}
v_add_u32 v{vSoff}, v{tA}, v{tTok}
v_mov_b32 v{tA}, 0x80000000
v_cndmask_b32 v{tXoff}, v{tXoff}, v{tA}, s[58:59]
v_cndmask_b32 v{vSoff}, v{vSoff}, v{tA}, s[52:53]
s_mul_i32 s55, s37, 3072
s_add_u32 s61, s55, {L_X}
s_mul_i32 s54, s38, 12288
s_add_u32 s54, s54, s61
s_mul_i32 s51, s36, 7168
s_add_u32 s55, s51, 4096
s_mov_b32 s19, 0x00020000
s_mov_b32 s23, 0x00020000
s_mov_b32 s27, 0x00020000
s_mov_b32 s31, 0x00020000
s_mov_b32 s35, 0x00020000
s_mov_b32 s18, 9633792
s_mov_b32 s22, 55296
s_mov_b32 s26, 18432
s_mov_b32 s30, 1352
s_mov_b32 s34, 9633792
s_mov_b32 m0, {L_RPB}
s_waitcnt lgkmcnt(0)
s_barrier
s_mov_b32 s16, s4
s_mov_b32 s17, s5
s_mov_b32 s20, s6
s_mov_b32 s21, s7
s_mov_b32 s24, s8
s_mov_b32 s25, s9
s_mov_b32 s28, s10
s_mov_b32 s29, s11
s_mov_b32 s32, s12
s_mov_b32 s33, s13
s_cmp_eq_u32 s36, 0
s_cbranch_scc0 L_norpb
buffer_load_dwordx4 v{vXr}, s[28:31], 0 offen lds
buffer_load_dwordx4 v{vXr}, s[28:31], 0 offen offset:1024 lds
v_lshrrev_b32 v{tB}, 2, v{vXr}
s_nop 0
buffer_load_dword v{tB}, s[28:31], 0 offen offset:1344 lds
L_norpb:
s_cmp_eq_u32 s38, 1
s_cbranch_scc1 L_skipx0
''')
def xdma(lreg, off, sreg):
    B('''
s_add_u32 m0, %s, %d
s_nop 0
buffer_load_dwordx4 v{tXoff}, s[16:19], %s offen lds{XNT}
s_add_u32 m0, %s, %d
s_nop 0
buffer_load_dwordx4 v{tXoff}, s[16:19], %s offen offset:64 lds{XNT}
s_add_u32 m0, %s, %d
s_nop 0
buffer_load_dwordx4 v{tXoff}, s[16:19], %s offen offset:128 lds{XNT}
''' % (lreg, off, sreg, lreg, off + 960, sreg, lreg, off + 1920, sreg))
xdma('s54', 0, 's41')
B('''
L_skipx0:
s_mov_b32 m0, s51
s_nop 0
buffer_load_dwordx4 v{vXr}, s[20:23], s51 offen lds
buffer_load_dwordx4 v{vXr}, s[20:23], s51 offen offset:1024 lds
buffer_load_dwordx4 v{vXr}, s[20:23], s51 offen offset:2048 lds
buffer_load_dwordx4 v{vXr}, s[20:23], s51 offen offset:3072 lds
s_mov_b32 m0, s55
s_cmp_eq_u32 s36, 7
buffer_load_dwordx4 v{vXr}, s[20:23], s55 offen lds
s_cbranch_scc1 L_w7
buffer_load_dwordx4 v{vXr}, s[20:23], s55 offen offset:1024 lds
buffer_load_dwordx4 v{vXr}, s[20:23], s55 offen offset:2048 lds
s_branch L_w7e
L_w7:
s_mov_b32 m0, %d
s_mov_b32 s55, 16384
buffer_load_dwordx4 v{vXr}, s[24:27], s55 offen lds
buffer_load_dwordx4 v{vXr}, s[24:27], s55 offen offset:1024 lds
L_w7e:
s_cmp_eq_u32 s38, 0
s_cbranch_scc1 L_skipx1
''' % (L_WO + 16384))
xdma('s54', 0, 's41')
B('''
L_skipx1:
''')
stamp(2)
B('''
s_mov_b32 s43, %s                     ; c_exp
s_mov_b32 s48, %s                     ; 1/scale
s_mov_b32 s49, %s                     ; mask/scale
v_sub_u32 v{tA}, v{tR}, v{tG}
v_add_u32 v{tA}, 6, v{tA}
v_mul_u32_u24 v{tA}, 13, v{tA}
v_add_u32 v{tA}, v{tA}, v{tCc}
v_lshlrev_b32 v{tA}, 3, v{tA}
s_lshl_b32 s55, s37, 1
s_add_u32 s55, s55, 147288
v_add_u32 v{tA}, s55, v{tA}              ; bias gather base
s_cmp_eq_u32 s39, 31
s_cselect_b32 s56, s49, 0
s_cselect_b32 s57, 0, s49
v_mov_b32 v{tMY}, s56
; ext constants
v_mov_b32 v{tB}, 0x3f80
v_cmp_gt_u32 vcc, 16, v{tL}
v_lshrrev_b32 v{tD}, 2, v{tL}
v_mov_b32 v{tE}, 0xff00
v_cndmask_b32 v{q0}, 0, v{tB}, vcc
v_cndmask_b32 v{q1}, 0, v{tB}, vcc
v_cndmask_b32 v{q2_}, 0, v{tB}, vcc
v_cndmask_b32 v{q3}, 0, v{tB}, vcc
v_cmp_eq_u32 vcc, 3, v{tD}
v_mov_b32 v{k0}, 0
v_mov_b32 v{k1}, 0
v_cndmask_b32 v{k2}, 0, v{tE}, vcc
v_cndmask_b32 v{k3}, 0, v{tE}, vcc
; CV1 / mask
v_cmp_lt_u32 vcc, 1, v{tCc}
v_mov_b32 v{vRnd}, 1
s_nop 0
v_cndmask_b32 v100, 0, 1.0, vcc
v_cndmask_b32 v101, 0, 1.0, vcc
v_cndmask_b32 v102, 0, 1.0, vcc
v_cndmask_b32 v103, 0, 1.0, vcc
v_cmp_lt_u32 vcc, 7, v{tC}
s_nop 1
v_cndmask_b32 v{tMask}, -1, 0, vcc
; bpermute source lane for rem tiles: g*16 + 2*(c>>2) + (c&1) + ((c&2)?8:0)
v_and_b32 v{tB}, 1, v{tCc}
v_lshl_add_u32 v{tB}, v{tR}, 1, v{tB}
v_and_b32 v{tD}, 2, v{tCc}
v_lshl_add_u32 v{tB}, v{tD}, 2, v{tB}
v_lshl_add_u32 v{tB}, v{tG}, 4, v{tB}
v_lshlrev_b32 v{tBP}, 2, v{tB}
v_xor_b32 v{tB}, 32, v{tL}
v_lshlrev_b32 v{vB32}, 2, v{tB}
v_xor_b32 v{tB}, 48, v{tL}
v_lshlrev_b32 v{vB48}, 2, v{tB}
; tr-read addresses for wqkv
v_lshl_add_u32 v{tB}, v{tG}, 3, v{tR}
v_mul_u32_u24 v{tB}, 576, v{tB}
s_mul_i32 s55, s37, 48
v_add_u32 v{tB}, s55, v{tB}
v_lshl_add_u32 v{tTq}, v{tCc}, 3, v{tB}
v_and_b32 v{tTr}, 1, v{tCc}
v_lshl_add_u32 v{tTr}, v{tTr}, 3, v{tB}
v_lshrrev_b32 v{tD}, 1, v{tCc}
v_mul_u32_u24 v{tD}, 192, v{tD}
v_add3_u32 v{tTr}, v{tTr}, v{tD}, 32
; Wo tr-read base
s_mov_b32 s58, {L_WO}
v_mul_u32_u24 v{vTo}, 24, v{tG}
v_add_u32 v{vTo}, v{vTo}, v{tR}
v_mul_u32_u24 v{vTo}, 192, v{vTo}
v_mul_u32_u24 v{tD}, 48, v{tCc}
v_add3_u32 v{vTo}, v{vTo}, v{tD}, s58
; O write addresses
s_mul_i32 s55, s38, 12288
s_lshl_b32 s59, s37, 8
s_add_u32 s59, s55, s59
s_add_u32 s59, s59, {L_OB}            ; OB + grp*12288 + h*256
v_lshl_add_u32 v{tB}, v{tC}, 4, s59      ; + c*16
v_lshrrev_b32 v{tD}, 1, v{tG}
v_lshl_add_u32 v{vOw0}, v{tD}, 10, v{tB}
v_and_b32 v{tD}, 1, v{tG}
v_lshl_add_u32 v{vOw0}, v{tD}, 3, v{vOw0}
v_lshl_add_u32 v{vOw1}, v{tG}, 2, v{tB}
v_add_u32 v{vOw1}, 2048, v{vOw1}
s_mul_i32 s59, s37, 3072
s_add_u32 s59, s59, s55
s_add_u32 s59, s59, {L_OB}
v_add_u32 v{vOr}, s59, v{vXr}
; flags
s_add_u32 s55, s55, {L_X}
v_lshrrev_b32 v{tB}, 3, v{tC}
v_lshlrev_b32 v{tB}, 1, v{tB}
v_xor_b32 v{tB}, v{tB}, v{tG}
v_lshl_add_u32 v{tB}, v{tB}, 4, s55
v_lshl_add_u32 v{tE}, v{tC}, 6, v{tB}    ; x fragment read address
s_lshl_b32 s59, s38, 4
s_add_u32 s59, s59, {L_CNT}
v_mov_b32 v{vFl}, s59                 ; L_CNT + grp*16
s_lshl_b32 s58, s37, 2
s_add_u32 s59, s59, s58
v_mov_b32 v{vFw}, s59                 ; L_CNT + grp*16 + h*4 = L_CNT + wave*4
v_mov_b32 v{tD}, {L_CNT}
s_mov_b32 s60, 1                      ; round target
s_cmp_eq_u32 s36, 0
s_cbranch_scc0 L_pollr
s_waitcnt vmcnt(10)
ds_write_b32 v{tD}, v{vRnd} offset:96
L_pollr:
ds_read_b32 v{PL}, v{tD} offset:96
s_waitcnt lgkmcnt(0)
v_readfirstlane_b32 s55, v{PL}
s_cmp_lt_u32 s55, 1
s_cbranch_scc1 L_pollr
'''.replace('{q0}', str(Qf + 3)).replace('{q1}', str(Qf + 7)).replace('{q2_}', str(Qf + 11)).replace('{q3}', str(Qf + 15))
   .replace('{k0}', str(Kf + 3)).replace('{k1}', str(Kf + 7)).replace('{k2}', str(Kf + 11)).replace('{k3}', str(Kf + 15)) % (f32(C_EXP), f32(INV), f32(MASKV)))
stamp(3)
for du in (-1, 0, 1):
    for dt in (-1, 0, 1):
        for r in range(4):
            b = BIAS + ((du + 1) * 3 + dt + 1) * 4 + r
            A('ds_read_u16 v%d, v%d offset:%d' % (b, tA, (52 * du + 4 * dt - r + 59) * 8))
for du in (-1, 0, 1):
    for dt in (-1, 0, 1):
        for r in range(4):
            b = BIAS + ((du + 1) * 3 + dt + 1) * 4 + r
            A('v_lshlrev_b32 v%d, 16, v%d' % (b, b))
            if du: A('v_fma_f32 v%d, v%d, s48, v%d' % (b, b, tMY))
            else: A('v_mul_f32 v%d, s48, v%d' % (b, b))
stamp(4)
B('''
s_cmp_eq_u32 s38, 0
s_cbranch_scc1 L_A1
s_waitcnt vmcnt(3)
ds_write_b32 v{vFw}, v{vRnd}
s_lshl_b32 s59, s37, 12
s_add_u32 m0, s59, {L_WO}
s_nop 0
buffer_load_dwordx4 v{vXr}, s[24:27], s59 offen lds
buffer_load_dwordx4 v{vXr}, s[24:27], s59 offen offset:1024 lds
buffer_load_dwordx4 v{vXr}, s[24:27], s59 offen offset:2048 lds
buffer_load_dwordx4 v{vXr}, s[24:27], s59 offen offset:3072 lds
''')
xdma('s61', 24576, 's47')
xdma('s61', 36864, 's46')
B('''
s_branch L_pollw
L_A1:
s_waitcnt vmcnt(0)
ds_write_b32 v{vFw}, v{vRnd}
L_pollw:
ds_read_b128 v[{PL}:{PL3}], v{tD}
ds_read_b128 v[{PL4}:{PL7}], v{tD} offset:16
s_waitcnt lgkmcnt(0)
v_min3_u32 v{PL}, v{PL}, v{PL1}, v{PL2}
v_min3_u32 v{PL}, v{PL}, v{PL3}, v{PL4}
v_min3_u32 v{PL}, v{PL}, v{PL5}, v{PL6}
v_min_u32 v{PL}, v{PL}, v{PL7}
s_nop 0
v_readfirstlane_b32 s55, v{PL}
s_cmp_lt_u32 s55, 1
s_cbranch_scc1 L_pollw
v_mov_b32 v{vXr}, v{tE}
''')
stamp(5)
def wtr(base, addr, extra):
    for s in range(3):
        for half in range(2):
            imm = (s * 32 + half * 4) * 576
            A('ds_read_b64_tr_b16 %s, v%d offset:%d' % (q2(base + s * 4 + half * 2), addr, imm + extra))
wtr(WV1, tTq, 416); wtr(WR, tTr, 0); wtr(WQ, tTq, 0); wtr(WK, tTq, 192); wtr(WV0, tTq, 384)
A.rawmode = True
B('''
s_cmp_eq_u32 s38, 0
s_cbranch_scc1 L_goA
s_waitcnt vmcnt(10)
ds_write_b32 v{vFw}, v{vRnd} offset:16
L_pollx:
ds_read_b128 v[{PL}:{PL3}], v{tD} offset:32
s_waitcnt lgkmcnt(0)
v_min3_u32 v{PL}, v{PL}, v{PL1}, v{PL2}
v_min_u32 v{PL}, v{PL}, v{PL3}
s_nop 0
v_readfirstlane_b32 s55, v{PL}
s_cmp_lt_u32 s55, 1
s_cbranch_scc1 L_pollx
s_branch L_go
L_goA:
''')
if PRIO: A('s_setprio 1')
A('L_go:')
A.rawmode = False
stamp(6); stamp(7)
def xread(t):
    for s in range(3):
        A('ds_read_b128 %s, v%d offset:%d' % (q4(XF + (t & 1) * 12 + s * 4), vXr, (t * 3 + s) * 1024))
xread(0); xread(1)
for i in range(12):
    A('v_and_b32 v%d, v%d, v%d' % (WV1 + i, WV1 + i, tMask))
for i in range(12):
    A('ds_bpermute_b32 v%d, v%d, v%d' % (WR + i, tBP, WR + i))
for i in range(12):
    A('ds_bpermute_b32 v%d, v%d, v%d' % (WV1 + i, tBP, WV1 + i))
A('L_round:')

def proj_mfma(t):
    a = ACC + (t & 1) * 20; x = XF + (t & 1) * 12
    if t == 0:
        for s in range(3):
            mfma(a + 0, WQ + s * 4, x + s * 4, a + 0 if s else None)
            mfma(a + 4, WK + s * 4, x + s * 4, a + 4 if s else None)
            mfma(a + 12, x + s * 4, WV0 + s * 4, a + 12 if s else None)
        for s in range(3):
            mfma(a + 8, WR + s * 4, x + s * 4, a + 8 if s else None)
            mfma(a + 16, x + s * 4, WV1 + s * 4, a + 16 if s else CV1)
        return
    for s in range(3):
        mfma(a + 0, WQ + s * 4, x + s * 4, a + 0 if s else None)
        mfma(a + 4, WK + s * 4, x + s * 4, a + 4 if s else None)
        mfma(a + 8, WR + s * 4, x + s * 4, a + 8 if s else None)
        mfma(a + 12, x + s * 4, WV0 + s * 4, a + 12 if s else None)
        mfma(a + 16, x + s * 4, WV1 + s * 4, a + 16 if s else CV1)
def proj_cvt(t):
    a = ACC + (t & 1) * 20
    q = Qf + t * 4; k = Kf + t * 4
    pk(q + 0, a + 0, a + 1); pk(q + 1, a + 2, a + 3)
    pk(k + 0, a + 4, a + 5); pk(k + 1, a + 6, a + 7)
    pk(q + 2, a + 8, a + 9); pk(k + 2, a + 10, a + 11)
    for d in range(2):
        v = Vf + (d * 2 + (t >> 1)) * 4 + (t & 1) * 2
        pk(v + 0, a + 12 + d * 4, a + 13 + d * 4); pk(v + 1, a + 14 + d * 4, a + 15 + d * 4)
def s_mfma(tq, tk):
    du = (tq >> 1) - (tk >> 1); dt = (tq & 1) - (tk & 1)
    mfma(SB[(tq, tk)], Kf + tk * 4, Qf + tq * 4, BIAS + ((du + 1) * 3 + dt + 1) * 4)
def sregs(tq):
    return [SB[(tq, tk)] + r for tk in range(4) for r in range(4) if not ((tk & 1) and r == 3)]
def smax(tq):
    m = M_ + tq; x = Qf + tq * 4
    regs = sregs(tq)
    A('v_max3_f32 v%d, v%d, v%d, v%d' % (m, regs[0], regs[1], regs[2]))
    i = 3
    while i < len(regs):
        if i + 1 < len(regs):
            A('v_max3_f32 v%d, v%d, v%d, v%d' % (m, m, regs[i], regs[i + 1])); i += 2
        else:
            A('v_max_f32 v%d, v%d, v%d' % (m, m, regs[i])); i += 1
    A('ds_swizzle_b32 v%d, v%d offset:0x401F' % (x, m))
    A('ds_bpermute_b32 v%d, v%d, v%d' % (x + 1, vB32, m))
    A('ds_bpermute_b32 v%d, v%d, v%d' % (x + 2, vB48, m))
def sexp(tq):
    m = M_ + tq; x = Qf + tq * 4
    regs = sregs(tq)
    A('v_max_f32 v%d, v%d, v%d' % (m, m, x))
    A('v_max3_f32 v%d, v%d, v%d, v%d' % (m, m, x + 1, x + 2))
    A('v_mul_f32 v%d, s43, v%d' % (m, m))
    for i, r in enumerate(regs):
        A('v_fma_f32 v%d, v%d, s43, -v%d' % (r, r, m))
        if i > 0: A('v_exp_f32 v%d, v%d' % (regs[i - 1], regs[i - 1]))
    A('v_exp_f32 v%d, v%d' % (regs[-1], regs[-1]))
    for pp in range(2):
        b0 = SB[(tq, 2 * pp)]; b1 = SB[(tq, 2 * pp + 1)]
        pk(b0, b0, b0 + 1); pk(b0 + 1, b0 + 2, b0 + 3)
        pk(b0 + 2, b1, b1 + 1); pk(b0 + 3, b1 + 2, None)
def pv_mfma(tq):
    o = O_ + (tq & 1) * 8
    for pp in range(2):
        for d in range(2):
            mfma(o + d * 4, Vf + (d * 2 + pp) * 4, SB[(tq, 2 * pp)], o + d * 4 if pp else None)
def onorm(tq):
    o = O_ + (tq & 1) * 8
    b = RCP; w = Kf + tq * 4
    A('v_rcp_f32 v%d, v%d' % (b, o + 6))
    for i in range(6):
        A('v_mul_f32 v%d, v%d, v%d' % (o + i, o + i, b))
    for i in range(3):
        pk(w + i, o + 2 * i, o + 2 * i + 1)
    A('ds_write_b64 v%d, %s offset:%d' % (vOw0, q2(w), tq * 3072))
    A('ds_write_b32 v%d, v%d offset:%d' % (vOw1, w + 2, tq * 3072))
def woread(T):
    for s in range(3):
        for half in range(2):
            A('ds_read_b64_tr_b16 %s, v%d offset:%d' % (q2(WoF + (T * 3 + s) * 4 + half * 2), vTo, (8 * s + 4 * half) * 192 + T * 8))

proj_mfma(0)
proj_mfma(1); proj_cvt(0); xread(2)
proj_mfma(2); proj_cvt(1); xread(3)
proj_mfma(3); proj_cvt(2)
for tq in range(3):
    for tk in range(3):
        s_mfma(tq, tk)
proj_cvt(3)
stamp(12)
for tq in range(3): s_mfma(tq, 3)
for tk in range(4): s_mfma(3, tk)
B('''
s_cmp_eq_u32 s38, s60
s_cbranch_scc0 L_skipw
s_waitcnt vmcnt(0)
L_skipw:
''')
A('v_mov_b32 v%d, 2' % RCP)
B('s_cmp_eq_u32 s38, 0\ns_cselect_b32 s55, 112, 32')
A('v_add_u32 v%d, s55, v%d' % (RCP + 1, vFw))
A('ds_write_b32 v%d, v%d' % (RCP + 1, RCP))
for tq in range(4): smax(tq)
sexp(0); pv_mfma(0)
sexp(1); pv_mfma(1); onorm(0)
sexp(2); pv_mfma(2); onorm(1)
sexp(3); pv_mfma(3); onorm(2)
B('''
v_mov_b32 v{RCP}, {L_CNT}
L_polld:
ds_read_b128 v[{P0}:{P3}], v{RCP} offset:48
s_waitcnt lgkmcnt(0)
v_min3_u32 v{P0}, v{P0}, v{P1}, v{P2}
v_min_u32 v{P0}, v{P0}, v{P3}
s_nop 0
v_readfirstlane_b32 s55, v{P0}
s_cmp_lt_u32 s55, 2
s_cbranch_scc1 L_polld
'''.replace('{P0}', str(O_)).replace('{P1}', str(O_ + 1)).replace('{P2}', str(O_ + 2)).replace('{P3}', str(O_ + 3)))
woread(0); woread(1)
onorm(3)
B('ds_write_b32 v{vFw}, v{vRnd} offset:64')
woread(2); woread(3); woread(4); woread(5)
stamp(13)
B('''
L_pollo:
ds_read_b128 v[{P0}:{P3}], v{vFl} offset:64
s_waitcnt lgkmcnt(0)
v_min3_u32 v{P0}, v{P0}, v{P1}, v{P2}
v_min_u32 v{P0}, v{P0}, v{P3}
s_nop 0
v_readfirstlane_b32 s55, v{P0}
s_cmp_lt_u32 s55, s60
s_cbranch_scc1 L_pollo
'''.replace('{P0}', str(PL)).replace('{P1}', str(PL + 1)).replace('{P2}', str(PL + 2)).replace('{P3}', str(PL + 3)))
stamp(14)
for s in range(3):
    A('ds_read_b128 %s, v%d offset:%d' % (q4(OF + s * 4), vOr, s * 1024))
for T in range(6):
    for s in range(3):
        mfma(OACC + T * 4, WoF + (T * 3 + s) * 4, OF + s * 4, OACC + T * 4 if s else None)
B('v_add_u32 v{vXr}, 24576, v{vXr}')
xread(0); xread(1)
for j in range(3):
    for T in (2 * j, 2 * j + 1):
        pk(ST + T * 2, OACC + T * 4, OACC + T * 4 + 1); pk(ST + T * 2 + 1, OACC + T * 4 + 2, OACC + T * 4 + 3)
    A('buffer_store_dwordx4 %s, v%d, s[32:35], s41 offen offset:%d%s' % (q4(ST + j * 4), vSoff, j * 16, STM))
stamp(15)
B('''
s_cmp_eq_u32 s60, 2
s_cbranch_scc1 L_fin
s_mov_b32 s60, 2
s_mov_b32 s41, s42
v_mov_b32 v{vRnd}, 2
v_subrev_u32 v{vOw0}, {L_OB}, v{vOw0}
v_subrev_u32 v{vOw1}, {L_OB}, v{vOw1}
v_subrev_u32 v{vOr}, {L_OB}, v{vOr}
''')
if STAMP: B('s_mov_b32 s72, s76\ns_mov_b32 s73, s77\ns_mov_b32 s74, s78\ns_mov_b32 s75, s79')
B('''
s_cmp_eq_u32 s40, 29
s_cbranch_scc0 L_nofix
''')
for du in (-1, 0, 1):
    for dt in (-1, 1):
        for r in range(4):
            b = BIAS + ((du + 1) * 3 + dt + 1) * 4 + r
            A('v_add_f32 v%d, %s, v%d' % (b, 's57' if du else 's49', b))
A('L_nofix:')
A.fence()
A('s_branch L_round')
A('L_fin:')
if STAMP:
    A('s_waitcnt vmcnt(0)')
    stamp(16); stamp(17, True)
if DBG:
    A('s_load_dwordx2 s[50:51], s[0:1], 56')
    A('s_waitcnt lgkmcnt(0)')
    A('s_mov_b32 s52, s50\ns_mov_b32 s53, s51\ns_mov_b32 s54, 256\ns_mov_b32 s55, 0x00020000')
    A('v_mov_b32 v1, 0')
    A('s_mov_b64 exec, 1')
    A('s_and_b32 s56, s36, 3')
    A('s_cmp_eq_u32 s56, 1')
    A('s_cbranch_scc0 L_end')
    A('s_cmp_eq_u32 s2, 100')
    A('s_cbranch_scc0 L_end')
    A('s_lshl_b32 s56, s38, 5')
    for j, i in enumerate([2, 5, 7, 8, 9, 11, 15, 16]):
        A('s_sub_u32 s57, s%d, s65' % (64 + i))
        A('v_mov_b32 v%d, s57' % (6 + j))
        A('buffer_store_dword v%d, v1, s[52:55], s56 offen offset:%d' % (6 + j, j * 4))
elif STAMP:
    A('s_load_dwordx2 s[50:51], s[0:1], 64')
    A('s_waitcnt lgkmcnt(0)')
    A('s_mov_b32 s52, s50\ns_mov_b32 s53, s51\ns_mov_b32 s54, 0x100000\ns_mov_b32 s55, 0x00020000')
    A('s_lshl_b32 s56, s2, 3\ns_add_u32 s56, s56, s36\ns_lshl_b32 s56, s56, 7')
    A('v_mov_b32 v1, 0')
    for i in range(18):
        A('v_mov_b32 v2, s%d' % (64 + i))
        A('buffer_store_dword v2, v1, s[52:55], s56 offen offset:%d' % (i * 4))
A('L_end:')
A('s_endpgm')
body = A.finalize()

hdr = open('standalone__window_attn_swin__vision.s.ref').read().split('\n')
hdr = [l for l in hdr if l.startswith(';') and '@launch' not in l]
out = '\n'.join(hdr) + '\n; @launch grid=(256,1,1) block=(512,1,1) lds=%d\n' % L_SIZE
out += '''.amdgcn_target "amdgcn-amd-amdhsa--gfx950"
.text
.globl standalone__window_attn_swin__vision_kernel
.p2align 8
.type standalone__window_attn_swin__vision_kernel,@function
standalone__window_attn_swin__vision_kernel:
''' + body + '''.section .rodata,"a"
.p2align 6
.amdhsa_kernel standalone__window_attn_swin__vision_kernel
  .amdhsa_next_free_vgpr 256
  .amdhsa_next_free_sgpr 96
  .amdhsa_accum_offset 256
  .amdhsa_group_segment_fixed_size 0
  .amdhsa_kernarg_size 72
  .amdhsa_user_sgpr_count 2
  .amdhsa_user_sgpr_kernarg_segment_ptr 1
  .amdhsa_system_sgpr_workgroup_id_x 1
.end_amdhsa_kernel
'''
dst = sys.argv[1]
open(dst, 'w').write(out)
print('instructions:', len(body.split('\n')), 'nop states:', A.nnops)
```

```python
import struct, sys, math
from asmlib import Asm
def f32(x): return '0x%08x' % struct.unpack('<I', struct.pack('<f', x))[0]
SCALE = 24 ** -0.5
C_EXP = SCALE * math.log2(math.e)
INV = 24 ** 0.5
MASKV = -100.0 * INV
DBG = '--dbg' in sys.argv
STAMP = '--stamp' in sys.argv or DBG
PRIO = '--prio' in sys.argv
XNT = '' if '--noxnt' in sys.argv else ' nt'
STM = ''
if '--stnt' in sys.argv: STM = ' nt'
if '--stsc' in sys.argv: STM = ' sc0 sc1'
if '--stsc1' in sys.argv: STM = ' sc1'

L_WQ, L_WO, L_X, L_OB = 0, 55296, 73728, 122880
L_CNT = 147456
L_RPB = 147712
L_SIZE = L_RPB + 3072

WQ, WK, WR, WV0, WV1 = 4, 16, 28, 40, 52
BIAS = 64
CV1 = 100
vXr, vOw0, vOw1, vOr, vTo, vSoff, vFl, vB32, vB48, vRnd, vFw = 104, 105, 106, 107, 108, 109, 110, 111, 112, 113, 114
Qf, Kf, Vf = 116, 132, 148
XF, ACC = 164, 188
SB = {}
early = [164, 168, 172, 188, 192, 196, 200, 204, 228]
late = [176, 180, 184, 208, 212, 216, 220]
i = 0
for tq in range(3):
    for tk in range(3):
        SB[(tq, tk)] = early[i]; i += 1
i = 0
for tq in range(3):
    SB[(tq, 3)] = late[i]; i += 1
for tk in range(4):
    SB[(3, tk)] = late[i]; i += 1
O_, M_, RCP = 232, 248, 252
WoF, OF, OACC, ST = 148, 220, 232, 148
PL = 232
PL1, PL2, PL3, PL4, PL5, PL6, PL7 = range(233, 240)
tL, tC, tG, tR, tCc, tTok, tXoff, tA, tB, tD, tE, tTq, tTr, tBP, tMask, vL16 = 214, 215, 200, 201, 202, 203, 3, 205, 206, 216, 208, 209, 210, 211, 212, 2
def q4(b): return 'v[%d:%d]' % (b, b + 3)
def q2(b): return 'v[%d:%d]' % (b, b + 1)

A = Asm()
def stamp(i, real=False):
    if not STAMP: return
    A('s_waitcnt lgkmcnt(0)')
    A('%s s[62:63]' % ('s_memrealtime' if real else 's_memtime'))
    A('s_waitcnt lgkmcnt(0)')
    A('s_mov_b32 s%d, s62' % (64 + i))
def mfma(d, a, b, c): A('v_mfma_f32_16x16x32_bf16 %s, %s, %s, %s' % (q4(d), q4(a), q4(b), q4(c) if c is not None else '0'))
def pk(d, a, b): A('v_cvt_pk_bf16_f32 v%d, v%d, %s' % (d, a, ('v%d' % b) if b is not None else '0'))
class D(dict):
    def __missing__(self, k): return globals()[k]
def B(t): A(t.format_map(D()))


B('''
s_cmp_ge_u32 s2, 256
s_cbranch_scc1 L_end
''')
stamp(0, True); stamp(1)
B('''
s_load_dwordx8 s[4:11], s[0:1], 0
s_load_dwordx2 s[12:13], s[0:1], 48
v_and_b32 v{tL}, 63, v0                  ; lane
v_readfirstlane_b32 s36, v0
v_cmp_eq_u32 vcc, 7, v{tL}
v_lshlrev_b32 v{tD}, 2, v{tL}
v_add_u32 v{tD}, {L_CNT}, v{tD}
v_cndmask_b32 v{tE}, 0, 1, vcc
v_bfe_u32 v{tG}, v0, 4, 2                ; g
v_bfe_u32 v{tR}, v0, 2, 2                ; c>>2
v_and_b32 v{tCc}, 3, v0                  ; c&3
ds_write_b32 v{tD}, v{tE}             ; zero the flags (word 7 preset to 1)
v_lshlrev_b32 v{vL16}, 4, v{tL}          ; lane*16
s_lshr_b32 s36, s36, 6                ; wave
s_and_b32 s37, s36, 3                 ; h = t
s_lshr_b32 s38, s36, 2                ; grp
s_lshr_b32 s39, s2, 3                 ; wy
s_and_b32 s40, s2, 7
s_mul_i32 s44, s39, 7
s_lshr_b32 s51, s37, 1
s_lshl_b32 s45, s51, 2
s_add_u32 s44, s44, s45
s_add_u32 s44, s44, 3
s_sub_u32 s45, s44, 224
s_cmp_ge_u32 s44, 224
s_cselect_b32 s44, s45, s44           ; ybase
s_mul_i32 s44, s44, 43008
s_mul_i32 s45, s40, 28
s_and_b32 s50, s37, 1
s_lshl_b32 s46, s50, 2
s_add_u32 s45, s45, s46
s_add_u32 s46, s45, 3                 ; xbase window 0 of WG
s_mul_i32 s45, s46, 192
s_add_u32 s45, s44, s45               ; soff window 0
; dma mapping: token rho = lane>>2 : row = g, col = tR ; chunk = (lane&3) ^ ((g>>1)<<1)
v_mul_u32_u24 v{tXoff}, 224, v{tG}
v_add_u32 v{tXoff}, v{tXoff}, v{tR}
v_mul_u32_u24 v{tXoff}, 192, v{tXoff}
v_and_b32 v{tB}, 2, v{tG}
v_xor_b32 v{tB}, v{tB}, v{tCc}
v_lshl_add_u32 v{tXoff}, v{tB}, 4, v{tXoff}
s_cmp_eq_u32 s50, 1
s_cselect_b32 s50, 3, 99
s_cmp_eq_u32 s51, 1
s_cselect_b32 s51, 3, 99
v_cmp_eq_u32 s[58:59], s50, v{tR}
v_cmp_eq_u32 s[56:57], s51, v{tG}
v_mov_b32 v{tA}, 0x80000000
s_mov_b32 s19, 0x00020000
s_mov_b32 s23, 0x00020000
s_mov_b32 s18, 9633792
s_mov_b32 s22, 55296
s_or_b64 s[58:59], s[58:59], s[56:57] ; invalid lanes (dma mapping)
s_mul_i32 s55, s37, 3072
s_add_u32 s61, s55, {L_X}             ; lds addr of x(win 0, tile t)
v_cndmask_b32 v{tXoff}, v{tXoff}, v{tA}, s[58:59]
s_mul_i32 s62, s37, 14336
s_mov_b32 s27, 0x00020000
s_mov_b32 s26, 18432
s_mov_b32 s31, 0x00020000
s_mov_b32 s30, 1352
s_add_u32 s63, s45, 1344              ; soff window 1
s_lshl_b32 s55, s37, 9
s_sub_u32 s55, s55, 128
v_lshl_add_u32 v{tB}, v{tL}, 3, s55   ; rpb rows: wave 4+i lane l -> j = 64 i + l, idx = j - 16
s_waitcnt lgkmcnt(0)
s_barrier
s_mov_b32 s16, s4
s_mov_b32 s17, s5
s_mov_b32 s20, s6
s_mov_b32 s21, s7
s_mov_b32 s24, s8
s_mov_b32 s25, s9
s_mov_b32 s28, s10
s_mov_b32 s29, s11
'''.replace('s62', 's14').replace('s63', 's15'))
def xdma_l(lreg, off, sreg):
    return ['s_add_u32 m0, %s, %d\ns_nop 0\nbuffer_load_dwordx4 v{tXoff}, s[16:19], %s offen offset:%d{XNT} lds' % (lreg, off + i * 960, sreg, i * 64) for i in range(3)]
def xdma(lreg, off, sreg):
    for l in xdma_l(lreg, off, sreg): B(l)
dmaA = ['buffer_load_dwordx2 v[{PL}:{PL1}], v{tB}, s[28:31], 0 offen']
for blk in range(3):
    dmaA.append('s_mov_b32 m0, s14\ns_nop 0\nbuffer_load_dwordx4 v{vL16}, s[20:23], s14 offen lds')
    dmaA.append('buffer_load_dwordx4 v{vL16}, s[20:23], s14 offen offset:1024 lds')
    dmaA.append('buffer_load_dwordx4 v{vL16}, s[20:23], s14 offen offset:2048 lds')
    dmaA.append('buffer_load_dwordx4 v{vL16}, s[20:23], s14 offen offset:3072 lds\ns_add_u32 s14, s14, 4096')
dmaA.append('''s_mov_b32 m0, s14
s_cmp_eq_u32 s37, 3
s_cbranch_scc1 L_w3
buffer_load_dwordx4 v{vL16}, s[20:23], s14 offen lds
buffer_load_dwordx4 v{vL16}, s[20:23], s14 offen offset:1024 lds
s_branch L_w3e
L_w3:
s_mov_b32 m0, %d
s_mov_b32 s14, 16384
buffer_load_dwordx4 v{vL16}, s[24:27], s14 offen lds
buffer_load_dwordx4 v{vL16}, s[24:27], s14 offen offset:1024 lds
L_w3e:''' % (L_WO + 16384))
dmaA += xdma_l('s61', 0, 's45')
dmaA += xdma_l('s61', 12288, 's15')

setup = '''
v_and_b32 v{tC}, 15, v0                  ; c
s_mov_b32 s35, 0x00020000
s_mov_b32 s34, 9633792
s_mov_b32 s32, s12
s_mov_b32 s33, s13
s_add_u32 s46, s46, 21                ; xbase window 3
s_sub_u32 s47, s46, 224
s_cmp_ge_u32 s46, 224|s_cselect_b32 s46, s47, s46
s_mul_i32 s46, s46, 192
s_add_u32 s46, s44, s46               ; soff window 3
s_add_u32 s47, s45, 2688              ; soff window 2
s_mul_i32 s41, s38, 1344
s_add_u32 s41, s41, s45               ; soff my round 0
s_cmp_eq_u32 s38, 0|s_cselect_b32 s42, s47, s46           ; soff my round 1
s_lshl_b32 s40, s40, 2
s_add_u32 s40, s40, s38               ; wx of round 0
v_mul_u32_u24 v{tTok}, 224, v{tR}
v_add_u32 v{tTok}, v{tTok}, v{tCc}
v_mul_u32_u24 v{tTok}, 192, v{tTok}      ; tokoff (store mapping: token = c)
v_cmp_eq_u32 vcc, s50, v{tCc}
v_cmp_eq_u32 s[52:53], s51, v{tR}
v_mul_u32_u24 v{tD}, 48, v{tG}
v_add_u32 v{vSoff}, v{tD}, v{tTok}
s_mov_b32 s43, %s                     ; c_exp
s_mov_b32 s48, %s                     ; 1/scale
s_mov_b32 s49, %s                     ; mask/scale
s_or_b64 s[52:53], s[52:53], vcc      ; invalid lanes (store mapping)
v_cndmask_b32 v{vSoff}, v{vSoff}, v{tA}, s[52:53]
v_sub_u32 v{tA}, v{tR}, v{tG}
v_add_u32 v{tA}, 6, v{tA}
v_mul_u32_u24 v{tA}, 13, v{tA}
v_add_u32 v{tA}, v{tA}, v{tCc}
s_mul_i32 s55, s37, 768
s_add_u32 s55, s55, %d
v_lshl_add_u32 v{tA}, v{tA}, 2, s55      ; bias gather base
s_cmp_eq_u32 s39, 31|s_cselect_b32 s57, 0, s49
v_mov_b32 v{tB}, 0x3f80
v_cmp_gt_u32 vcc, 16, v{tL}
v_lshrrev_b32 v{tD}, 2, v{tL}
v_mov_b32 v{tE}, 0xff00
v_cndmask_b32 v{q0}, 0, v{tB}, vcc
v_cndmask_b32 v{q1}, 0, v{tB}, vcc
v_cndmask_b32 v{q2_}, 0, v{tB}, vcc
v_cndmask_b32 v{q3}, 0, v{tB}, vcc
v_cmp_eq_u32 vcc, 3, v{tD}
v_mov_b32 v{k0}, 0
v_mov_b32 v{k1}, 0
v_cndmask_b32 v{k2}, 0, v{tE}, vcc
v_cndmask_b32 v{k3}, 0, v{tE}, vcc
v_cmp_lt_u32 vcc, 1, v{tCc}
v_cmp_lt_u32 s[58:59], 7, v{tC}
v_mov_b32 v{vRnd}, 1
v_xor_b32 v{tB}, 32, v{tL}
v_cndmask_b32 v100, 0, 1.0, vcc
v_cndmask_b32 v101, 0, 1.0, vcc
v_cndmask_b32 v102, 0, 1.0, vcc
v_cndmask_b32 v103, 0, 1.0, vcc
v_cndmask_b32 v{tMask}, -1, 0, s[58:59]
v_lshlrev_b32 v{vB32}, 2, v{tB}
v_xor_b32 v{tB}, 48, v{tL}
v_lshlrev_b32 v{vB48}, 2, v{tB}
v_and_b32 v{tB}, 1, v{tCc}
v_lshl_add_u32 v{tB}, v{tR}, 1, v{tB}
v_and_b32 v{tD}, 2, v{tCc}
v_lshl_add_u32 v{tB}, v{tD}, 2, v{tB}
v_lshl_add_u32 v{tB}, v{tG}, 4, v{tB}
v_lshlrev_b32 v{tBP}, 2, v{tB}
v_lshl_add_u32 v{tB}, v{tG}, 3, v{tR}
v_mul_u32_u24 v{tB}, 576, v{tB}
s_mul_i32 s55, s37, 48
v_add_u32 v{tB}, s55, v{tB}
v_lshl_add_u32 v{tTq}, v{tCc}, 3, v{tB}
v_and_b32 v{tTr}, 1, v{tCc}
v_lshl_add_u32 v{tTr}, v{tTr}, 3, v{tB}
v_lshrrev_b32 v{tD}, 1, v{tCc}
v_mul_u32_u24 v{tD}, 192, v{tD}
v_add3_u32 v{tTr}, v{tTr}, v{tD}, 32
s_mov_b32 s56, {L_WO}
v_mul_u32_u24 v{vTo}, 24, v{tG}
v_add_u32 v{vTo}, v{vTo}, v{tR}
v_mul_u32_u24 v{vTo}, 192, v{vTo}
v_mul_u32_u24 v{tD}, 48, v{tCc}
v_add3_u32 v{vTo}, v{vTo}, v{tD}, s56
s_mul_i32 s55, s38, 12288
s_lshl_b32 s54, s37, 8
s_add_u32 s54, s55, s54
s_add_u32 s54, s54, {L_OB}            ; OB + grp*12288 + h*256
v_lshl_add_u32 v{tB}, v{tC}, 4, s54      ; + c*16
v_lshrrev_b32 v{tD}, 1, v{tG}
v_lshl_add_u32 v{vOw0}, v{tD}, 10, v{tB}
v_and_b32 v{tD}, 1, v{tG}
v_lshl_add_u32 v{vOw0}, v{tD}, 3, v{vOw0}
v_lshl_add_u32 v{vOw1}, v{tG}, 2, v{tB}
v_add_u32 v{vOw1}, 2048, v{vOw1}
s_mul_i32 s54, s37, 3072
s_add_u32 s54, s54, s55
s_add_u32 s54, s54, {L_OB}
v_add_u32 v{vOr}, s54, v{vL16}
s_add_u32 s55, s55, {L_X}
v_lshrrev_b32 v{tB}, 3, v{tC}
v_lshlrev_b32 v{tB}, 1, v{tB}
v_xor_b32 v{tB}, v{tB}, v{tG}
v_lshl_add_u32 v{tB}, v{tB}, 4, s55
v_lshl_add_u32 v{vXr}, v{tC}, 6, v{tB}    ; x fragment read address
s_lshl_b32 s54, s38, 4
s_add_u32 s54, s54, {L_CNT}
v_mov_b32 v{vFl}, s54                 ; L_CNT + grp*16
s_lshl_b32 s56, s37, 2
s_add_u32 s54, s54, s56
v_mov_b32 v{vFw}, s54                 ; L_CNT + wave*4
v_mov_b32 v{tD}, {L_CNT}
s_mov_b32 s60, 1                      ; round target
'''.replace('{q0}', str(Qf + 3)).replace('{q1}', str(Qf + 7)).replace('{q2_}', str(Qf + 11)).replace('{q3}', str(Qf + 15)) \
   .replace('{k0}', str(Kf + 3)).replace('{k1}', str(Kf + 7)).replace('{k2}', str(Kf + 11)).replace('{k3}', str(Kf + 15)) % (f32(C_EXP), f32(INV), f32(MASKV), L_RPB + (16 + 6 - 59) * 4)
setup = [l.replace('|', '\n') for l in setup.strip('\n').split('\n')]
B('''
s_cmp_eq_u32 s38, 1
s_cbranch_scc1 L_B0
''')
NFIRST = 5
for d in dmaA[:NFIRST]: B(d)
rest = dmaA[NFIRST:]
per = -(-len(setup) // len(rest))
for i, d in enumerate(rest):
    for l in setup[i * per:(i + 1) * per]: B(l)
    B(d)
for l in setup[len(rest) * per:]: B(l)
B('''
s_cmp_eq_u32 s37, 3
s_cbranch_scc1 L_pollr
s_lshl_b32 s54, s37, 8
s_add_u32 s54, s54, {L_RPB}
v_lshl_add_u32 v{tB}, v{tL}, 2, s54
s_waitcnt vmcnt(20)
v_lshlrev_b32 v{PL2}, 16, v{PL}
v_and_b32 v{PL3}, 0xffff0000, v{PL}
v_lshlrev_b32 v{PL4}, 16, v{PL1}
v_and_b32 v{PL5}, 0xffff0000, v{PL1}
v_mul_f32 v{PL2}, s48, v{PL2}
v_mul_f32 v{PL3}, s48, v{PL3}
v_mul_f32 v{PL4}, s48, v{PL4}
v_mul_f32 v{PL5}, s48, v{PL5}
ds_write_b32 v{tB}, v{PL2}
ds_write_b32 v{tB}, v{PL3} offset:768
ds_write_b32 v{tB}, v{PL4} offset:1536
ds_write_b32 v{tB}, v{PL5} offset:2304
ds_write_b32 v{vFw}, v{vRnd} offset:16
s_branch L_pollr
L_B0:
''')
for l in setup: B(l)
B('''
L_pollr:
s_waitcnt vmcnt(63)
''')
stamp(2)
B('''
L_pollr2:
ds_read_b128 v[{PL}:{PL3}], v{tD} offset:16
s_waitcnt lgkmcnt(0)
v_min3_u32 v{PL}, v{PL}, v{PL1}, v{PL2}
v_min_u32 v{PL}, v{PL}, v{PL3}
s_nop 0
v_readfirstlane_b32 s55, v{PL}
s_cmp_lt_u32 s55, 1
s_cbranch_scc1 L_pollr2
''')
stamp(3)
for du in (-1, 0, 1):
    for dt in (-1, 0, 1):
        for r in range(4):
            b = BIAS + ((du + 1) * 3 + dt + 1) * 4 + r
            A('ds_read_b32 v%d, v%d offset:%d' % (b, tA, (52 * du + 4 * dt - r + 59) * 4))
B('''
s_cmp_eq_u32 s39, 31
s_cbranch_scc0 L_nomy
s_waitcnt lgkmcnt(0)
''')
for du in (-1, 1):
    for dt in (-1, 0, 1):
        for r in range(4):
            b = BIAS + ((du + 1) * 3 + dt + 1) * 4 + r
            A('v_add_f32 v%d, s49, v%d' % (b, b))
B('''
L_nomy:
''')
stamp(4)
B('''
s_cmp_eq_u32 s38, 0
s_cbranch_scc0 L_pollw
s_waitcnt vmcnt(6)
ds_write_b32 v{vFw}, v{vRnd}
L_pollw:
ds_read_b128 v[{PL}:{PL3}], v{tD}
s_waitcnt lgkmcnt(0)
v_min3_u32 v{PL}, v{PL}, v{PL1}, v{PL2}
v_min_u32 v{PL}, v{PL}, v{PL3}
s_nop 0
v_readfirstlane_b32 s55, v{PL}
s_cmp_lt_u32 s55, 1
s_cbranch_scc1 L_pollw
''')
stamp(5)
def wtr(base, addr, extra):
    for s in range(3):
        for half in range(2):
            imm = (s * 32 + half * 4) * 576
            A('ds_read_b64_tr_b16 %s, v%d offset:%d' % (q2(base + s * 4 + half * 2), addr, imm + extra))
def xread(t):
    for s in range(3):
        A('ds_read_b128 %s, v%d offset:%d' % (q4(XF + (t & 1) * 12 + s * 4), vXr, (t * 3 + s) * 1024))
wtr(WV1, tTq, 416); wtr(WR, tTr, 0); wtr(WQ, tTq, 0); wtr(WK, tTq, 192); wtr(WV0, tTq, 384)
for i in range(12):
    A('v_and_b32 v%d, v%d, v%d' % (WV1 + i, WV1 + i, tMask))
for i in range(12):
    A('ds_bpermute_b32 v%d, v%d, v%d' % (WR + i, tBP, WR + i))
for i in range(12):
    A('ds_bpermute_b32 v%d, v%d, v%d' % (WV1 + i, tBP, WV1 + i))
B('''
s_cmp_eq_u32 s38, 0
s_cbranch_scc0 L_pollx
s_waitcnt vmcnt(3)
ds_write_b32 v{vFw}, v{vRnd} offset:96
v_add_u32 v{tD}, 64, v{tD}
''')
if PRIO: A('s_setprio 1')
B('''
L_pollx:
ds_read_b128 v[{PL}:{PL3}], v{tD} offset:32
s_waitcnt lgkmcnt(0)
v_min3_u32 v{PL}, v{PL}, v{PL1}, v{PL2}
v_min_u32 v{PL}, v{PL}, v{PL3}
s_nop 0
v_readfirstlane_b32 s55, v{PL}
s_cmp_lt_u32 s55, 1
s_cbranch_scc1 L_pollx
''')
stamp(6); stamp(7)
xread(0); xread(1)
A('L_round:')

def proj_mfma(t):
    a = ACC + (t & 1) * 20; x = XF + (t & 1) * 12
    if t == 0:
        for s in range(3):
            mfma(a + 0, WQ + s * 4, x + s * 4, a + 0 if s else None)
            mfma(a + 4, WK + s * 4, x + s * 4, a + 4 if s else None)
            mfma(a + 12, x + s * 4, WV0 + s * 4, a + 12 if s else None)
        for s in range(3):
            mfma(a + 8, WR + s * 4, x + s * 4, a + 8 if s else None)
            mfma(a + 16, x + s * 4, WV1 + s * 4, a + 16 if s else CV1)
        return
    for s in range(3):
        mfma(a + 0, WQ + s * 4, x + s * 4, a + 0 if s else None)
        mfma(a + 4, WK + s * 4, x + s * 4, a + 4 if s else None)
        mfma(a + 8, WR + s * 4, x + s * 4, a + 8 if s else None)
        mfma(a + 12, x + s * 4, WV0 + s * 4, a + 12 if s else None)
        mfma(a + 16, x + s * 4, WV1 + s * 4, a + 16 if s else CV1)
def proj_cvt(t):
    a = ACC + (t & 1) * 20
    q = Qf + t * 4; k = Kf + t * 4
    pk(q + 0, a + 0, a + 1); pk(q + 1, a + 2, a + 3)
    pk(k + 0, a + 4, a + 5); pk(k + 1, a + 6, a + 7)
    pk(q + 2, a + 8, a + 9); pk(k + 2, a + 10, a + 11)
    for d in range(2):
        v = Vf + (d * 2 + (t >> 1)) * 4 + (t & 1) * 2
        pk(v + 0, a + 12 + d * 4, a + 13 + d * 4); pk(v + 1, a + 14 + d * 4, a + 15 + d * 4)
def s_mfma(tq, tk):
    du = (tq >> 1) - (tk >> 1); dt = (tq & 1) - (tk & 1)
    mfma(SB[(tq, tk)], Kf + tk * 4, Qf + tq * 4, BIAS + ((du + 1) * 3 + dt + 1) * 4)
def sregs(tq):
    return [SB[(tq, tk)] + r for tk in range(4) for r in range(4) if not ((tk & 1) and r == 3)]
def smax(tq):
    m = M_ + tq; x = Qf + tq * 4
    regs = sregs(tq)
    A('v_max3_f32 v%d, v%d, v%d, v%d' % (m, regs[0], regs[1], regs[2]))
    i = 3
    while i < len(regs):
        if i + 1 < len(regs):
            A('v_max3_f32 v%d, v%d, v%d, v%d' % (m, m, regs[i], regs[i + 1])); i += 2
        else:
            A('v_max_f32 v%d, v%d, v%d' % (m, m, regs[i])); i += 1
    A('ds_swizzle_b32 v%d, v%d offset:0x401F' % (x, m))
    A('ds_bpermute_b32 v%d, v%d, v%d' % (x + 1, vB32, m))
    A('ds_bpermute_b32 v%d, v%d, v%d' % (x + 2, vB48, m))
def sexp(tq):
    m = M_ + tq; x = Qf + tq * 4
    regs = sregs(tq)
    A('v_max_f32 v%d, v%d, v%d' % (m, m, x))
    A('v_max3_f32 v%d, v%d, v%d, v%d' % (m, m, x + 1, x + 2))
    A('v_mul_f32 v%d, s43, v%d' % (m, m))
    for i, r in enumerate(regs):
        A('v_fma_f32 v%d, v%d, s43, -v%d' % (r, r, m))
        if i > 0: A('v_exp_f32 v%d, v%d' % (regs[i - 1], regs[i - 1]))
    A('v_exp_f32 v%d, v%d' % (regs[-1], regs[-1]))
    for pp in range(2):
        b0 = SB[(tq, 2 * pp)]; b1 = SB[(tq, 2 * pp + 1)]
        pk(b0, b0, b0 + 1); pk(b0 + 1, b0 + 2, b0 + 3)
        pk(b0 + 2, b1, b1 + 1); pk(b0 + 3, b1 + 2, None)
def pv_mfma(tq):
    o = O_ + (tq & 1) * 8
    for pp in range(2):
        for d in range(2):
            mfma(o + d * 4, Vf + (d * 2 + pp) * 4, SB[(tq, 2 * pp)], o + d * 4 if pp else None)
def onorm(tq):
    o = O_ + (tq & 1) * 8
    b = RCP; w = Kf + tq * 4
    A('v_rcp_f32 v%d, v%d' % (b, o + 6))
    for i in range(6):
        A('v_mul_f32 v%d, v%d, v%d' % (o + i, o + i, b))
    for i in range(3):
        pk(w + i, o + 2 * i, o + 2 * i + 1)
    A('ds_write_b64 v%d, %s offset:%d' % (vOw0, q2(w), tq * 3072))
    A('ds_write_b32 v%d, v%d offset:%d' % (vOw1, w + 2, tq * 3072))
def woread(T):
    for s in range(3):
        for half in range(2):
            A('ds_read_b64_tr_b16 %s, v%d offset:%d' % (q2(WoF + (T * 3 + s) * 4 + half * 2), vTo, (8 * s + 4 * half) * 192 + T * 8))

def late(i):
    A.rawmode = True
    B('s_cmp_eq_u32 s38, s60\ns_cbranch_scc0 L_late%d' % i)
    if i == 0:
        B('''
s_lshl_b32 s54, s37, 12
s_add_u32 m0, s54, {L_WO}
s_nop 0
buffer_load_dwordx4 v{vL16}, s[24:27], s54 offen lds
buffer_load_dwordx4 v{vL16}, s[24:27], s54 offen offset:1024 lds
buffer_load_dwordx4 v{vL16}, s[24:27], s54 offen offset:2048 lds
buffer_load_dwordx4 v{vL16}, s[24:27], s54 offen offset:3072 lds
''')
    elif i == 1: xdma('s61', 24576, 's47')
    else: xdma('s61', 36864, 's46')
    B('L_late%d:' % i)
    A.rawmode = False
proj_mfma(0)
late(0)
B('''
s_add_u32 s54, s38, s60
s_cmp_eq_u32 s54, 1
s_cbranch_scc0 L_skipx
s_waitcnt vmcnt(0)
L_skipx:
s_cselect_b32 s54, 32, 112
v_add_u32 v{RCP}, s54, v{vFw}
ds_write_b32 v{RCP}, v{vRnd}
''')
proj_mfma(1); proj_cvt(0); xread(2)
late(1)
proj_mfma(2); proj_cvt(1); xread(3)
late(2)
proj_mfma(3); proj_cvt(2)
for tq in range(3):
    for tk in range(3):
        s_mfma(tq, tk)
proj_cvt(3)
stamp(12)
for tq in range(3): s_mfma(tq, 3)
for tk in range(4): s_mfma(3, tk)
B('''
s_cmp_eq_u32 s38, s60
s_cbranch_scc0 L_skipw
s_waitcnt vmcnt(0)
L_skipw:
''')
A('v_mov_b32 v%d, 2' % RCP)
B('s_cmp_eq_u32 s38, 0\ns_cselect_b32 s55, 112, 32')
A('v_add_u32 v%d, s55, v%d' % (RCP + 1, vFw))
A('ds_write_b32 v%d, v%d' % (RCP + 1, RCP))
for tq in range(4): smax(tq)
sexp(0); pv_mfma(0)
sexp(1); pv_mfma(1); onorm(0)
sexp(2); pv_mfma(2); onorm(1)
sexp(3); pv_mfma(3); onorm(2)
B('''
v_mov_b32 v{RCP}, {L_CNT}
L_polld:
ds_read_b128 v[{P0}:{P3}], v{RCP} offset:48
s_waitcnt lgkmcnt(0)
v_min3_u32 v{P0}, v{P0}, v{P1}, v{P2}
v_min_u32 v{P0}, v{P0}, v{P3}
s_nop 0
v_readfirstlane_b32 s55, v{P0}
s_cmp_lt_u32 s55, 2
s_cbranch_scc1 L_polld
'''.replace('{P0}', str(O_)).replace('{P1}', str(O_ + 1)).replace('{P2}', str(O_ + 2)).replace('{P3}', str(O_ + 3)))
woread(0); woread(1)
onorm(3)
B('ds_write_b32 v{vFw}, v{vRnd} offset:64')
woread(2); woread(3); woread(4); woread(5)
stamp(13)
B('''
L_pollo:
ds_read_b128 v[{P0}:{P3}], v{vFl} offset:64
s_waitcnt lgkmcnt(0)
v_min3_u32 v{P0}, v{P0}, v{P1}, v{P2}
v_min_u32 v{P0}, v{P0}, v{P3}
s_nop 0
v_readfirstlane_b32 s55, v{P0}
s_cmp_lt_u32 s55, s60
s_cbranch_scc1 L_pollo
'''.replace('{P0}', str(PL)).replace('{P1}', str(PL + 1)).replace('{P2}', str(PL + 2)).replace('{P3}', str(PL + 3)))
stamp(14)
for s in range(3):
    A('ds_read_b128 %s, v%d offset:%d' % (q4(OF + s * 4), vOr, s * 1024))
for T in range(6):
    for s in range(3):
        mfma(OACC + T * 4, WoF + (T * 3 + s) * 4, OF + s * 4, OACC + T * 4 if s else None)
B('v_add_u32 v{vXr}, 24576, v{vXr}')
xread(0); xread(1)
for j in range(3):
    for T in (2 * j, 2 * j + 1):
        pk(ST + T * 2, OACC + T * 4, OACC + T * 4 + 1); pk(ST + T * 2 + 1, OACC + T * 4 + 2, OACC + T * 4 + 3)
    A('buffer_store_dwordx4 %s, v%d, s[32:35], s41 offen offset:%d%s' % (q4(ST + j * 4), vSoff, j * 16, STM))
stamp(15)
B('''
s_cmp_eq_u32 s60, 2
s_cbranch_scc1 L_fin
s_mov_b32 s60, 2
s_mov_b32 s41, s42
v_mov_b32 v{vRnd}, 2
v_subrev_u32 v{vOw0}, {L_OB}, v{vOw0}
v_subrev_u32 v{vOw1}, {L_OB}, v{vOw1}
v_subrev_u32 v{vOr}, {L_OB}, v{vOr}
''')
if STAMP: B('s_mov_b32 s72, s76\ns_mov_b32 s73, s77\ns_mov_b32 s74, s78\ns_mov_b32 s75, s79')
B('''
s_cmp_eq_u32 s40, 29
s_cbranch_scc0 L_nofix
''')
for du in (-1, 0, 1):
    for dt in (-1, 1):
        for r in range(4):
            b = BIAS + ((du + 1) * 3 + dt + 1) * 4 + r
            A('v_add_f32 v%d, %s, v%d' % (b, 's57' if du else 's49', b))
A('L_nofix:')
A.fence()
A('s_branch L_round')
A('L_fin:')
if STAMP:
    A('s_waitcnt vmcnt(0)')
    stamp(16); stamp(17, True)
if DBG:
    A('s_load_dwordx2 s[50:51], s[0:1], 56')
    A('s_waitcnt lgkmcnt(0)')
    A('s_mov_b32 s52, s50\ns_mov_b32 s53, s51\ns_mov_b32 s54, 256\ns_mov_b32 s55, 0x00020000')
    A('v_mov_b32 v1, 0')
    A('s_mov_b64 exec, 1')
    A('s_and_b32 s56, s36, 3')
    A('s_cmp_eq_u32 s56, 1')
    A('s_cbranch_scc0 L_end')
    A('s_cmp_eq_u32 s2, 100')
    A('s_cbranch_scc0 L_end')
    A('s_lshl_b32 s56, s38, 5')
    for j, i in enumerate([2, 5, 7, 8, 9, 11, 15, 16]):
        A('s_sub_u32 s57, s%d, s65' % (64 + i))
        A('v_mov_b32 v%d, s57' % (6 + j))
        A('buffer_store_dword v%d, v1, s[52:55], s56 offen offset:%d' % (6 + j, j * 4))
elif STAMP:
    A('s_load_dwordx2 s[50:51], s[0:1], 64')
    A('s_waitcnt lgkmcnt(0)')
    A('s_mov_b32 s52, s50\ns_mov_b32 s53, s51\ns_mov_b32 s54, 0x100000\ns_mov_b32 s55, 0x00020000')
    A('s_lshl_b32 s56, s2, 3\ns_add_u32 s56, s56, s36\ns_lshl_b32 s56, s56, 7')
    A('v_mov_b32 v1, 0')
    for i in range(18):
        A('v_mov_b32 v2, s%d' % (64 + i))
        A('buffer_store_dword v2, v1, s[52:55], s56 offen offset:%d' % (i * 4))
A('L_end:')
A('s_endpgm')
body = A.finalize()

hdr = open('standalone__window_attn_swin__vision.s.ref').read().split('\n')
hdr = [l for l in hdr if l.startswith(';') and '@launch' not in l]
out = '\n'.join(hdr) + '\n; @launch grid=(256,1,1) block=(512,1,1) lds=%d\n' % L_SIZE
out += '''.amdgcn_target "amdgcn-amd-amdhsa--gfx950"
.text
.globl standalone__window_attn_swin__vision_kernel
.p2align 8
.type standalone__window_attn_swin__vision_kernel,@function
standalone__window_attn_swin__vision_kernel:
''' + body + '''.section .rodata,"a"
.p2align 6
.amdhsa_kernel standalone__window_attn_swin__vision_kernel
  .amdhsa_next_free_vgpr 256
  .amdhsa_next_free_sgpr 96
  .amdhsa_accum_offset 256
  .amdhsa_group_segment_fixed_size 0
  .amdhsa_kernarg_size 72
  .amdhsa_user_sgpr_count 2
  .amdhsa_user_sgpr_kernarg_segment_ptr 1
  .amdhsa_system_sgpr_workgroup_id_x 1
.end_amdhsa_kernel
'''
dst = sys.argv[1]
open(dst, 'w').write(out)
print('instructions:', len(body.split('\n')), 'nop states:', A.nnops)
```

```python
import re
VR = re.compile(r'\bv\[(\d+):(\d+)\]|\bv(\d+)\b')
TRANS = ('v_exp_f32', 'v_rcp_f32', 'v_log_f32', 'v_rsq_f32', 'v_sqrt_f32')

def vregs(tok):
    out = []
    for m in VR.finditer(tok):
        if m.group(1) is not None:
            out += list(range(int(m.group(1)), int(m.group(2)) + 1))
        else:
            out.append(int(m.group(3)))
    return out

def split_ops(s):
    out, depth, cur = [], 0, ''
    for ch in s:
        if ch == '[': depth += 1
        if ch == ']': depth -= 1
        if ch == ',' and depth == 0:
            out.append(cur.strip()); cur = ''
        else:
            cur += ch
    if cur.strip(): out.append(cur.strip())
    return out

SR = re.compile(r'\bs\[(\d+):(\d+)\]|\bs(\d+)\b|\b(vcc)\b')
def sregs_(tok):
    out = []
    for m in SR.finditer(tok):
        if m.group(1) is not None: out += list(range(int(m.group(1)), int(m.group(2)) + 1))
        elif m.group(3) is not None: out.append(int(m.group(3)))
        else: out.append('vcc')
    return out

class Ins:
    __slots__ = ('text', 'op', 'kind', 'rd', 'wr', 'rdA', 'rdC', 'states', 'raw', 'swr', 'srd')
    def __init__(self, text):
        self.text = text
        self.raw = False
        t = text.split(';')[0].strip()
        parts = t.split(None, 1)
        self.op = parts[0] if parts else ''
        ops = split_ops(parts[1]) if len(parts) > 1 else []
        op = self.op
        self.rd, self.wr, self.rdA, self.rdC = set(), set(), set(), set()
        self.states = 1
        self.swr, self.srd = set(), set()
        if op.startswith('v_cmp') or op.startswith('v_readfirstlane') or op.startswith('v_readlane'):
            self.swr = set(sregs_(ops[0]))
            for o in ops[1:]: self.srd |= set(sregs_(o))
        elif op.startswith('v_') or op.startswith('buffer_'):
            for o in ops[1:]: self.srd |= set(sregs_(o.split(' ')[0]))
        if op.endswith(':') or op.startswith('.') or op == '':
            self.kind = 'label'; self.states = 0
        elif op == 's_nop':
            self.kind = 'nop'; self.states = int(ops[0], 0) + 1
        elif op.startswith('v_mfma'):
            self.kind = 'mfma'
            self.wr = set(vregs(ops[0])); self.rdA = set(vregs(ops[1])) | set(vregs(ops[2])); self.rdC = set(vregs(ops[3]))
            self.rd = self.rdA | self.rdC
        elif op.startswith('v_permlane'):
            self.kind = 'perm'
            self.wr = set(vregs(ops[0])) | set(vregs(ops[1])); self.rd = set(self.wr)
        elif op.startswith('v_readfirstlane') or op.startswith('v_readlane'):
            self.kind = 'rdlane'; self.rd = set(vregs(ops[1]))
        elif op.startswith('v_cmp'):
            self.kind = 'valu'
            for o in ops[1:]: self.rd |= set(vregs(o))
        elif op.startswith('v_'):
            self.kind = 'trans' if op.replace('_e32', '').replace('_e64', '') in TRANS else 'valu'
            self.wr = set(vregs(ops[0]))
            for o in ops[1:]: self.rd |= set(vregs(o))
            if op.startswith('v_fmac') or op.startswith('v_pk_fmac'): self.rd |= self.wr
        elif op.startswith('ds_read') :
            self.kind = 'dsr'; self.wr = set(vregs(ops[0])); self.rd = set(vregs(ops[1]))
            if 'd16' in op: self.rd |= self.wr
        elif op.startswith('ds_bpermute') or op.startswith('ds_permute'):
            self.kind = 'dsr'; self.wr = set(vregs(ops[0])); self.rd = set(vregs(ops[1])) | set(vregs(ops[2]))
        elif op.startswith('ds_swizzle'):
            self.kind = 'dsr'; self.wr = set(vregs(ops[0])); self.rd = set(vregs(ops[1]))
        elif op.startswith('ds_add_rtn'):
            self.kind = 'dsr'; self.wr = set(vregs(ops[0])); self.rd = set(vregs(ops[1])) | set(vregs(ops[2]))
        elif op.startswith('ds_'):
            self.kind = 'dsw'
            for o in ops: self.rd |= set(vregs(o))
        elif op.startswith('buffer_load') and ' lds' in (' ' + t):
            self.kind = 'dma'; self.rd = set(vregs(ops[0]))
        elif op.startswith('buffer_load') or op.startswith('global_load'):
            self.kind = 'vld'; self.wr = set(vregs(ops[0])); self.rd = set(vregs(ops[1]))
        elif op.startswith('buffer_store') or op.startswith('global_store'):
            self.kind = 'vst'
            for o in ops[:2]: self.rd |= set(vregs(o))
        elif op.startswith('s_waitcnt'):
            self.kind = 'wait'
        else:
            self.kind = 'salu'

class Asm:
    def __init__(self):
        self.ins = []
        self.rawmode = False
    def __call__(self, text):
        for line in text.strip('\n').split('\n'):
            line = line.strip()
            if line:
                I = Ins(line); I.raw = self.rawmode
                self.ins.append(I)
    def fence(self):
        self('s_waitcnt lgkmcnt(0)'); self('s_nop 7'); self('s_nop 1')
    def finalize(self):
        out = []
        pos = 0
        lastw = {}
        lastC = {}
        lastst = {}
        lasts = {}
        lgkm = []
        nnops = 0
        for I in self.ins:
            if I.raw:
                out.append(I); continue
            need = 0
            def req(p, n):
                nonlocal need
                need = max(need, n - (pos - p - 1))
            touch = I.rd | I.wr
            idx = -1
            for j, d in enumerate(lgkm):
                if d & touch: idx = j
            if I.kind == 'wait' and 'lgkmcnt' in I.text:
                n = int(re.search(r'lgkmcnt\((\d+)\)', I.text).group(1))
                lgkm = lgkm[len(lgkm) - n:] if n < len(lgkm) else lgkm
                if n == 0: lgkm = []
            elif idx >= 0:
                n = len(lgkm) - 1 - idx
                n = min(n, 15)
                out.append(Ins('s_waitcnt lgkmcnt(%d)' % n)); pos += 1
                lgkm = lgkm[len(lgkm) - n:] if n > 0 else []
            for r in I.srd:
                if r in lasts: req(lasts[r], 5 if I.op.startswith('buffer_') else 2)
            for r in I.rd:
                if r in lastw:
                    p, k, D = lastw[r]
                    if k == 'mfma':
                        if I.kind == 'mfma':
                            if r in I.rdA: req(p, 8)
                            if r in I.rdC: req(p, 0 if I.rdC == D else 6)
                        else: req(p, 8)
                    elif k in ('valu', 'trans', 'perm'):
                        if I.kind == 'mfma': req(p, 2)
                        elif I.kind == 'perm': req(p, 2)
                        elif I.kind == 'rdlane': req(p, 1)
                        elif k == 'trans' and I.kind in ('valu',): req(p, 1)
                        elif k == 'trans' and I.kind in ('dsw', 'vst', 'dsr', 'dma', 'vld'): req(p, 1)
            for r in I.wr:
                if r in lastw:
                    p, k, D = lastw[r]
                    if k == 'mfma' and not (I.kind == 'mfma' and I.rdC == D and I.wr == D): req(p, 8)
                if r in lastC and I.kind in ('valu', 'trans', 'perm'): req(lastC[r], 3)
                if r in lastst: req(lastst[r], 2)
            if need > 0:
                nnops += need
                while need > 0:
                    n = min(need, 16)
                    out.append(Ins('s_nop %d' % (n - 1))); pos += n; need -= n
            out.append(I)
            p = pos
            pos += I.states
            for r in I.wr:
                lastw[r] = (p, I.kind, I.wr)
            for r in I.swr: lasts[r] = p
            if I.kind == 'mfma':
                for r in I.rdC: lastC[r] = p
            if I.kind == 'vst':
                for r in I.rd: lastst[r] = p
            if I.kind == 'dsr': lgkm.append(set(I.wr))
            if I.kind == 'dsw': lgkm.append(set())
        self.nnops = nnops
        return '\n'.join(('    ' + i.text) if i.kind != 'label' else i.text for i in out) + '\n'

class Node:
    __slots__ = ('lines', 'ins', 'rd', 'wr', 'cost', 'kind', 'succ', 'npred', 'prio', 'ready', 'idx', 'lat', 'bias', 'raw')
    def __init__(self, text, rd=(), wr=(), bias=0, cost=None, raw=False):
        self.raw = raw
        self.lines = [l.strip() for l in text.strip('\n').split('\n') if l.strip()]
        self.ins = [Ins(l) for l in self.lines]
        self.rd = set(rd); self.wr = set(wr)
        c = 0
        for I in self.ins:
            self.rd |= I.rd; self.wr |= I.wr
            c += {'mfma': 8, 'trans': 8, 'label': 0, 'vst': 8, 'dsw': 6}.get(I.kind, 4)
        self.cost = c if cost is None else cost
        ks = [I.kind for I in self.ins]
        self.kind = 'mfma' if ks == ['mfma'] else ('dsr' if 'dsr' in ks else ks[-1])
        self.succ = []; self.npred = 0; self.prio = 0; self.ready = 0; self.bias = bias

LAT_LDS = 120
def schedule(nodes, verbose=None, t0=0):
    n = len(nodes)
    for i, N in enumerate(nodes): N.idx = i; N.succ = []; N.npred = 0; N.ready = t0
    lastw = {}; readers = {}
    edges = {}
    def edge(a, b, lat):
        if a is b: return
        k = (a.idx, b.idx)
        if k not in edges or edges[k] < lat: edges[k] = lat
    for N in nodes:
        for r in N.rd:
            if r in lastw:
                P = lastw[r]
                if isinstance(r, str): lat = P.cost
                elif P.kind == 'mfma':
                    I = N.ins[0]
                    if N.kind == 'mfma' and r in I.rdC and r not in I.rdA: lat = 16
                    else: lat = 36
                elif P.kind == 'dsr': lat = LAT_LDS
                elif N.kind in ('mfma', 'perm'): lat = P.cost + 8
                elif P.kind == 'trans': lat = P.cost + 4
                else: lat = P.cost
                edge(P, N, lat)
        for r in N.wr:
            if r in lastw:
                P = lastw[r]
                if P.kind == 'mfma' and not (N.kind == 'mfma' and r in N.ins[0].rdC): edge(P, N, 36)
                elif P.kind == 'dsr': edge(P, N, LAT_LDS)
                else: edge(P, N, P.cost)
            for P in readers.get(r, ()):
                edge(P, N, P.cost + (12 if (P.kind == 'mfma' and N.kind != 'dsr') else 0))
        for r in N.rd: readers.setdefault(r, []).append(N)
        for r in N.wr: lastw[r] = N; readers[r] = []
    for (a, b), lat in edges.items():
        nodes[a].succ.append((nodes[b], lat)); nodes[b].npred += 1
    for N in reversed(nodes):
        N.prio = N.cost + N.bias
        for S, lat in N.succ: N.prio = max(N.prio, lat + S.prio + N.bias)
    avail = [N for N in nodes if N.npred == 0]
    t = t0; mfree = 0; out = []; stall = 0
    while avail:
        def est(N):
            e = max(t, N.ready)
            if N.kind == 'mfma': e = max(e, mfree)
            return e
        now = [N for N in avail if est(N) <= t]
        if now:
            N = max(now, key=lambda X: (X.prio, -X.idx))
        else:
            e = min(est(X) for X in avail)
            N = max([X for X in avail if est(X) == e], key=lambda X: (X.prio, -X.idx))
            stall += e - t; t = e
        avail.remove(N); out.append((t, N))
        if N.kind == 'mfma': mfree = t + 16
        for S, lat in N.succ:
            S.ready = max(S.ready, t + lat); S.npred -= 1
            if S.npred == 0: avail.append(S)
        t += N.cost
    assert len(out) == n
    if verbose: print('%s: %d nodes, est %d cycles, stall %d' % (verbose, n, t - t0, stall))
    return out, t
```

```python
import struct, sys, math
import asmlib
from asmlib import Asm, Node, schedule
def f32(x): return '0x%08x' % struct.unpack('<I', struct.pack('<f', x))[0]
SCALE = 24 ** -0.5
C_EXP = SCALE * math.log2(math.e)
INV = 24 ** 0.5
MASKV = -100.0 * INV
STAMP = '--stamp' in sys.argv
SOLO = '--solo' in sys.argv
PRIOA = '--prioa' in sys.argv
PRIOB = '--priob' in sys.argv
XNT = ' nt'
STM = '' if '--nostnt' in sys.argv else ' nt'

L_WQ, L_WO, L_X, L_OB = 0, 55296, 73728, 122880
L_CNT = 147456
L_RPB = 147712
L_SIZE = L_RPB + 3072

M_ = 0
WQ, WK, WR, WV0, WV1 = 4, 16, 28, 40, 52
BIAS = 64
CV1 = 100
vXr, vOw0, vOw1, vOr, vTo0, vTo1, vTo2, vSo0, vSo1, vFl, vFw, vB32 = range(104, 116)
vTo = [vTo0, vTo1, vTo2]
Qf, Kf, Vf = 116, 132, 148
def b(i): return 164 + 4 * i
XF = [b(0), b(3)]; ACC = [b(6), b(9)]
SB = {}
early = [0, 1, 2, 6, 7, 8, 12, 13, 14]
for tq in range(3):
    for tk in range(3): SB[(tq, tk)] = b(early[tq * 3 + tk])
for tq in range(3): SB[(tq, 3)] = b(3 + tq)
for tk, i in enumerate([9, 10, 11, 15]): SB[(3, tk)] = b(i)
XV = b(16); VA = [b(19), b(21)]
WoF = [b(16), b(17), b(18), SB[(0, 1)], SB[(0, 3)], SB[(1, 1)], SB[(1, 3)], SB[(2, 1)], SB[(2, 3)]]
OF = [SB[(0, 0)], SB[(0, 2)], SB[(1, 0)], SB[(1, 2)], SB[(2, 0)], SB[(2, 2)]]
OACC = [SB[(3, 1)], SB[(3, 3)], b(19), b(20), SB[(3, 0)], SB[(3, 2)]]
ST = [148, 154]
tTq, tTr, tMask, tA = 240, 241, 242, 243
tL, tC, tG, tR, tCc, tTok, tXoff, tB, tD, tE, tWq, tWo, tK, tX, tF = range(200, 215)
PL = 232
PL1, PL2, PL3, PL4, PL5 = range(233, 238)
def q4(b): return 'v[%d:%d]' % (b, b + 3)
def q2(b): return 'v[%d:%d]' % (b, b + 1)

A = Asm()
_st = [0]
def stamp(real=False):
    if not STAMP: return
    k = _st[0]; _st[0] += 1
    assert k < 16
    A('%s s[%d:%d]' % ('s_memrealtime' if real else 's_memtime', 64 + 2 * k, 65 + 2 * k))
def flush():
    if not STAMP: return
    A('s_waitcnt lgkmcnt(0)')
    A('v_mbcnt_lo_u32_b32 v161, -1, 0\nv_mbcnt_hi_u32_b32 v161, -1, v161\nv_lshlrev_b32 v161, 2, v161')
    for k in range(_st[0]):
        A('v_writelane_b32 v160, s%d, %d' % (64 + 2 * k, k))
    A('buffer_store_dword v160, v161, s[96:99], s100 offen\ns_add_u32 s100, s100, 64')
    _st[0] = 0
class D(dict):
    def __missing__(self, k): return globals()[k]
def F(t): return t.format_map(D())
def B(t): A(F(t))
def mf(d, a, b_, c): return 'v_mfma_f32_16x16x32_bf16 %s, %s, %s, %s' % (q4(d), q4(a), q4(b_), q4(c) if c is not None else '0')
def pk(d, a, b_): return 'v_cvt_pk_bf16_f32 v%d, v%d, %s' % (d, a, ('v%d' % b_) if b_ is not None else '0')

B('''
s_cmp_ge_u32 s2, 256
s_cbranch_scc1 L_end
''')
stamp(True); stamp()
B('''
s_load_dwordx8 s[4:11], s[0:1], 0
s_load_dwordx2 s[12:13], s[0:1], 48
''')
if STAMP: B('s_load_dwordx2 s[96:97], s[0:1], 64\ns_mov_b32 s98, 0x200000\ns_mov_b32 s99, 0x00020000')
B('''
v_and_b32 v{tL}, 63, v0                  ; lane
v_readfirstlane_b32 s36, v0
v_mov_b32 v{tE}, 0
v_lshlrev_b32 v{tD}, 2, v{tL}
v_add_u32 v{tD}, {L_CNT}, v{tD}
v_bfe_u32 v{tG}, v0, 4, 2                ; g
v_bfe_u32 v{tR}, v0, 2, 2                ; c>>2
v_and_b32 v{tCc}, 3, v0                  ; c&3
ds_write_b32 v{tD}, v{tE}
s_lshr_b32 s36, s36, 6                ; wave
s_and_b32 s37, s36, 3                 ; h = t
s_lshr_b32 s38, s36, 2                ; grp
s_lshr_b32 s39, s2, 3                 ; wy
s_and_b32 s40, s2, 7
v_and_b32 v{tB}, 2, v{tG}
v_xor_b32 v{tB}, v{tB}, v{tCc}
v_lshlrev_b32 v{tB}, 4, v{tB}
v_lshrrev_b32 v{tE}, 2, v{tL}
v_mul_u32_u24 v{tWq}, 576, v{tE}
v_add_u32 v{tWq}, v{tWq}, v{tB}
v_mul_u32_u24 v{tWo}, 192, v{tE}
v_add_u32 v{tWo}, v{tWo}, v{tB}
s_lshr_b32 s51, s37, 1
s_and_b32 s50, s37, 1
s_mul_i32 s14, s51, 27648
s_mul_i32 s15, s50, 192
s_add_u32 s14, s14, s15
s_mul_i32 s15, s51, 27648
s_mul_i32 s55, s50, 3072
s_add_u32 s15, s15, s55
s_mov_b32 s23, 0x00020000
s_mov_b32 s22, 55296
s_mov_b32 s31, 0x00020000
s_mov_b32 s30, 1352
s_lshl_b32 s55, s37, 9
s_sub_u32 s55, s55, 128
v_lshl_add_u32 v{tF}, v{tL}, 3, s55
s_mul_i32 s44, s39, 7
s_lshl_b32 s45, s51, 2
s_add_u32 s44, s44, s45
s_add_u32 s44, s44, 3
s_sub_u32 s45, s44, 224
s_cmp_ge_u32 s44, 224
s_cselect_b32 s44, s45, s44           ; ybase
s_mul_i32 s44, s44, 43008
s_mul_i32 s45, s40, 28
s_add_u32 s41, s45, 3
s_lshl_b32 s46, s50, 2
s_add_u32 s46, s41, s46
s_mul_i32 s45, s46, 192
s_add_u32 s45, s44, s45
v_mul_u32_u24 v{tXoff}, 224, v{tG}
v_add_u32 v{tXoff}, v{tXoff}, v{tR}
v_mul_u32_u24 v{tXoff}, 192, v{tXoff}
v_add_u32 v{tXoff}, v{tXoff}, v{tB}
s_cmp_eq_u32 s50, 1
s_cselect_b32 s52, 3, 99
s_cmp_eq_u32 s51, 1
s_cselect_b32 s53, 3, 99
v_cmp_eq_u32 s[58:59], s52, v{tR}
v_cmp_eq_u32 s[56:57], s53, v{tG}
v_mov_b32 v{tA}, 0x80000000
s_mov_b32 s19, 0x00020000
s_mov_b32 s18, 9633792
s_or_b64 s[58:59], s[58:59], s[56:57]
s_mul_i32 s55, s37, 3072
s_add_u32 s61, s55, {L_X}
v_cndmask_b32 v{tXoff}, v{tXoff}, v{tA}, s[58:59]
s_mov_b32 s27, 0x00020000
s_mov_b32 s26, 18432
s_waitcnt lgkmcnt(0)
s_barrier
s_mov_b32 s28, s10
s_mov_b32 s29, s11
s_mov_b32 s20, s6
s_mov_b32 s21, s7
s_mov_b32 s16, s4
s_mov_b32 s17, s5
s_mov_b32 s24, s8
s_mov_b32 s25, s9
''')
def xdma_l(off, sreg, add=0):
    out = []
    for i in range(3):
        out.append('s_add_u32 m0, s61, %d\ns_add_u32 s54, %s, %d\nbuffer_load_dwordx4 v{tXoff}, s[16:19], s54 offen offset:%d{XNT} lds' % (off + i * 960, sreg, add, i * 64))
    return out
dmaA = ['buffer_load_dwordx2 v[{PL}:{PL1}], v{tF}, s[28:31], 0 offen']
for a in range(3):
    for c in range(3):
        dmaA.append('s_add_u32 m0, s15, %d\ns_add_u32 s54, s14, %d\nbuffer_load_dwordx4 v{tWq}, s[20:23], s54 offen lds' % ((a * 9 + c) * 1024, a * 9216 + c * 64))
dmaA += xdma_l(0, 's45')
for c in range(3):
    pre = 's_mul_i32 s14, s37, 9216\n' if c == 0 else ''
    dmaA.append(pre + 's_add_u32 m0, s14, %d\ns_add_u32 s54, s14, %d\nbuffer_load_dwordx4 v{tWq}, s[20:23], s54 offen lds' % ((6 + c) * 1024, 384 + c * 64))
dmaA.append('''s_lshl_b32 s14, s37, 10
s_lshl_b32 s15, s37, 6
s_add_u32 m0, s14, %d
s_add_u32 s54, s15, %d
s_cmp_eq_u32 s37, 3
s_cbranch_scc1 L_w3
buffer_load_dwordx4 v{tWq}, s[20:23], s54 offen lds
s_add_u32 m0, s14, %d
s_add_u32 s54, s15, %d
buffer_load_dwordx4 v{tWq}, s[20:23], s54 offen lds
s_branch L_w3e
L_w3:
s_mov_b32 m0, %d
s_mov_b32 s54, %d
buffer_load_dwordx4 v{tWo}, s[24:27], s54 offen lds
s_mov_b32 m0, %d
s_mov_b32 s54, %d
buffer_load_dwordx4 v{tWo}, s[24:27], s54 offen lds
L_w3e:''' % ((36 + 6) * 1024, 4 * 9216 + 384, (45 + 6) * 1024, 5 * 9216 + 384,
             L_WO + 14 * 1024, 4 * 3072 + 128, L_WO + 17 * 1024, 5 * 3072 + 128))
dmaA += xdma_l(12288, 's45', 1344)

def laddr(dst, bexpr_reg, base_reg):
    return '''v_lshrrev_b32 v{tD}, 6, v%d
v_and_b32 v{tE}, 63, v%d
v_xor_b32 v{tE}, v{tE}, v{tX}
v_lshl_add_u32 v{tD}, v{tD}, 10, v{tE}
v_add_u32 v%d, v{tD}, v%d
''' % (bexpr_reg, bexpr_reg, dst, base_reg)
setup = '''
v_and_b32 v{tC}, 15, v0                  ; c
s_lshl_b32 s54, s36, 2
s_add_u32 s54, s54, {L_CNT}
v_mov_b32 v{vFw}, s54                 ; L_CNT + wave*4
v_lshlrev_b32 v{tF}, 2, v{tCc}
v_add_u32 v{tF}, {L_CNT}, v{tF}          ; L_CNT + (l&3)*4
s_lshl_b32 s54, s38, 4
v_add_u32 v{vFl}, s54, v{tF}
s_mov_b32 s48, %s                     ; 1/scale
v_and_b32 v{tX}, 1, v{tG}
v_lshl_add_u32 v{tK}, v{tX}, 3, v{tR}
v_lshlrev_b32 v{tK}, 6, v{tK}            ; krow*64
v_lshlrev_b32 v{tX}, 5, v{tX}            ; X = 32*(g&1)
v_lshrrev_b32 v{tTok}, 1, v{tG}          ; g>>1
v_mul_u32_u24 v{tB}, 9216, v{tTok}
v_add_u32 v{tB}, v{tB}, v{tK}
s_mul_i32 s55, s37, 48
v_lshl_add_u32 v{tTq}, v{tCc}, 3, s55
''' + laddr(tTq, tTq, tB) + '''
v_and_b32 v{tTr}, 1, v{tCc}
s_add_u32 s55, s55, 32
v_lshl_add_u32 v{tTr}, v{tTr}, 3, s55
''' + laddr(tTr, tTr, tB) + '''
v_lshrrev_b32 v{tD}, 1, v{tCc}
v_mul_u32_u24 v{tD}, 3072, v{tD}
v_add_u32 v{tTr}, v{tD}, v{tTr}
v_mul_u32_u24 v{tB}, 3072, v{tTok}
v_add_u32 v{tB}, v{tB}, v{tK}
v_add_u32 v{tB}, {L_WO}, v{tB}
s_mul_i32 s55, s50, 96
v_mov_b32 v{vTo0}, s55
v_mad_u32_u24 v{vTo0}, v{tCc}, 24, v{vTo0}
v_add_u32 v{vTo1}, 8, v{vTo0}
v_add_u32 v{vTo2}, 16, v{vTo0}
''' + laddr(vTo0, vTo0, tB) + laddr(vTo1, vTo1, tB) + laddr(vTo2, vTo2, tB) + '''
s_mov_b32 s35, 0x00020000
s_mov_b32 s34, 9633792
s_mov_b32 s32, s12
s_mov_b32 s33, s13
s_add_u32 s46, s46, 21                ; xbase window 3
s_sub_u32 s47, s46, 224
s_cmp_ge_u32 s46, 224|s_cselect_b32 s46, s47, s46
s_mul_i32 s46, s46, 192
s_add_u32 s46, s44, s46               ; soff window 3
s_mul_i32 s41, s41, 192
s_add_u32 s41, s41, s44
s_mul_i32 s54, s38, 1344
s_add_u32 s41, s41, s54               ; store soff round 0 even tile
s_add_u32 s42, s41, 768               ; odd tile
s_lshl_b32 s40, s40, 2
s_add_u32 s40, s40, s38               ; wx of round 0
s_add_u32 s62, s41, 2688              ; round 1 even tile
s_add_u32 s63, s62, 768
s_cmp_eq_u32 s40, 29|s_cselect_b32 s63, s44, s63
v_mul_u32_u24 v{tB}, 224, v{tR}
v_add_u32 v{tB}, v{tB}, v{tCc}
v_mul_u32_u24 v{tB}, 192, v{tB}          ; tokoff (store mapping: token = c)
v_cmp_eq_u32 vcc, 3, v{tCc}
v_cmp_eq_u32 s[56:57], s53, v{tR}
v_mad_u32_u24 v{tB}, v{tG}, 24, v{tB}
v_add_u32 v{tB}, s55, v{tB}
s_mov_b32 s43, %s                     ; c_exp
s_mov_b32 s49, %s                     ; mask/scale
v_cndmask_b32 v{vSo0}, v{tB}, v{tA}, s[56:57]
v_cndmask_b32 v{vSo1}, v{vSo0}, v{tA}, vcc
v_sub_u32 v{tA}, v{tR}, v{tG}
v_add_u32 v{tA}, 6, v{tA}
v_mul_u32_u24 v{tA}, 13, v{tA}
v_add_u32 v{tA}, v{tA}, v{tCc}
s_mul_i32 s55, s37, 768
s_add_u32 s55, s55, %d
v_lshl_add_u32 v{tA}, v{tA}, 2, s55      ; bias gather base
s_cmp_eq_u32 s39, 31|s_cselect_b32 s57, 0, s49
v_mov_b32 v{tB}, 0x3f80
v_cmp_gt_u32 vcc, 16, v{tL}
v_lshrrev_b32 v{tD}, 2, v{tL}
v_mov_b32 v{tE}, 0xff00
v_cndmask_b32 v{q0}, 0, v{tB}, vcc
v_cndmask_b32 v{q1}, 0, v{tB}, vcc
v_cndmask_b32 v{q2_}, 0, v{tB}, vcc
v_cndmask_b32 v{q3}, 0, v{tB}, vcc
v_cmp_eq_u32 vcc, 3, v{tD}
v_mov_b32 v{k0}, 0
v_mov_b32 v{k1}, 0
v_cndmask_b32 v{k2}, 0, v{tE}, vcc
v_cndmask_b32 v{k3}, 0, v{tE}, vcc
v_cmp_lt_u32 vcc, 7, v{tC}
v_xor_b32 v{tB}, 32, v{tL}
v_lshlrev_b32 v{vB32}, 2, v{tB}
v_cndmask_b32 v100, 0, 1.0, vcc
v_cndmask_b32 v101, 0, 1.0, vcc
v_cndmask_b32 v102, 0, 1.0, vcc
v_cndmask_b32 v103, 0, 1.0, vcc
v_cndmask_b32 v{tMask}, -1, 0, vcc
s_mul_i32 s55, s38, 12288
s_add_u32 s56, s55, {L_OB}            ; OB + grp*12288
v_lshl_add_u32 v{tB}, v{tC}, 4, s56      ; + c*16
v_lshrrev_b32 v{tD}, 2, v{tX}
v_add_u32 v{tB}, v{tB}, v{tD}            ; + (g&1)*8
s_mul_i32 s54, s37, 3
v_add_u32 v{tD}, s54, v{tTok}            ; u
v_lshl_add_u32 v{vOw0}, v{tD}, 8, v{tB}  ; (u>>2)*1024 + (u&3)*256 = u*256
s_add_u32 s54, s54, 2
s_lshl_b32 s54, s54, 8
s_add_u32 s54, s54, 4
v_lshlrev_b32 v{tD}, 2, v{tTok}
v_sub_u32 v{tD}, s54, v{tD}
v_add_u32 v{vOw1}, v{tB}, v{tD}
s_mul_i32 s54, s51, 6144
s_add_u32 s54, s54, s56
v_lshl_add_u32 v{vOr}, v{tL}, 4, s54
s_add_u32 s55, s55, {L_X}
v_lshrrev_b32 v{tB}, 3, v{tC}
v_lshlrev_b32 v{tB}, 1, v{tB}
v_xor_b32 v{tB}, v{tB}, v{tG}
v_lshl_add_u32 v{tB}, v{tB}, 4, s55
v_lshl_add_u32 v{vXr}, v{tC}, 6, v{tB}    ; x fragment read address
s_mov_b32 s60, 0                      ; round
'''
setup = setup.replace('{q0}', str(Qf + 3)).replace('{q1}', str(Qf + 7)).replace('{q2_}', str(Qf + 11)).replace('{q3}', str(Qf + 15)) \
   .replace('{k0}', str(Kf + 3)).replace('{k1}', str(Kf + 7)).replace('{k2}', str(Kf + 11)).replace('{k3}', str(Kf + 15)) % (f32(INV), f32(C_EXP), f32(MASKV), L_RPB + (16 + 6 - 59) * 4)
setup = [l.replace('|', '\n') for l in setup.strip('\n').split('\n') if l.strip()]
assert not any('s54' in l and 0 for l in setup)
if STAMP: setup.append('s_lshl_b32 s100, s2, 3\ns_add_u32 s100, s100, s36\ns_lshl_b32 s100, s100, 8')

def poll(lbl, areg, off, tmp):
    B('''
%s:
ds_read_b32 v%d, v%d offset:%d
s_waitcnt lgkmcnt(0)
v_cmp_eq_u32 vcc, 0, v%d
s_cbranch_vccnz %s
''' % (lbl, tmp, areg, off, tmp, lbl))
def wtr_l(base, addr, extra):
    return ['ds_read_b64_tr_b16 %s, v%d offset:%d' % (q2(base + s * 4 + half * 2), addr, s * 18432 + half * 256 + extra) for s in range(3) for half in range(2)]
def xread_l(t, dst):
    return ['ds_read_b128 %s, v%d offset:%d' % (q4(dst + s * 4), vXr, (t * 3 + s) * 1024) for s in range(3)]
def bidx(du, dt): return BIAS + ((du + 1) * 3 + dt + 1) * 4
def gather_l():
    return ['ds_read_b32 v%d, v%d offset:%d' % (bidx(du, dt) + r, tA, (52 * du + 4 * dt - r + 59) * 4) for du in (0, -1, 1) for dt in (0, -1, 1) for r in range(4)]
def ymask(sfx):
    t = 's_cmp_eq_u32 s39, 31\ns_cbranch_scc0 L_nomy%s\ns_waitcnt lgkmcnt(0)\n' % sfx
    for du in (-1, 1):
        for dt in (-1, 0, 1):
            for r in range(4):
                t += 'v_add_f32 v%d, s49, v%d\n' % (bidx(du, dt) + r, bidx(du, dt) + r)
    return t + 's_nop 1\nL_nomy%s:' % sfx

dmaA = [d.replace('s54', 's101') for d in dmaA]
B('''
s_cmp_eq_u32 s38, 1
s_cbranch_scc1 L_B0
''')
NFIRST = 4
for d in dmaA[:NFIRST]: B(d)
rest = dmaA[NFIRST:]
per = -(-len(setup) // len(rest))
for i, d in enumerate(rest):
    for l in setup[i * per:(i + 1) * per]: B(l)
    B(d)
for l in setup[len(rest) * per:]: B(l)
stamp()
B('''
s_cmp_eq_u32 s37, 3
s_cbranch_scc1 L_a1
s_lshl_b32 s54, s37, 8
s_add_u32 s54, s54, {L_RPB}
v_lshl_add_u32 v{tB}, v{tL}, 2, s54
s_waitcnt vmcnt(20)
v_lshlrev_b32 v{PL2}, 16, v{PL}
v_and_b32 v{PL3}, 0xffff0000, v{PL}
v_lshlrev_b32 v{PL4}, 16, v{PL1}
v_and_b32 v{PL5}, 0xffff0000, v{PL1}
v_mul_f32 v{PL2}, s48, v{PL2}
v_mul_f32 v{PL3}, s48, v{PL3}
v_mul_f32 v{PL4}, s48, v{PL4}
v_mul_f32 v{PL5}, s48, v{PL5}
ds_write_b32 v{tB}, v{PL2}
ds_write_b32 v{tB}, v{PL3} offset:768
ds_write_b32 v{tB}, v{PL4} offset:1536
ds_write_b32 v{tB}, v{PL5} offset:2304
L_a1:
s_waitcnt vmcnt(11)
ds_write_b32 v{vFw}, v{vFw}
''')
stamp()
poll('L_pw', tF, 0, PL)
stamp()
for l in wtr_l(WQ, tTq, 0) + wtr_l(WK, tTq, 3072) + wtr_l(WR, tTr, 0): A(l)
stamp()
B('''
s_waitcnt vmcnt(8)
ds_write_b32 v{vFw}, v{vFw} offset:16
''')
if PRIOA: A('s_setprio 1')
poll('L_px', tF, 16, PL)
stamp()
flush()
for l in xread_l(0, XF[0]) + xread_l(1, XF[1]): A(l)

slow = []
def check(name, off, tmp, rd, wr):
    slow.append(F('''L_s%s:
ds_read_b32 v%d, v{vFl} offset:%d
s_waitcnt lgkmcnt(0)
v_cmp_eq_u32 vcc, 0, v%d
s_cbranch_vccnz L_s%s
s_branch L_k%s''' % (name, tmp, off, tmp, name, name)))
    return [Node(F('ds_read_b32 v%d, v{vFl} offset:%d' % (tmp, off)), rd=rd),
            Node('v_cmp_eq_u32 vcc, 0, v%d\ns_cbranch_vccnz L_s%s\nL_k%s:' % (tmp, name, name), wr=wr)]

def sregs(tq): return [SB[(tq, tk)] + r for tk in range(4) for r in range(4) if not ((tk & 1) and r == 3)]
TAGS = {}
def region1(kind):
    N = []
    def n(t, tag=None, **k):
        X = Node(t, **k); N.append(X)
        if tag: TAGS[id(X)] = tag
        return X
    def cvt(t):
        a = ACC[t & 1]; q = Qf + t * 4; k = Kf + t * 4
        n(pk(q, a, a + 1)); n(pk(q + 1, a + 2, a + 3)); n(pk(k, a + 4, a + 5)); n(pk(k + 1, a + 6, a + 7))
        n(pk(q + 2, a + 8, a + 9)); n(pk(k + 2, a + 10, a + 11)); n('v_permlane32_swap_b32 v%d, v%d' % (q + 2, k + 2))
    if kind == 'A0':
        for l in gather_l(): n(l)
        allb = set(range(BIAS, BIAS + 36))
        n(ymask('A'), rd=allb, wr=allb, raw=True, cost=8)
    for t in range(4):
        a = ACC[t & 1]; x = XF[t & 1]
        if t >= 2:
            for l in xread_l(t, x): n(l)
        for s in range(3):
            n(mf(a, WQ + s * 4, x + s * 4, a if s else None))
            n(mf(a + 4, WK + s * 4, x + s * 4, a + 4 if s else None))
            n(mf(a + 8, WR + s * 4, x + s * 4, a + 8 if s else None), wr=(['p1'] if (t, s) == (3, 2) else ['p0'] if (t, s) == (2, 0) else []), tag=('p1' if (t, s) == (3, 2) else None))
        cvt(t)
    if kind == 'A0':
        n(F('s_waitcnt vmcnt(0)\nds_write_b32 v{vFw}, v{vFw} offset:32'), rd=['p0'], wr=['xbw'])
        N.extend(check('xb', 32, 255, ['xbw'], ['xb']))
        for l in wtr_l(WV0, tTq, 6144) + wtr_l(WV1, tTr, 6144): n(l, rd=['xb'])
        for i in range(12): n('v_and_b32 v%d, v%d, v%d' % (WV1 + i, WV1 + i, tMask))
    else:
        n(F('s_cmp_eq_u32 s60, 0\ns_cbranch_scc0 L_d2\ns_waitcnt vmcnt(0)\nL_d2:\nds_write_b32 v{vFw}, v{vFw} offset:48'), rd=['p1'], wr=['d2w'])
    def smf(tq, tk, **k):
        n(mf(SB[(tq, tk)], Kf + tk * 4, Qf + tq * 4, bidx((tq >> 1) - (tk >> 1), (tq & 1) - (tk & 1))), **k)
    for tq in range(3):
        for tk in range(3): smf(tq, tk)
    for tq in range(3): smf(tq, 3)
    for tk in range(4): smf(3, tk, tag=('s' if tk == 3 else None), wr=(['s'] if tk == 3 else []))
    for t in range(4):
        a = VA[t & 1]
        for l in xread_l(t, XV): n(l)
        for s in range(3):
            n(mf(a, XV + s * 4, WV0 + s * 4, a if s else None))
            n(mf(a + 4, XV + s * 4, WV1 + s * 4, a + 4 if s else CV1), tag=('v' if (t, s) == (3, 2) else None))
        for d in range(2):
            v = Vf + (d * 2 + (t >> 1)) * 4 + (t & 1) * 2
            n(pk(v, a + d * 4, a + d * 4 + 1)); n(pk(v + 1, a + d * 4 + 2, a + d * 4 + 3))
    for tq in range(4):
        m = M_ + tq; x = Qf + tq * 4; regs = sregs(tq)
        n('v_max3_f32 v%d, v%d, v%d, v%d' % (m, regs[0], regs[1], regs[2]))
        for i in range(3, 13, 2): n('v_max3_f32 v%d, v%d, v%d, v%d' % (m, m, regs[i], regs[i + 1]))
        n('v_max_f32 v%d, v%d, v%d' % (m, m, regs[13]))
        n('ds_swizzle_b32 v%d, v%d offset:0x401F' % (x, m))
        n('v_max_f32 v%d, v%d, v%d' % (m, m, x))
        n('ds_bpermute_b32 v%d, v%d, v%d' % (x + 1, vB32, m))
        n('v_max_f32 v%d, v%d, v%d' % (m, m, x + 1))
        n('v_mul_f32 v%d, s43, v%d' % (m, m))
    if kind == 'A0':
        N.extend(check('d1', 48, Qf + 2, ['s'], ['d1']))
    for tq in range(4):
        m = M_ + tq; regs = sregs(tq)
        for r in regs:
            n('v_fma_f32 v%d, v%d, s43, -v%d' % (r, r, m))
            n('v_exp_f32 v%d, v%d' % (r, r))
        for pp in range(2):
            b0 = SB[(tq, 2 * pp)]; b1 = SB[(tq, 2 * pp + 1)]
            n(pk(b0, b0, b0 + 1)); n(pk(b0 + 1, b0 + 2, b0 + 3)); n(pk(b0 + 2, b1, b1 + 1)); n(pk(b0 + 3, b1 + 2, None), tag=('e%d' % tq if pp else None))
        o = VA[tq & 1]; w = Kf + tq * 4
        for pp in range(2):
            for d in range(2):
                n(mf(o + d * 4, Vf + (d * 2 + pp) * 4, SB[(tq, 2 * pp)], o + d * 4 if pp else None))
        n('v_permlane32_swap_b32 v%d, v%d' % (o + 6, o + 4))
        n('v_permlane32_swap_b32 v%d, v%d' % (o + 7, o + 5))
        n('v_rcp_f32 v%d, v%d' % (o + 5, o + 4))
        for i in (0, 1, 2, 3, 6, 7): n('v_mul_f32 v%d, v%d, v%d' % (o + i, o + i, o + 5))
        n(pk(w, o, o + 1)); n(pk(w + 1, o + 2, o + 3)); n(pk(w + 2, o + 6, o + 7))
        n('ds_write_b64 v%d, %s offset:%d' % (vOw0, q2(w), tq * 3072), wr=['ow%d' % tq])
        n('ds_write_b32 v%d, v%d offset:%d' % (vOw1, w + 2, tq * 3072), wr=['ox%d' % tq])
    n(F('ds_write_b32 v{vFw}, v{vFw} offset:80'), rd=['ow%d' % i for i in range(4)] + ['ox%d' % i for i in range(4)] + ['d2w'], bias=400, tag='of')
    for T in range(3):
        for s in range(3):
            for half in range(2):
                n('ds_read_b64_tr_b16 %s, v%d offset:%d' % (q2(WoF[T * 3 + s] + half * 2), vTo[T], s * 6144 + half * 256), rd=['d1'])
    if kind == 'A0':
        N.extend(check('d2', 64, Qf + 6, ['ow1'], ['d2']))
    return N
def region2(kind):
    N = []
    def n(t, tag=None, **k):
        X = Node(t, **k); N.append(X)
        if tag: TAGS[id(X)] = tag
        return X
    for j in range(2):
        for s in range(3):
            n('ds_read_b128 %s, v%d offset:%d' % (q4(OF[j * 3 + s]), vOr, j * 3072 + s * 1024))
    for j in range(2):
        for T in range(3):
            for s in range(3):
                a = OACC[j * 3 + T]
                n(mf(a, WoF[T * 3 + s], OF[j * 3 + s], a if s else None), tag=('om' if (j, T, s) == (1, 2, 2) else None))
        for T in range(3):
            a = OACC[j * 3 + T]
            n(pk(ST[j] + T * 2, a, a + 1)); n(pk(ST[j] + T * 2 + 1, a + 2, a + 3))
        n('buffer_store_dwordx4 %s, v%d, s[32:35], s%d offen%s' % (q4(ST[j]), [vSo0, vSo1][j], 41 + j, STM))
        n('buffer_store_dwordx2 %s, v%d, s[32:35], s%d offen offset:16%s' % (q2(ST[j] + 4), [vSo0, vSo1][j], 41 + j, STM))
    n(F('v_add_u32 v{vXr}, 24576, v{vXr}'))
    for l in xread_l(0, XF[0]) + xread_l(1, XF[1]): n(l)
    return N
def emit(N, name):
    out, t = schedule(N, name)
    for tt, X in out:
        if X.raw: A.rawmode = True
        A('\n'.join(X.lines))
        A.rawmode = False
        if id(X) in TAGS: stamp()
def rnd(kind):
    stamp()
    emit(region1(kind), kind + '.r1')
    stamp()
    poll('L_po' + kind, vFl, 80, Qf)
    stamp()
    emit(region2(kind), kind + '.r2')
    stamp()
    flush()
rnd('A0')
B('''
L_sw:
s_mov_b32 s60, 1
s_mov_b32 s41, s62
s_mov_b32 s42, s63
v_subrev_u32 v{vOw0}, %d, v{vOw0}
v_subrev_u32 v{vOw1}, %d, v{vOw1}
v_subrev_u32 v{vOr}, %d, v{vOr}
v_add_u32 v{vFw}, 32, v{vFw}
v_add_u32 v{vFl}, 32, v{vFl}
''' % ((L_OB - L_X,) * 3))
A.rawmode = True
B('s_cmp_eq_u32 s40, 29\ns_cbranch_scc0 L_R')
for du in (-1, 0, 1):
    for dt in (-1, 1):
        for r in range(4):
            A('v_add_f32 v%d, %s, v%d' % (bidx(du, dt) + r, 's57' if du else 's49', bidx(du, dt) + r))
A.rawmode = False
A('L_R:')
A.fence()
rnd('R')
B('''
s_cmp_eq_u32 s60, 0
s_cbranch_scc1 L_sw
''')
if STAMP:
    A('s_waitcnt vmcnt(0)')
    stamp(); stamp(True); flush()
A('s_endpgm')
A.fence()
A('L_B0:')
_st[0] = 2
for l in setup: B(l)
stamp()
poll('L_pwb', tF, 0, PL)
stamp()
for c in range(3):
    pre = 's_mul_i32 s14, s37, 3072\ns_add_u32 s15, s14, {L_WO}\n' if c == 0 else ''
    B(pre + 's_add_u32 m0, s15, %d\ns_add_u32 s54, s14, %d\nbuffer_load_dwordx4 v{tWo}, s[24:27], s54 offen lds' % (c * 1024, c * 64))
B('''
s_mul_i32 s14, s50, 3072
s_lshl_b32 s15, s51, 10
s_add_u32 s15, s15, s14
s_add_u32 m0, s15, %d
s_lshl_b32 s15, s51, 6
s_add_u32 s15, s15, s14
s_add_u32 s54, s15, 12288
buffer_load_dwordx4 v{tWo}, s[24:27], s54 offen lds
''' % (L_WO + 12 * 1024))
for d in xdma_l(24576, 's45', 2688) + xdma_l(36864, 's46'): B(d)
stamp()
for l in wtr_l(WQ, tTq, 0) + wtr_l(WK, tTq, 3072) + wtr_l(WR, tTr, 0) + gather_l(): A(l)
A.rawmode = True; A(ymask('B')); A.rawmode = False
B('''
s_waitcnt vmcnt(6)
ds_write_b32 v{vFw}, v{vFw} offset:32
''')
stamp()
poll('L_pd1', tF, 48, PL)
poll('L_pxb', tF, 32, PL)
stamp()
if SOLO:
    B('s_waitcnt vmcnt(0)\nds_write_b32 v{vFw}, v{vFw} offset:48\ns_waitcnt lgkmcnt(0)\ns_endpgm')
if PRIOB: A('s_setprio 1')
for l in wtr_l(WV1, tTr, 6144) + wtr_l(WV0, tTq, 6144) + xread_l(0, XF[0]) + xread_l(1, XF[1]): A(l)
for i in range(12): A('v_and_b32 v%d, v%d, v%d' % (WV1 + i, WV1 + i, tMask))
flush()
A('s_branch L_R')
A.rawmode = True
for s_ in slow: A(s_)
A.rawmode = False
A('L_end:')
A('s_endpgm')
body = A.finalize()

hdr = open('standalone__window_attn_swin__vision.s.ref').read().split('\n')
hdr = [l for l in hdr if l.startswith(';') and '@launch' not in l]
out = '\n'.join(hdr) + '\n; @launch grid=(256,1,1) block=(512,1,1) lds=%d\n' % L_SIZE
out += '''.amdgcn_target "amdgcn-amd-amdhsa--gfx950"
.text
.globl standalone__window_attn_swin__vision_kernel
.p2align 8
.type standalone__window_attn_swin__vision_kernel,@function
standalone__window_attn_swin__vision_kernel:
''' + body + '''.section .rodata,"a"
.p2align 6
.amdhsa_kernel standalone__window_attn_swin__vision_kernel
  .amdhsa_next_free_vgpr 256
  .amdhsa_next_free_sgpr 102
  .amdhsa_accum_offset 256
  .amdhsa_group_segment_fixed_size 0
  .amdhsa_kernarg_size 72
  .amdhsa_user_sgpr_count 2
  .amdhsa_user_sgpr_kernarg_segment_ptr 1
  .amdhsa_system_sgpr_workgroup_id_x 1
.end_amdhsa_kernel
'''
dst = sys.argv[1]
open(dst, 'w').write(out)
print('instructions:', len(body.split('\n')), 'nop states:', A.nnops)
```

```python
import re
VR = re.compile(r'\bv\[(\d+):(\d+)\]|\bv(\d+)\b')
TRANS = ('v_exp_f32', 'v_rcp_f32', 'v_log_f32', 'v_rsq_f32', 'v_sqrt_f32')

def vregs(tok):
    out = []
    for m in VR.finditer(tok):
        if m.group(1) is not None:
            out += list(range(int(m.group(1)), int(m.group(2)) + 1))
        else:
            out.append(int(m.group(3)))
    return out

def split_ops(s):
    out, depth, cur = [], 0, ''
    for ch in s:
        if ch == '[': depth += 1
        if ch == ']': depth -= 1
        if ch == ',' and depth == 0:
            out.append(cur.strip()); cur = ''
        else:
            cur += ch
    if cur.strip(): out.append(cur.strip())
    return out

SR = re.compile(r'\bs\[(\d+):(\d+)\]|\bs(\d+)\b|\b(vcc)\b')
def sregs_(tok):
    out = []
    for m in SR.finditer(tok):
        if m.group(1) is not None: out += list(range(int(m.group(1)), int(m.group(2)) + 1))
        elif m.group(3) is not None: out.append(int(m.group(3)))
        else: out.append('vcc')
    return out

class Ins:
    __slots__ = ('text', 'op', 'kind', 'rd', 'wr', 'rdA', 'rdC', 'states', 'raw', 'swr', 'srd', 'np', 't')
    def __init__(self, text):
        self.text = text
        self.raw = False
        self.t = None
        t = text.split(';')[0].strip()
        parts = t.split(None, 1)
        self.op = parts[0] if parts else ''
        ops = split_ops(parts[1]) if len(parts) > 1 else []
        op = self.op
        self.rd, self.wr, self.rdA, self.rdC = set(), set(), set(), set()
        self.states = 1
        self.np = 8 if '32x32' in op else 4
        self.swr, self.srd = set(), set()
        if op.startswith('v_cmp') or op.startswith('v_readfirstlane') or op.startswith('v_readlane'):
            self.swr = set(sregs_(ops[0]))
            for o in ops[1:]: self.srd |= set(sregs_(o))
        elif op.startswith('v_') or op.startswith('buffer_'):
            for o in ops[1:]: self.srd |= set(sregs_(o.split(' ')[0]))
        if op.endswith(':') or op.startswith('.') or op == '':
            self.kind = 'label'; self.states = 0
        elif op == 's_nop':
            self.kind = 'nop'; self.states = int(ops[0], 0) + 1
        elif op.startswith('v_mfma'):
            self.kind = 'mfma'
            self.wr = set(vregs(ops[0])); self.rdA = set(vregs(ops[1])) | set(vregs(ops[2])); self.rdC = set(vregs(ops[3]))
            self.rd = self.rdA | self.rdC
        elif op.startswith('v_permlane'):
            self.kind = 'perm'
            self.wr = set(vregs(ops[0])) | set(vregs(ops[1])); self.rd = set(self.wr)
        elif op.startswith('v_readfirstlane') or op.startswith('v_readlane'):
            self.kind = 'rdlane'; self.rd = set(vregs(ops[1]))
        elif op.startswith('v_cmp'):
            self.kind = 'valu'
            for o in ops[1:]: self.rd |= set(vregs(o))
        elif op.startswith('v_'):
            self.kind = 'trans' if op.replace('_e32', '').replace('_e64', '') in TRANS else 'valu'
            self.wr = set(vregs(ops[0]))
            for o in ops[1:]: self.rd |= set(vregs(o))
            if op.startswith('v_fmac') or op.startswith('v_pk_fmac') or op.startswith('v_writelane'): self.rd |= self.wr
        elif op.startswith('ds_read') :
            self.kind = 'dsr'; self.wr = set(vregs(ops[0])); self.rd = set(vregs(ops[1]))
            if 'd16' in op: self.rd |= self.wr
        elif op.startswith('ds_bpermute') or op.startswith('ds_permute'):
            self.kind = 'dsr'; self.wr = set(vregs(ops[0])); self.rd = set(vregs(ops[1])) | set(vregs(ops[2]))
        elif op.startswith('ds_swizzle'):
            self.kind = 'dsr'; self.wr = set(vregs(ops[0])); self.rd = set(vregs(ops[1]))
        elif op.startswith('ds_add_rtn'):
            self.kind = 'dsr'; self.wr = set(vregs(ops[0])); self.rd = set(vregs(ops[1])) | set(vregs(ops[2]))
        elif op.startswith('ds_'):
            self.kind = 'dsw'
            for o in ops: self.rd |= set(vregs(o))
        elif op.startswith('buffer_load') and ' lds' in (' ' + t):
            self.kind = 'dma'; self.rd = set(vregs(ops[0]))
        elif op.startswith('buffer_load') or op.startswith('global_load'):
            self.kind = 'vld'; self.wr = set(vregs(ops[0])); self.rd = set(vregs(ops[1]))
        elif op.startswith('buffer_store') or op.startswith('global_store'):
            self.kind = 'vst'
            for o in ops[:2]: self.rd |= set(vregs(o))
        elif op.startswith('s_waitcnt'):
            self.kind = 'wait'
        else:
            self.kind = 'salu'

SAFE = 150
class Asm:
    def __init__(self):
        self.ins = []
        self.rawmode = False
    def __call__(self, text):
        for line in text.strip('\n').split('\n'):
            line = line.strip()
            if line:
                I = Ins(line); I.raw = self.rawmode
                self.ins.append(I)
    def add(self, I):
        I.raw = self.rawmode; self.ins.append(I)
    def fence(self):
        self('s_waitcnt lgkmcnt(0)'); self('s_nop 7'); self('s_nop 1')
    def finalize(self):
        out = []
        pos = 0
        lastw = {}
        lastC = {}
        lastst = {}
        lasts = {}
        lgkm = []
        nnops = 0
        lgt = []
        for I in self.ins:
            if I.raw:
                out.append(I); continue
            need = 0
            def req(p, n):
                nonlocal need
                need = max(need, n - (pos - p - 1))
            touch = I.rd | I.wr
            idx = -1
            for j, d in enumerate(lgkm):
                if d & touch: idx = j
            if I.kind == 'wait' and 'lgkmcnt' in I.text:
                n = int(re.search(r'lgkmcnt\((\d+)\)', I.text).group(1))
                lgkm = lgkm[len(lgkm) - n:] if n < len(lgkm) else lgkm
                if n == 0: lgkm = []
            elif idx >= 0:
                if I.t is not None:
                    while idx + 1 < len(lgkm) and lgt[len(lgt) - len(lgkm) + idx + 1] is not None and lgt[len(lgt) - len(lgkm) + idx + 1] <= I.t - SAFE: idx += 1
                n = len(lgkm) - 1 - idx
                n = min(n, 15)
                out.append(Ins('s_waitcnt lgkmcnt(%d)' % n)); pos += 1
                lgkm = lgkm[len(lgkm) - n:] if n > 0 else []
            for r in I.srd:
                if r in lasts: req(lasts[r], 5 if I.op.startswith('buffer_') else 2)
            for r in I.rd:
                if r in lastw:
                    p, k, D, np_ = lastw[r]
                    if k == 'mfma':
                        if I.kind == 'mfma':
                            if r in I.rdA: req(p, np_ + 4)
                            if r in I.rdC: req(p, 0 if I.rdC == D else np_ + 2)
                        else: req(p, np_ + 4)
                    elif k in ('valu', 'trans', 'perm'):
                        if I.kind == 'mfma': req(p, 2)
                        elif I.kind == 'perm': req(p, 2)
                        elif I.kind == 'rdlane': req(p, 1)
                        elif k == 'trans' and I.kind in ('valu',): req(p, 1)
                        elif k == 'trans' and I.kind in ('dsw', 'vst', 'dsr', 'dma', 'vld'): req(p, 1)
            for r in I.wr:
                if r in lastw:
                    p, k, D, np_ = lastw[r]
                    if k == 'mfma' and not (I.kind == 'mfma' and I.rdC == D and I.wr == D): req(p, np_ + 4)
                if r in lastC and I.kind in ('valu', 'trans', 'perm'): req(lastC[r][0], lastC[r][1] - 1)
                if r in lastst: req(lastst[r], 2)
            if need > 0:
                nnops += need
                while need > 0:
                    n = min(need, 16)
                    out.append(Ins('s_nop %d' % (n - 1))); pos += n; need -= n
            out.append(I)
            p = pos
            pos += I.states
            for r in I.wr:
                lastw[r] = (p, I.kind, I.wr, I.np)
            for r in I.swr: lasts[r] = p
            if I.kind == 'mfma':
                for r in I.rdC: lastC[r] = (p, I.np)
            if I.kind == 'vst':
                for r in I.rd: lastst[r] = p
            if I.kind == 'dsr': lgkm.append(set(I.wr)); lgt.append(I.t)
            if I.kind == 'dsw': lgkm.append(set()); lgt.append(I.t)
        self.nnops = nnops
        return '\n'.join(('    ' + i.text) if i.kind != 'label' else i.text for i in out) + '\n'

class Node:
    __slots__ = ('lines', 'ins', 'rd', 'wr', 'cost', 'kind', 'succ', 'npred', 'prio', 'ready', 'idx', 'lat', 'bias', 'raw', 'after', 'ph')
    def __init__(self, text, rd=(), wr=(), bias=0, cost=None, raw=False, after=()):
        self.raw = raw; self.after = list(after); self.ph = 0
        self.lines = [l.strip() for l in text.strip('\n').split('\n') if l.strip()]
        self.ins = [Ins(l) for l in self.lines]
        self.rd = set(rd); self.wr = set(wr)
        c = 0
        for I in self.ins:
            self.rd |= I.rd; self.wr |= I.wr
            c += {'mfma': 8, 'trans': 8, 'perm': 8, 'label': 0, 'vst': 8, 'dsw': 6}.get(I.kind, 4)
        self.cost = c if cost is None else cost
        ks = [I.kind for I in self.ins]
        self.kind = 'mfma' if ks == ['mfma'] else ('dsr' if 'dsr' in ks else ks[-1])
        self.succ = []; self.npred = 0; self.prio = 0; self.ready = 0; self.bias = bias

LAT_LDS = 120
def schedule(nodes, verbose=None, t0=0):
    n = len(nodes)
    for i, N in enumerate(nodes): N.idx = i; N.succ = []; N.npred = 0; N.ready = t0; N.lat = 0
    lastw = {}; readers = {}
    edges = {}
    def edge(a, b, lat, st=0):
        if a is b: return
        k = (a.idx, b.idx)
        o = edges.get(k, (0, 0))
        edges[k] = (max(o[0], lat), max(o[1], st))
    for N in nodes:
        for P, l_ in N.after: edge(P, N, l_)
        for r in N.rd:
            if r in lastw:
                P = lastw[r]; st = 0
                if isinstance(r, str): lat = P.cost
                elif P.kind == 'mfma':
                    I = N.ins[0]
                    np_ = P.ins[0].np
                    if N.kind == 'mfma' and r in I.rdC and r not in I.rdA: lat = 4 * np_
                    else: lat = 4 * np_ + 12 + (12 if np_ == 8 else 0); st = np_ + 4
                elif P.kind == 'dsr': lat = LAT_LDS
                elif N.kind in ('mfma', 'perm'): lat = P.cost; st = 2
                elif P.kind == 'trans': lat = P.cost; st = 1
                else: lat = P.cost
                edge(P, N, lat, st)
        for r in N.wr:
            if r in lastw:
                P = lastw[r]
                if P.kind == 'mfma' and not (N.kind == 'mfma' and r in N.ins[0].rdC): edge(P, N, 4 * P.ins[0].np + 12, P.ins[0].np + 4)
                elif P.kind == 'dsr': edge(P, N, LAT_LDS)
                else: edge(P, N, P.cost)
            for P in readers.get(r, ()):
                st = 0
                if P.kind == 'mfma' and N.kind in ('valu', 'trans', 'perm') and r in P.ins[0].rdC: st = P.ins[0].np - 1
                if P.kind == 'vst': st = 2
                edge(P, N, P.cost, st)
        for r in N.rd: readers.setdefault(r, []).append(N)
        for r in N.wr: lastw[r] = N; readers[r] = []
    for (a, b), (lat, st) in edges.items():
        nodes[a].succ.append((nodes[b], lat, st)); nodes[b].npred += 1
    for N in reversed(nodes):
        N.prio = N.cost + N.bias
        for S, lat, st in N.succ: N.prio = max(N.prio, max(lat, N.cost + 4 * st) + S.prio + N.bias)
    avail = [N for N in nodes if N.npred == 0]
    t = t0; mfree = 0; out = []; stall = 0; pos = 0
    while avail:
        def est(N):
            e = max(t + 4 * max(0, N.lat - pos), N.ready)
            if N.kind == 'mfma': e = max(e, mfree)
            return e
        now = [N for N in avail if est(N) <= t]
        if now:
            N = max(now, key=lambda X: (X.prio, -X.idx))
        else:
            e = min(est(X) for X in avail)
            N = max([X for X in avail if est(X) == e], key=lambda X: (X.prio, -X.idx))
            stall += e - t; t = e
            pos = max(pos, N.lat)
        avail.remove(N); out.append((t, N))
        if N.kind == 'mfma': mfree = t + 4 * N.ins[0].np
        if not N.raw: pos += sum(1 for I in N.ins if I.kind != 'label')
        for S, lat, st in N.succ:
            S.ready = max(S.ready, t + lat); S.npred -= 1
            S.lat = max(S.lat, pos + st)
            if S.npred == 0: avail.append(S)
        t += N.cost
    assert len(out) == n
    if verbose: print('%s: %d nodes, est %d cycles, stall %d' % (verbose, n, t - t0, stall))
    return out, t
```

```python
from asmlib import Ins, Node
COST = {'ds_write_b128': 20, 'ds_write_b64': 12, 'ds_add_u32': 8, 'ds_write_b32': 8}
PRM = dict(lat=110, lam=6, boost=200, stc=30, brc=10, soft=8, php=1)
def icost(I):
    if I.kind == 'label': return 0
    if I.kind in ('mfma', 'trans', 'perm'): return 8
    if I.kind == 'vst': return PRM['stc']
    if I.op.startswith('s_cbranch'): return PRM['brc']
    return COST.get(I.op, 4)
def isv(I): return I.kind in ('valu', 'trans', 'perm', 'rdlane')
def schedule(nodes, verbose=None):
    LAT = PRM['lat']; lam = PRM['lam']
    n = len(nodes)
    for i, N in enumerate(nodes):
        N.idx = i; N.succ = []; N.npred = 0; N.ready = 0; N.lat = 0
        N.cost = sum(icost(I) for I in N.ins)
    lastw = {}; readers = {}; edges = {}
    def edge(a, b, lat, st=0):
        if a is b: return
        k = (a.idx, b.idx); o = edges.get(k, (0, 0)); edges[k] = (max(o[0], lat), max(o[1], st))
    for N in nodes:
        for P, l_ in N.after: edge(P, N, l_)
        for r in N.rd:
            if r in lastw:
                P = lastw[r]; st = 0
                if isinstance(r, str): lat = P.cost
                elif P.kind == 'mfma':
                    I = N.ins[0]; np_ = P.ins[0].np
                    if N.kind == 'mfma' and r in I.rdC and r not in I.rdA: lat = 4 * np_
                    else: lat = 8 + 4 * (np_ + 4); st = np_ + 4
                elif P.kind == 'dsr': lat = LAT
                elif N.kind in ('mfma', 'perm'): lat = P.cost + 8; st = 2
                elif P.kind == 'trans': lat = P.cost + 4; st = 1
                else: lat = P.cost
                edge(P, N, lat, st)
        for r in N.wr:
            if r in lastw:
                P = lastw[r]
                if P.kind == 'mfma' and not (N.kind == 'mfma' and r in N.ins[0].rdC): edge(P, N, 8 + 4 * (P.ins[0].np + 4), P.ins[0].np + 4)
                elif P.kind == 'dsr': edge(P, N, LAT)
                else: edge(P, N, P.cost)
            for P in readers.get(r, ()):
                st = 0
                if P.kind == 'mfma' and N.kind in ('valu', 'trans', 'perm') and r in P.ins[0].rdC: st = P.ins[0].np - 1
                if P.kind == 'vst': st = 2
                edge(P, N, P.cost + 4 * st, st)
        for r in N.rd: readers.setdefault(r, []).append(N)
        for r in N.wr: lastw[r] = N; readers[r] = []
    for (a, b), (lat, st) in edges.items():
        nodes[a].succ.append((nodes[b], lat, st)); nodes[b].npred += 1
    for N in reversed(nodes):
        N.prio = N.cost + N.bias
        for S, lat, st in N.succ:
            if PRM['php'] and S.ph > N.ph: N.prio = max(N.prio, lat + N.bias)
            else: N.prio = max(N.prio, lat + S.prio + N.bias)
    avail = [N for N in nodes if N.npred == 0]
    t = 0; mfree = 0; lastv = -99; out = []; stall = {}; pos = 0
    lg = []
    import collections
    early = lambda N: N.ins[0].kind == 'dsr' or N.ins[0].op.startswith(('v_cmp', 's_cbranch'))
    left = collections.Counter(N.ph for N in nodes if not early(N))
    while avail:
        best = None
        cur = min(p_ for p_, c_ in left.items() if c_ > 0) if any(left.values()) else 99
        for N in avail:
            I0 = N.ins[0]
            nxt = N.ph > cur
            softok = (cur % 2 == 0 and left[cur] <= PRM['soft'] and N.kind != 'mfma')
            if N.ph > cur + (1 if (early(N) or softok) else 0): continue
            w = 0
            touch = N.rd | N.wr
            for d, ti in lg:
                if d & touch: w = 4; break
            e = max(t + w, N.ready, t + 4 * max(0, N.lat - pos))
            why = 'dep'
            if N.kind == 'mfma' and mfree > e: e = mfree; why = 'pipe'
            isl = I0.kind in ('dsr', 'dsw', 'vst')
            if isl and lastv + 12 > e: e = lastv + 12; why = 'v2l'
            sl = e - t - w
            sc = N.prio - lam * sl
            if I0.kind == 'dsr' and sl == 0: sc += PRM['boost']
            if nxt: sc -= PRM.get('nxp', 1000) if not early(N) else PRM.get('nxd', 300)
            key = (sc, -N.idx)
            if best is None or key > best[0]: best = (key, N, e, w, why, sl)
        _, N, e, w, why, sl = best
        if sl: stall[why] = stall.get(why, 0) + sl
        if w:
            touch = N.rd | N.wr
            idx = max(j for j, (d, ti) in enumerate(lg) if d & touch)
            while idx + 1 < len(lg) and lg[idx + 1][1] <= e - PRM.get('safe', 150): idx += 1
            lg = lg[idx + 1:]; pos += 1
        pos = max(pos, N.lat)
        t = e
        avail.remove(N); out.append((t, N))
        if not early(N): left[N.ph] -= 1
        if N.kind == 'mfma': mfree = t + 4 * N.ins[0].np
        tt = t
        for I in N.ins:
            I.t = tt
            c = icost(I)
            if isv(I): lastv = tt + c - 4
            if I.kind == 'dsr': lg.append((set(I.wr), tt))
            if I.kind == 'dsw': lg.append((set(), tt))
            if I.kind != 'label': pos += 1
            tt += c
        for S, lat, st in N.succ:
            S.ready = max(S.ready, t + lat); S.npred -= 1
            S.lat = max(S.lat, pos + st)
            if S.npred == 0: avail.append(S)
        t += N.cost
    assert len(out) == n
    if verbose: print('%s: %d nodes, est %d cycles, stall %s' % (verbose, n, t, stall))
    return out, t
```

```python
import struct, sys, math
import asmlib
from asmlib import Asm, Node
import sched3 as sched2
from sched3 import schedule
def f32(x): return '0x%08x' % struct.unpack('<I', struct.pack('<f', x))[0]
SCALE = 24 ** -0.5
C_EXP = SCALE * math.log2(math.e)
INV = 24 ** 0.5
STAMP = '--stamp' in sys.argv
XNT = ' nt'
STM = ' nt'
def opt(name, dflt):
    for a in sys.argv:
        if a.startswith('--%s=' % name): return int(a.split('=')[1])
    return dflt
sched2.PRM['nxp'] = 1000; sched2.PRM['nxd'] = 300
for k_ in ('lat', 'lam', 'boost', 'stc', 'soft', 'php', 'nxp', 'nxd'): sched2.PRM[k_] = opt(k_, sched2.PRM[k_])
asmlib.SAFE = sched2.PRM['safe'] = opt('safe', 150)
SPEC = opt('spec', 1)
PA = opt('pa', 1)
PM = opt('pm', 2)
PB_ = opt('pb', 0)
SYNC = opt('sync', 60)
EBIAS = opt('ebias', 16)
PF = opt('pf', 1)
BAR = opt('bar', 0)
LATE = opt('late', 2)

BP, CS, HS = 24, 1472, 5888
L_BI = 640
L_W = 24320
L_WO = L_W + 55296
L_R = L_WO + 18432
RS = 8224
L_SIZE = L_R + 8 * RS
assert L_SIZE == 163840
OOBL = 0x28000
PHS = opt('phs', 3)
QS = opt('qs', 0)
if QS: INV = math.log2(math.e)
MK = 'c310' if QS else 'c3f5'
LD = opt('ld', 2)
EO = 24
VS = [6144, 1536, 3616] if PHS == 3 else [6144, 0, 3072]
KO = [1536, 3072, 4608, 0] if PHS == 3 else [0, 1536, 3072, 4608]
EP, EA, EB, EC, ED, EW = [4 * e for e in range(6)]

(vXr, vWe, vTo, vBi, vKw16, vKw8, vKr16, vKr8, vV0, vV1, vV2, vV3, vSoA, vSoB, vFg, vPw, vAd, vOne, T0, T1, T2, Mx0, Mx1) = range(1, 24)
vV = [vV0, vV1, vV2, vV3]
vWd = 0
vAdD = 190
XF = 24
WB = 48
ACC = [80, 96, 112]
QF = [128, 136, 144, 152]
OP = 128
KF = [160, 168]
VF = 176
SB = [[192, 208], [224, 240]]
tL, tN, tH, tG, tR, tCc, tX, tXB, tA, tB, tC, tD, tE, tO, tP, tQ, tRp = range(192, 209)
Z = 212
PL = 216
def qn(b, n): return 'v[%d:%d]' % (b, b + n - 1)

A = Asm()
ADD0 = '' if LD == 2 else 'v_mov_b32 v%d, %d\n' % (vAdD, OOBL)
SWAP = 's_xor_b32 s36, s36, 4\n' if opt('swap', 1) else ''
_st = [0]
def stamp(real=False):
    if not STAMP: return
    k = _st[0]; _st[0] += 1
    assert k < 16
    A('%s s[%d:%d]' % ('s_memrealtime' if real else 's_memtime', 64 + 2 * k, 65 + 2 * k))
class D(dict):
    def __missing__(self, k): return globals()[k]
def F(t): return t.format_map(D())
def B(t): A(F(t))
def m32(d, a, b, c): return 'v_mfma_f32_32x32x16_bf16 %s, %s, %s, %s' % (qn(d, 16), qn(a, 4), qn(b, 4), qn(c, 16) if c is not None else '0')
def m8(d, a, b, c): return 'v_mfma_f32_32x32x8_bf16 %s, %s, %s, %s' % (qn(d, 16), qn(a, 2), qn(b, 2), qn(c, 16))
def pk(d, a, b_): return 'v_cvt_pk_bf16_f32 v%d, v%d, v%d' % (d, a, b_)
Z1, Z2, Z3 = Z + 1, Z + 2, Z + 3
PL1, PL2, PL3, PL4, PL5 = range(PL + 1, PL + 6)

B('''
s_cmp_ge_u32 s2, 256
s_cbranch_scc1 L_end
''')
stamp(True); stamp()
B('''
s_load_dwordx2 s[16:17], s[0:1], 0
s_load_dwordx2 s[20:21], s[0:1], 8
s_load_dwordx2 s[28:29], s[0:1], 24
s_load_dwordx2 s[24:25], s[0:1], 16
s_load_dwordx2 s[32:33], s[0:1], 48
''')
if STAMP: B('s_load_dwordx2 s[96:97], s[0:1], 64\ns_mov_b32 s98, 0x200000\ns_mov_b32 s99, 0x00020000')
B('''
v_readfirstlane_b32 s36, v0
v_and_b32 v{tL}, 63, v0                  ; lane
v_mov_b32 v{Z}, 0
v_mov_b32 v{Z1}, 0
v_mov_b32 v{Z2}, 0
v_mov_b32 v{Z3}, 0
s_lshr_b32 s36, s36, 6                ; wave
{SWAP}s_mul_i32 s49, s36, 3040
v_lshl_add_u32 v{tA}, v{tL}, 4, s49
v_mul_u32_u24 v{tX}, 5, v{tL}
ds_write_b128 v{tA}, v[{Z}:{Z3}]
ds_write_b128 v{tA}, v[{Z}:{Z3}] offset:1024
ds_write_b128 v{tA}, v[{Z}:{Z3}] offset:2016
s_and_b32 s37, s36, 1                 ; t
s_lshr_b32 s38, s36, 1                ; i
v_lshrrev_b32 v{tX}, 6, v{tX}            ; tau
s_lshr_b32 s39, s2, 3                 ; wy
s_and_b32 s40, s2, 7
v_sub_u32 v{tX}, v{tL}, v{tX}
s_lshl2_add_u32 s40, s40, s38         ; wx
v_lshlrev_b32 v{tX}, 4, v{tX}
s_mul_i32 s41, s39, 7
v_mov_b32 v{tO}, 0x80000000
s_lshl2_add_u32 s41, s37, s41
v_cmp_gt_u32 vcc, 39, v{tL}
s_add_u32 s41, s41, 3
s_cmp_ge_u32 s41, 224
s_cselect_b32 s41, 0, s41
v_cndmask_b32 v{tXB}, v{tO}, v{tX}, vcc
s_mul_i32 s41, s41, 43008
s_mul_i32 s44, s40, 1344
s_add_u32 s44, s44, 576
s_add_u32 s45, s44, 768
s_cmp_eq_u32 s40, 31
s_cselect_b32 s45, 0, s45
s_add_u32 s44, s44, s41
s_add_u32 s45, s45, s41
s_mul_i32 s46, s36, {RS}
s_add_u32 s46, s46, {L_R}
s_mov_b32 s19, 0x00020000
s_mov_b32 s18, 9633792
s_mov_b32 s27, 0x00020000
s_mov_b32 s26, 18432
s_mov_b32 s62, -1
s_mov_b32 s63, 0xfffff
s_cmp_ge_u32 s36, 4
s_cbranch_scc1 L_g1
''')
def xrow(r, src=None):
    src = r if src is None else src
    t = 's_add_u32 m0, s46, %d\ns_add_u32 s54, s44, %s\nbuffer_load_dwordx4 v{tX}, s[16:19], s54 offen{XNT} lds\n' % (r * 1664, src * 43008 if isinstance(src, int) else src)
    t += 's_add_u32 m0, s46, %d\ns_add_u32 s54, s45, %s\nbuffer_load_dwordx4 v{tXB}, s[16:19], s54 offen{XNT} lds\n' % (r * 1664 + 832, src * 43008 if isinstance(src, int) else src)
    return t
def xa(r, src=None):
    src = r * 43008 if src is None else src
    return 's_add_u32 m0, s46, %d\ns_add_u32 s54, s44, %s\nbuffer_load_dwordx4 v{tX}, s[16:19], s54 offen{XNT} lds\n' % (r * 1664, src)
def xb(r, src=None):
    src = r * 43008 if src is None else src
    return 's_add_u32 m0, s46, %d\ns_add_u32 s54, s45, %s\nbuffer_load_dwordx4 v{tXB}, s[16:19], s54 offen{XNT} lds\n' % (r * 1664 + 832, src)
def wd(sl, sg, ks, dc=0):
    return 's_add_u32 m0, s%d, %d\ns_add_u32 s54, s%d, %d\nbuffer_load_dwordx4 v{tP}, s[20:23], s54 offen lds\n' % (sl, ks * 1024 + dc * 6144, sg, ks * 9216 + dc * 128)
X1 = 's_mov_b64 exec, s[62:63]\n'; X0 = 's_mov_b64 exec, -1\n'
WPAT = """v_lshrrev_b32 v{tB}, 3, v{tL}
v_and_b32 v{tC}, 7, v{tL}
v_mul_u32_u24 v{tB}, 1152, v{tB}
v_lshl_add_u32 v{tP}, v{tC}, 4, v{tB}    ; W voffset
s_mov_b32 s23, 0x00020000
s_mov_b32 s22, 55296
"""
B(WPAT + """s_lshl_b32 s49, s36, 9
v_lshl_add_u32 v{tRp}, v{tL}, 3, s49     ; rpb row 64 w + l
s_mov_b32 s31, 0x00020000
s_mov_b32 s30, 1352
s_lshl_b32 s49, s36, 10
s_add_u32 s49, s49, {L_W}
s_mul_i32 s50, s36, 9216
s_lshr_b32 s51, s36, 1
s_mul_i32 s52, s51, 9216
s_lshl_b32 s51, s51, 10
s_add_u32 s51, s51, {L_W}
s_mul_i32 s53, s37, 30720
s_add_u32 s53, s53, s51
s_mul_i32 s55, s37, 640
s_add_u32 s55, s55, s52
""" + X1 + 's_waitcnt lgkmcnt(0)\n' + xa(0) + X0 + 'buffer_load_dwordx2 v[{PL}:{PL1}], v{tRp}, s[28:31], 0 offen\n' + wd(49, 50, 0, 1) + wd(49, 50, 0, 6) + 's_barrier\n' + X1 + xb(0) + X0 + wd(49, 50, 0, 2) + wd(53, 55, 4, 1) + X1 + xa(1)
  + 's_cmp_eq_u32 s37, 1\ns_cbranch_scc1 L_x1\n' + xb(1) + xa(2) + xb(2) + xa(3) + xb(3) + X0 + 's_branch L_setup\nL_x1:\n' + X0 + wd(51, 52, 4, 2) + X1 + xb(1) + xa(2) + xb(2) + X0 + """
s_branch L_setup
L_g1:
""" + ("""s_cmp_lg_u32 s36, 5
s_cbranch_scc1 L_ncp
s_getpc_b64 s[56:57]
L_pc:
s_add_u32 s56, s56, L_setup-L_pc
s_addc_u32 s57, s57, 0
s_lshl_b32 s49, s39, 9
v_lshl_add_u32 v{tA}, v{tL}, 7, s49
v_min_u32 v{tA}, L_end-L_setup, v{tA}
s_mov_b64 exec, 15
global_load_dword v191, v{tA}, s[56:57]
s_mov_b64 exec, -1
L_ncp:
""" if opt('cpf', 0) else "") + WPAT + ("""s_cmp_lg_u32 s36, 4
s_cbranch_scc1 L_npf
s_mul_i32 s49, s39, 2304
v_lshl_add_u32 v{tA}, v{tL}, 7, s49
s_mov_b64 exec, 0x3ffff
s_cmp_ge_u32 s39, 24
s_waitcnt lgkmcnt(0)
s_cbranch_scc1 L_pf2
buffer_load_dword v{PL}, v{tA}, s[20:23], 0 offen
s_branch L_pf3
L_pf2:
v_subrev_u32 v{tA}, 55296, v{tA}
buffer_load_dword v{PL}, v{tA}, s[24:27], 0 offen
L_pf3:
s_mov_b64 exec, -1
L_npf:
""" if PF else "") + """s_waitcnt lgkmcnt(0)
s_barrier
s_mul_i32 s51, s37, 24576             ; columns c / c + 4
s_add_u32 s51, s51, {L_W}
s_lshl_b32 s52, s37, 9
s_mul_i32 s57, s37, 3072              ; halves t
s_add_u32 s57, s57, {L_W}
s_mul_i32 s58, s37, 27648
s_lshl_b32 s60, s37, 10
""")
A('L_setup:')
stamp()
qa, qb = QF[0] + 6, QF[0] + 7
k0a, k0b, k1a, k1b = KF[0] + 6, KF[0] + 7, KF[1] + 6, KF[1] + 7
B('''
v_and_b32 v{tN}, 31, v{tL}
v_lshrrev_b32 v{tH}, 5, v{tL}            ; hf
v_bfe_u32 v{tG}, v{tL}, 4, 1
v_bfe_u32 v{tR}, v{tL}, 2, 2
v_and_b32 v{tCc}, 3, v{tL}
v_lshlrev_b32 v{tQ}, 4, v{tL}            ; 16 l
s_mov_b32 s101, {L_W}
s_add_u32 s100, s101, 64
s_mul_i32 s47, s38, %d
s_add_u32 s47, s47, {L_R}             ; window region
v_mul_u32_u24 v{tA}, 208, v{tN}
v_lshl_add_u32 v{tA}, v{tH}, 4, v{tA}
v_add_u32 v{vXr}, s46, v{tA}
v_lshl_add_u32 v{tB}, v{tG}, 2, v{tCc}
v_lshlrev_b32 v{tB}, 3, v{tB}
v_lshrrev_b32 v{tC}, 1, v{tR}
v_lshl_add_u32 v{tC}, v{tH}, 2, v{tC}    ; row pair
v_lshl_add_u32 v{tB}, v{tC}, 7, v{tB}
v_and_b32 v{tC}, 1, v{tR}                ; parity
v_mul_u32_u24 v{tD}, 24640, v{tC}
v_add3_u32 v{vWe}, v{tB}, v{tD}, s101
v_mul_u32_u24 v{tD}, 30656, v{tC}
v_add3_u32 v{vWd}, v{tB}, v{tD}, s100
v_lshl_add_u32 v{tC}, v{tH}, 2, v{tR}    ; 4 hf + tR
v_mul_u32_u24 v{tC}, 192, v{tC}
v_and_b32 v{tA}, 1, v{tCc}
v_lshl_add_u32 v{tC}, v{tA}, 5, v{tC}
v_lshl_add_u32 v{tC}, v{tG}, 4, v{tC}
v_lshrrev_b32 v{tA}, 1, v{tCc}
v_lshl_add_u32 v{tC}, v{tA}, 3, v{tC}
v_add_u32 v{vTo}, {L_WO}, v{tC}
; bias: base + c CS + ((3 - qr - 4 t) BP + 4 hf + 4 (1 - (qc>>2))) * 4, c = 3 - (qc&3)
v_bfe_u32 v{tA}, v{tL}, 3, 2             ; qr
v_bfe_u32 v{tB}, v{tL}, 2, 1             ; qc>>2
v_sub_u32 v{tB}, v{tH}, v{tB}
v_lshlrev_b32 v{tB}, 4, v{tB}
v_mul_u32_u24 v{tD}, %d, v{tA}
v_sub_u32 v{tB}, v{tB}, v{tD}
v_mul_u32_u24 v{tD}, {CS}, v{tCc}
v_sub_u32 v{tB}, v{tB}, v{tD}
s_mul_i32 s54, s37, %d
s_sub_u32 s54, %d, s54
v_add_u32 v{vBi}, s54, v{tB}
; K / V exchange
v_add_u32 v{vKw16}, s46, v{tQ}
v_add_u32 v{vKr16}, s47, v{tQ}
v_lshlrev_b32 v{tA}, 3, v{tL}
s_add_u32 s54, s46, 1024
v_add_u32 v{vKw8}, s54, v{tA}
s_add_u32 s54, s47, 1024
v_add_u32 v{vKr8}, s54, v{tA}
v_mov_b32 v{tA}, %d
v_mov_b32 v{tB}, %d
v_cmp_gt_u32 vcc, 8, v{tN}
v_mov_b32 v{tC}, %d
v_mov_b32 v{tD}, %d
s_add_u32 s54, s47, %d
v_cndmask_b32 v{tA}, v{tB}, v{tA}, vcc
v_cmp_gt_u32 vcc, 16, v{tN}
v_mov_b32 v{tE}, s54                     ; ones chunk
v_add_u32 v{vV0}, %d, v{vKr16}
v_cndmask_b32 v{tC}, v{tD}, v{tC}, vcc
v_cmp_gt_u32 vcc, 24, v{tN}
v_add_u32 v{vV1}, v{tA}, v{vKr16}
v_add_u32 v{vV2}, v{tC}, v{vKr16}
v_add_u32 v{vV3}, %d, v{vKr16}
v_cndmask_b32 v{vV0}, v{tE}, v{vV0}, vcc
v_cndmask_b32 v{vV1}, v{tE}, v{vV1}, vcc
v_cndmask_b32 v{vV2}, v{tE}, v{vV2}, vcc
v_cndmask_b32 v{vV3}, v{tE}, v{vV3}, vcc
v_mov_b32 v{Z}, 0x3f803f80
v_mov_b32 v{Z1}, 0x3f803f80
v_mov_b32 v{Z2}, 0x3f803f80
v_mov_b32 v{Z3}, 0x3f803f80
v_mul_u32_u24 v{tA}, 1040, v{tL}
s_add_u32 s54, s46, %d
v_add_u32 v{tA}, s54, v{tA}
s_mov_b64 exec, 3
ds_write_b128 v{tA}, v[{Z}:{Z3}]
s_mov_b64 exec, -1
; store offsets
s_mul_i32 s42, s40, 7
s_add_u32 s42, s42, 3
v_and_b32 v{tB}, 7, v{tL}                ; col
v_add_u32 v{tC}, s42, v{tB}
v_subrev_u32 v{tD}, 224, v{tC}
v_min_u32 v{tC}, v{tC}, v{tD}
v_mul_u32_u24 v{tC}, 192, v{tC}
v_lshrrev_b32 v{tD}, 4, v{tL}
v_lshl_add_u32 v{tC}, v{tD}, 4, v{tC}
v_bfe_u32 v{tA}, v{tL}, 3, 1
v_mul_u32_u24 v{tD}, 43008, v{tA}
v_add_u32 v{tC}, v{tC}, v{tD}
v_cmp_eq_u32 s[14:15], 7, v{tB}
s_cmp_eq_u32 s37, 1
s_cselect_b32 s54, 1, 99
v_cmp_eq_u32 vcc, s54, v{tA}
s_add_u32 s43, s41, 86016
s_mov_b32 s35, 0x00020000
s_mov_b32 s34, 9633792
v_cndmask_b32 v{vSoA}, v{tC}, v{tO}, s[14:15]
s_lshl_b32 s54, s36, 6
v_mov_b32 v{vFg}, s54
v_cndmask_b32 v{vSoB}, v{vSoA}, v{tO}, vcc
; signals
s_xor_b32 s54, s54, 64
v_mov_b32 v{tA}, {OOBL}
v_mov_b32 v{tB}, s54
v_cmp_eq_u32 vcc, 0, v{tL}
v_lshlrev_b32 v{tC}, 6, v{tL}
v_cndmask_b32 v{vPw}, v{tA}, v{tB}, vcc
v_cmp_gt_u32 vcc, 8, v{tL}
v_mov_b32 v{vOne}, 1
; aug slots
s_cmp_eq_u32 s40, 31
s_cselect_b32 s54, 4, 99
v_cndmask_b32 v{vAd}, v{tA}, v{tC}, vcc
v_and_b32 v{tA}, 36, v{tL}
v_cmp_eq_u32 vcc, s54, v{tA}
v_mov_b32 v{tB}, 1.0
v_mov_b32 v{tC}, 0x3f80
v_mov_b32 v{tD}, 0x{MK}
v_mov_b32 v{tE}, 0x{MK}0000
s_cmp_eq_u32 s39, 31
s_cselect_b32 s4, -1, 0
s_mov_b32 s5, 0                       ; s[4:5] = ymask & lower half
s_cmp_eq_u32 s37, 1
s_cselect_b32 s6, s4, 0
s_mov_b32 s7, 0                       ; s[6:7] = same, tile 1 queries only
v_cndmask_b32 v{tA}, v{tC}, v{tB}, vcc   ; q one-hot
v_cndmask_b32 v{tE}, v{tE}, v{tD}, vcc   ; kone
v_mov_b32 v{tB}, 0xff00
v_cmp_lt_u32 vcc, 31, v{tL}
v_cndmask_b32 v{tB}, 0, v{tB}, s[14:15]  ; invalid key
v_mov_b32 v{tC}, 0x{MK}{MK}
v_cndmask_b32 v{k0a}, v{tE}, v{tB}, vcc
v_cndmask_b32 v{k0b}, v{tC}, 0, vcc
v_cndmask_b32 v{qa}, v{tA}, 0, s[6:7]
v_cndmask_b32 v{qb}, 0, v{tA}, s[6:7]
v_cndmask_b32 v{k1a}, v{k0a}, v{k0b}, s[4:5]
v_cndmask_b32 v{k1b}, v{k0b}, v{k0a}, s[4:5]
''' % (2 * RS, BP * 4, 4 * BP * 4, L_BI + 3 * CS + (3 * BP + 4) * 4,
       VS[0] + 384, VS[1] - 128, VS[1] + 256, VS[2] - 256, VS[0] + 1024, VS[0], VS[2] + 128, VS[0] + 1024))
for h in range(1, 4): B('v_mov_b32 v%d, v{qa}\nv_mov_b32 v%d, v{qb}' % (QF[h] + 6, QF[h] + 7))
if LD == 2: B('''
s_mul_i32 s56, s36, 3072
s_mul_i32 s12, s36, 27648
s_add_u32 s12, s12, 1024
s_sub_u32 s13, s56, 6144
s_cmp_lt_u32 s36, 2
s_cselect_b32 s8, s20, s24
s_cselect_b32 s9, s21, s25
s_cselect_b32 s10, s22, s26
s_mov_b32 s11, 0x00020000
s_cselect_b32 s12, s12, s13
s_cselect_b32 s48, 9, 1
s_cselect_b64 vcc, -1, 0
s_cselect_b32 s54, 8, 16
s_lshl_b32 s48, s48, 10
s_lshl_b32 s54, 1, s54
s_add_u32 s13, s12, s48
s_add_u32 s48, s13, s48
s_add_u32 s56, s56, %d
v_cndmask_b32 v191, v{tQ}, v{tP}, vcc
s_lshr_b32 s55, s36, 2
s_add_u32 s54, s54, s55
v_mov_b32 v{vAdD}, s54
''' % (L_W + 49152))
stamp()
def sig_all(off): return 'ds_add_u32 v{vAd}, v{vOne} offset:%d\n' % off
B('''
s_cmp_ge_u32 s36, 4
s_cbranch_scc1 L_d1
s_lshl_b32 s54, s36, 6
v_add_u32 v{tA}, s54, v{tL}              ; idx
v_mul_u32_u24 v{tB}, 79, v{tA}
v_lshrrev_b32 v{tB}, 10, v{tB}           ; i13
v_cmp_gt_u32 vcc, 169, v{tA}
v_mul_u32_u24 v{tB}, %d, v{tB}
v_lshl_add_u32 v{tB}, v{tA}, 2, v{tB}
v_sub_u32 v{tB}, %d, v{tB}               ; 4 e
s_mov_b32 s54, %s
{ADD0}s_cmp_eq_u32 s37, 1
s_waitcnt vmcnt(11)
s_cbranch_scc0 L_r0
s_waitcnt vmcnt(10)
L_r0:
v_lshlrev_b32 v{PL2}, 16, v{PL}
v_and_b32 v{PL3}, 0xffff0000, v{PL}
v_lshlrev_b32 v{PL4}, 16, v{PL1}
v_and_b32 v{PL5}, 0xffff0000, v{PL1}
v_mul_f32 v{PL2}, s54, v{PL2}
v_mul_f32 v{PL3}, s54, v{PL3}
v_mul_f32 v{PL4}, s54, v{PL4}
v_mul_f32 v{PL5}, s54, v{PL5}
s_mov_b64 exec, vcc
''' % ((BP - 13) * 4, (13 * BP + 13) * 4, f32(INV)))
for hh in range(4):
    for c in range(4):
        A('ds_write_b32 v%d, v%d offset:%d' % (tB, PL2 + hh, L_BI + hh * HS + c * (CS - 4)))
XL = [xa(0), xb(0), xa(1), xb(1), xa(2), xb(2), xa(3, 's61'), xb(3, 's61')]
def wo(us):
    t = ''
    for u in us: t += 's_add_u32 m0, s59, %d\ns_add_u32 s54, s60, %d\nbuffer_load_dwordx4 v{tQ}, s[24:27], s54 offen lds\n' % (u * 2048, u * 2048)
    return t
t = X0 + 's_waitcnt vmcnt(6)\ns_cbranch_scc0 L_r1\ns_waitcnt vmcnt(3)\nL_r1:\n' + sig_all(EA) + 's_branch L_main\nL_d1:\n'
t += """s_cmp_eq_u32 s37, 1
s_cselect_b32 s61, 0, 43008
s_add_u32 s61, s61, 86016
s_cmp_ge_u32 s36, 6
s_cbranch_scc1 L_d2
"""
if LD:
    t = t[:t.index('s_cmp_ge_u32 s36, 6\ns_cbranch_scc1 L_d2\n')]
    t += """s_sub_u32 s51, s36, 4
s_mul_i32 s52, s51, 9216              ; ks = j
s_lshl_b32 s60, s51, 10
s_add_u32 s51, s60, {L_W}
s_add_u32 s57, s38, 2                 ; ks = 4 + i'
s_mul_i32 s58, s57, 9216
s_lshl_b32 s57, s57, 10
s_mul_i32 s54, s37, 24576
s_add_u32 s57, s57, s54
s_add_u32 s57, s57, {L_W}
s_lshl_b32 s54, s37, 9
s_add_u32 s58, s58, s54
s_lshl_b32 s49, s37, 10
s_add_u32 s53, s49, {L_W}
s_mul_i32 s55, s37, 9216              ; ks = 4 + t
s_add_u32 s59, s60, {L_WO}
s_add_u32 s50, s49, {L_WO}
"""
    t += wd(51, 52, 0, 0) + wd(51, 52, 0, 4) + wd(57, 58, 0, 0)
    CD = [wd(51, 52, 0, 3), wd(51, 52, 0, 7), wd(57, 58, 0, 3), wd(51, 52, 0, 5), wd(53, 55, 4, 5)]
    if LD == 2:
        seq = {0: 'xcxcxcxcxcxxx', 1: 'xxcxcxcxcxcxx', 2: 'xxxcxcxcxcxcx', 3: 'xxcxcxxcxcxcx', 4: 'cxcxcxcxcxxxx'}[opt('ord', 0)]
        q = {'c': CD, 'x': list(XL)}
        for k, ch in enumerate(seq):
            if ch == 'x' and (k == 0 or seq[k - 1] != 'x'): t += X1
            if ch != 'x' and k and seq[k - 1] == 'x': t += X0
            t += q[ch].pop(0)
            if k + 1 == opt('ebp', 10): t += 's_waitcnt vmcnt(%d)\n' % (k + 1) + sig_all(EB)
        t += X0
if LD == 1:
    t += X1 + ''.join(XL) + X0 + 's_waitcnt vmcnt(8)\n' + sig_all(EB)
    t += ''.join(CD)
    t += wd(51, 52, 0, 8) + wd(53, 55, 4, 8)
    for u in range(4): t += 's_add_u32 m0, s59, %d\ns_add_u32 s54, s60, %d\nbuffer_load_dwordx4 v{tQ}, s[24:27], s54 offen lds\n' % (u * 4096, u * 4096)
    t += 's_add_u32 m0, s50, 16384\ns_add_u32 s54, s49, 16384\nbuffer_load_dwordx4 v{tQ}, s[24:27], s54 offen lds\n'
if LD: XN = 12; LATE_C = LATE_D = False
else:
    t += X1 + ''.join(XL) + X0 + 's_branch L_main\nL_d2:\n'
    WB_ = [wd(51, 52, k) for k in range(6)]; WC_ = [wd(57, 58, k, 5) for k in range(3)]; WD_ = [wd(51, 52, k, 3) for k in range(6)]
    seq = {0: 'BBBBBB' + 'xCxCxCxDxDxDxDxDD', 1: 'BBBBBB' + 'xxxxxxxx' + 'CCCDDDDDD', 2: 'BxBxBxBxBxBxxx' + 'CCCDDDDDD', 3: 'BBBBBB' + 'xCxCxCxxxxx' + 'DDDDDD'}[opt('ord', 0)]
    q = {'B': list(WB_), 'C': list(WC_), 'D': list(WD_), 'x': list(XL)}
    aft = lambda ch: len(seq) - 1 - seq.rindex(ch)
    EBP = min(opt('ebp', 2), aft('B'))
    for k, ch in enumerate(seq):
        if ch == 'x' and seq[k - 1] != 'x': t += X1
        if ch != 'x' and k and seq[k - 1] == 'x': t += X0
        t += q[ch].pop(0)
        if k == seq.rindex('B') + EBP:
            t += 's_waitcnt vmcnt(%d)\n' % EBP + sig_all(EA if PHS == 3 else EB)
    if seq[-1] == 'x': t += X0
    t += 's_add_u32 s59, s60, {L_WO}\n'
    t += ''.join(wd(57, 58, k, 8) for k in range(3)) + wo(range(9))
    XN = aft('x') + 12
    LATE_D = aft('D') < aft('x')
    if PHS != 3: t += 's_waitcnt vmcnt(%d)\n' % (aft('C') + 12) + sig_all(EC) if aft('C') >= aft('x') else ''
    LATE_C = aft('C') < aft('x')
    if not LATE_D and PHS != 3: t += 's_waitcnt vmcnt(12)\n' + sig_all(ED)
if LD == 2: B(t + 'L_main:\n')
else:
    t += 'v_mov_b32 v{vAdD}, v{vAd}\nL_main:\n'
    B(t.replace('L_d1:\n', 'L_d1:\nv_mov_b32 v{vAdD}, {OOBL}\n'))
if BAR:
    B('s_waitcnt vmcnt(0)')
    if BAR == 2: B('s_cmp_lt_u32 s36, 4\ns_cbranch_scc1 L_bar\n' + ''.join('s_add_u32 m0, s56, %d\nbuffer_load_dwordx4 v191, s[8:11], s%d offen lds\n' % (u * 1024, (12, 13, 48)[u]) for u in range(3)) + 's_waitcnt vmcnt(0)\nds_add_u32 v{vAd}, v{vAdD} offset:{ED}\nds_add_u32 v{vAd}, v{vAdD} offset:{EW}\ns_waitcnt lgkmcnt(0)\ns_barrier\ns_endpgm\nL_bar:')
    B('s_barrier')
if QS: A('s_mov_b32 s3, %s' % f32(C_EXP))
A('s_waitcnt lgkmcnt(0)'); A('s_nop 1')
stamp()

slow = []
TAGS = {}
N = []
PH = [0]
def ph(k):
    if PHS: PH[0] = k
LM = [None]
def n(t, tag=None, **k):
    X = Node(t, **k); N.append(X); X.ph = PH[0]
    if PHS == 3 and X.kind == 'mfma':
        if LM[0] is not None: X.after.append((LM[0], 32))
        LM[0] = X
    if tag: TAGS[id(X)] = tag
    return X
_tmp = [0]
FRD = 'ds_read_u8' if LD == 2 else 'ds_read_b32'
CHK = {}
def check(name, off, cmpi, rd=(), after=(), bias=0):
    tmp = (T0, T1, T2)[_tmp[0] % 3]; _tmp[0] += 1
    n(F('%s v%d, v{vFg} offset:%d' % (FRD, tmp, off)), rd=rd, wr=['f' + name], after=after, bias=bias)
    C = n('%s, v%d' % (cmpi, tmp), wr=['vcc'], bias=bias)
    Bn = n('s_cbranch_vccnz L_z%s\nL_k%s:' % (name, name), rd=['vcc', 'f' + name], wr=[name], after=[(C, 24)], bias=bias, tag=name)
    CHK[id(Bn)] = (name, off, cmpi, tmp)
def sp(c): return ('f' + c) if SPEC else c
def ev(name, off, cnt=4, **k): check(name, off, 'v_cmp_ne_u32 vcc, %d' % cnt, **k)
def sig(k, rd, ph0=None):
    X = n(F('ds_add_u32 v{vPw}, v{vOne}'), rd=list(rd) + ['sig'], wr=['sig', 'sg%d' % k])
    if ph0 is not None: X.ph = ph0
    check('c%d' % k, EP, 'v_cmp_gt_u32 vcc, %d' % k, after=[(X, opt('sync%d' % k, SYNC))])
def tr(dst, addr, off, **k): n('ds_read_b64_tr_b16 %s, v%d offset:%d' % (qn(dst, 2), addr, off), **k)
def r128(dst, addr, off, **k): n('ds_read_b128 %s, v%d offset:%d' % (qn(dst, 4), addr, off), **k)
def r64(dst, addr, off, **k): n('ds_read_b64 %s, v%d offset:%d' % (qn(dst, 2), addr, off), **k)
def w128(src, addr, off, **k): n('ds_write_b128 v%d, %s offset:%d' % (addr, qn(src, 4), off), **k)
def w64(src, addr, off, **k): n('ds_write_b64 v%d, %s offset:%d' % (addr, qn(src, 2), off), **k)

UEV = ['ea', 'ea', 'eb', 'ec', 'ed', 'ed', 'ec', 'ew', 'ew']
TAU = [3, 4, 0, 1, 6, 5, 2, 7, 8]
PRE = set()
def wtr(U, s):
    k = 6 * U + s
    if k in PRE: return
    PRE.add(k)
    wb = WB + 4 * (k % 8)
    for u in range(2): tr(wb + 2 * u, vWd if TAU[U] & 1 else vWe, (TAU[U] >> 1) * 6144 + s * 1024 + u * 256, rd=[sp(UEV[U])], wr=(['w%d%d' % (k, u)] if k < 8 else []))
def unit(U, isV):
    a = ACC[U % 3]
    for s in range(6):
        wb = WB + 4 * ((6 * U + s) % 8)
        wtr(U, s)
        x = XF + 4 * s
        n(m32(a, x, wb, a if s else None) if isV else m32(a, wb, x, a if s else None), rd=[UEV[U]], wr=['u%d%d' % (U, s)], tag=('u%d' % U if s == 5 else 'st' if (U, s) == (0, 0) else None))
    return a
def packin(a):
    for j in range(8): n(pk(a + j, a + 2 * j, a + 2 * j + 1))
def qcvt(T, a):
    if QS == 1:
        for i in range(16): n('v_mul_f32 v%d, s3, v%d' % (a + i, a + i))
    if QS == 2:
        for i in range(0, 16, 2): n('v_pk_mul_f32 %s, %s, s[2:3] op_sel:[0,1] op_sel_hi:[1,1]' % (qn(a + i, 2), qn(a + i, 2)))
    for g in range(4):
        h, p = divmod(4 * T + g, 3)
        for j in range(2): n(pk(QF[h] + 2 * p + j, a + 4 * g + 2 * j, a + 4 * g + 2 * j + 1))
def kread(h, c):
    for tk in range(2):
        r128(KF[tk], vKr16, tk * RS + KO[h], rd=[sp(c), 'kw%d' % h], wr=['kr%d%da' % (h, tk)])
        r64(KF[tk] + 4, vKr8, tk * RS + KO[h], rd=[sp(c), 'kw%d' % h], wr=['kr%d%db' % (h, tk)])
def krd(*hs): return ['kr%d%d%s' % (h, tk, x) for h in hs for tk in range(2) for x in 'ab']
def smm(h, c):
    for tk in range(2):
        d = SB[h % 2][tk]
        for a in range(4 - tk): r128(d + 4 * a, vBi, h * HS + (a + 4 * tk + 4) * BP * 4, rd=['ea'])
    for tk in range(2):
        d = SB[h % 2][tk]
        n(m32(d, KF[tk], QF[h], d), rd=[c])
        n(m32(d, KF[tk] + 4, QF[h] + 4, d), rd=[c], tag=('s%d' % h if tk else None))
LE = [None]
def softmax(h):
    m = (Mx0, Mx1)[h % 2]; t_ = m ^ 0
    S0, S1 = SB[h % 2]
    regs = [S0 + i for i in range(16)] + [S1 + i for i in range(12)]
    tm = S1 + 12
    n('v_max3_f32 v%d, v%d, v%d, v%d' % (m, regs[0], regs[1], regs[2]))
    for i in range(3, 27, 2): n('v_max3_f32 v%d, v%d, v%d, v%d' % (m, m, regs[i], regs[i + 1]))
    n('v_max_f32 v%d, v%d, v%d' % (m, m, regs[27]))
    n('v_mov_b32 v%d, v%d' % (tm, m))
    n('v_permlane32_swap_b32 v%d, v%d' % (tm, m))
    n('v_max_f32 v%d, v%d, v%d' % (m, m, tm), tag=('m%d' % h if QS else None))
    if not QS: n('v_mul_f32 v%d, %s, v%d' % (m, f32(-C_EXP), m), tag='m%d' % h)
    for j in range(14):
        for r in regs[2 * j:2 * j + 2]:
            n('v_sub_f32 v%d, v%d, v%d' % (r, r, m) if QS else 'v_fmamk_f32 v%d, v%d, %s, v%d' % (r, r, f32(C_EXP), m))
            LE[0] = n('v_exp_f32 v%d, v%d' % (r, r), after=([(LE[0], 12)] if LE[0] else []), bias=EBIAS)
        n(pk(S0 + j, regs[2 * j], regs[2 * j + 1]), tag=('e%d' % h if j == 13 else None), wr=(['hm%d' % h] if j == opt('hj', 8) else []))
def pv(h, c, rd):
    P, o = SB[h % 2]
    rd = rd + [sp(c) if h < (1 if PHS == 3 else 3) or (PHS == 3 and h in (1, 2)) else c]
    r128(VF, vV[h], 0, rd=rd); r128(VF + 4, vV[h], 1040, rd=rd); r128(VF + 8, vV[h], RS, rd=rd); r64(VF + 12, vV[h], RS + 1040, rd=rd)
    n(m32(o, VF, P, None), rd=[c])
    n(m32(o, VF + 4, P + 4, o), rd=[c])
    n(m32(o, VF + 8, P + 8, o), rd=[c])
    n(m8(o, VF + 12, P + 12, o), rd=[c], tag='p%d' % h)
    if PHS: return
    norm(h)
def norm(h):
    P, o = SB[h % 2]
    n('v_rcp_f32 v%d, v%d' % (o + 13, o + 12))
    for i in range(12): n('v_mul_f32 v%d, v%d, v%d' % (o + i, o + i, o + 13))
    for j in range(6): n(pk(OP + 6 * h + j, o + 2 * j, o + 2 * j + 1), tag=('o%d' % h if j == 5 else None))
def vwrite(T, a, rd):
    packin(a)
    w128(a, vKw16, VS[T], rd=rd, wr=['vw%d' % T]); w128(a + 4, vKw16, VS[T] + 1040, rd=rd + ['vw%d' % T], wr=['vw%d' % T])
OEV = ['ew']
WOB = [WB + 4 * i for i in range(8)] + [XF + 4 * i for i in range(6)]
def outk(ks):
    for T in range(3):
        wb = WOB[(3 * ks + T) % 14]
        for u in range(2): tr(wb + 2 * u, vTo, ks * 3072 + u * 1536 + T * 64, rd=[sp(OEV[0]) if OEV[0] == 'eo' and ks == 0 else OEV[0]])
        n(m32(ACC[T], wb, OP + 4 * ks, ACC[T] if ks else None), rd=[OEV[0]], tag=('k%d' % ks if T == 2 else None))

def outk2(k0, k1):
    for T in range(3):
        for ks in (k0, k1):
            wb = WOB[(3 * ks + T) % 14]
            for u in range(2): tr(wb + 2 * u, vTo, ks * 3072 + u * 1536 + T * 64, rd=[OEV[0]])
            n(m32(ACC[T], wb, OP + 4 * ks, ACC[T]), tag=('k%d' % ks if T == 2 else None), bias=(2 - T) * opt('tb', 40))
AN = ['u0%d' % opt('an0', 2), 'u%d' % opt('an1', 20), 'u%d' % opt('an2', 30), 'u%d' % opt('an3', 60)]
if PHS == 3:
    UEV[:] = ['ea', 'ea', 'eb' if LD else 'ea', 'ed', 'ed', 'ed', 'ed', 'ew', 'ew']
    ev('ea', EA, 4 if LD else 6)
    NS = 4 if LD else 2
    ORDU = [0, 2, 1, 4, 3, 5, 7, 6, 8]
    SL = {}
    for i_, U in enumerate(ORDU):
        for s in range(6): SL[(U, s)] = (6 * i_ + s) % 8
    def wtr(U, s, first=False):
        k = 6 * U + s
        if k in PRE: return
        PRE.add(k)
        wb = WB + 4 * SL[(U, s)]
        for u in range(2): tr(wb + 2 * u, vWd if TAU[U] & 1 else vWe, (TAU[U] >> 1) * 6144 + s * 1024 + u * 256, rd=[sp(UEV[U])], wr=(['w%d%d' % (k, u)] if first else []))
    def unit(U, isV, a):
        for s in range(6):
            wb = WB + 4 * SL[(U, s)]
            wtr(U, s)
            x = XF + 4 * s
            n(m32(a, x, wb, a if s else None) if isV else m32(a, wb, x, a if s else None), rd=[UEV[U]], wr=['u%d%d' % (U, s)], tag=('u%d' % U if s == 5 else 'st' if (U, s) == (0, 0) else None))
        return a
    F8 = [(0, s) for s in range(6)] + ([] if LD else [(2, 0), (2, 1)])
    for U, s in F8: wtr(U, s, True)
    if LD == 2: n('s_waitcnt vmcnt(0)', rd=['ea'] + ['w%d%d' % (6 * U + s, u) for U, s in F8 for u in range(2)], wr=['x'], tag='x')
    else:
        n('s_waitcnt vmcnt(%d)\ns_cmp_ge_u32 s36, %d\ns_cbranch_scc1 L_xw\ns_waitcnt vmcnt(0)\nL_xw:' % (XN, 4 if LD else 6), rd=['ea'] + ['w%d%d' % (6 * U + s, u) for U, s in F8 for u in range(2)], wr=['x'], tag='x')
    for s in range(6): r128(XF + 4 * s, vXr, s * 32, rd=['x'], wr=(['xr'] if s == 5 else []))
    a = unit(0, False, ACC[0]); packin(a)
    if LD: ev('eb', EB, 4, rd=['u0%d' % opt('eba', 1)])
    w128(a, vKw16, KO[0], wr=['kw0']); w64(a + 4, vKw8, KO[0], rd=['kw0'], wr=['kw0']);
    sig(1, ['kw0'])
    w64(a + 6, vKw16, KO[1], wr=['kw1'])
    def eld(u, after): n('s_add_u32 m0, s56, %d\nbuffer_load_dwordx4 v191, s[8:11], s%d offen lds' % (u * 1024, (12, 13, 48)[u]), rd=[after, 'ld'], wr=['ld'])
    assert LD == 2
    n(F('ds_add_u32 v{vAd}, v{vAdD} offset:{ED}'), rd=['x', 'xr'], wr=['sd'])
    eld(0, 'u05')
    a = unit(2, False, ACC[1]); qcvt(0, a)
    if LD == 2: eld(1, 'u25')
    a = unit(1, False, ACC[2]); packin(a)
    if LD == 2: eld(2, 'u15')
    w64(a, vKw16, KO[1] + 8, rd=['kw1'], wr=['kw1']); w64(a + 2, vKw8, KO[1], rd=['kw1'], wr=['kw1']); w128(a + 4, vKw16, KO[2], wr=['kw2'])
    kread(0, 'c1'); smm(0, 'c1')
    ph(1); softmax(0)
    if LD != 2: Xw = n(F('s_waitcnt vmcnt(0)\nds_add_u32 v{vAdD}, v{vOne} offset:{EW}'), rd=['hm0', 'sd'], wr=['sw'])
    ph(2)
    ev('ed', ED, NS, rd=['sd', 'hm0'])
    a = unit(4, True, ACC[0]); vwrite(0, a, [])
    if LD == 2: Xw = n(F('s_waitcnt vmcnt(0)\nds_add_u32 v{vAd}, v{vAdD} offset:{EW}'), rd=['ed', 'ld', 'u4%d' % opt('swa', 2)], wr=['sw'])
    sig(2, ['vw0', 'kw1'])
    a = unit(3, False, ACC[1]); qcvt(1, a)
    a = unit(5, False, ACC[2]); packin(a)
    w64(a, vKw8, KO[2], rd=['kw2'], wr=['kw2']); w128(a + 2, vKw16, KO[3], wr=['kw3']); w64(a + 6, vKw8, KO[3], rd=['kw3'], wr=['kw3'])
    kread(1, 'c2'); smm(1, 'c2')
    ph(4); sig(3, ['kw2', 'kw3'] + krd(0, 1), ph0=2); ph(2)
    pv(0, 'c2', ['vw0'])
    ph(3); softmax(1); norm(0); ph(4)
    if LD == 2: ev('ew', EW + 1, 2, rd=['sw', 'hm1'])
    else: ev('ew', EW, NS, rd=['sw', 'hm1'])
    kread(2, 'c3')
    a = unit(7, True, ACC[0]); vwrite(1, a, ['c3'] + krd(0, 1))
    sig(4, ['vw1'] + krd(2))
    a = unit(6, False, ACC[1]); qcvt(2, a)
    a = unit(8, True, ACC[2])
    smm(2, 'c3')
    kread(3, 'c3')
    vwrite(2, a, ['c4'] + krd(1, 2))
    ph(6); sig(5, ['vw2'], ph0=4); ph(4)
    pv(1, 'c4', ['vw0', 'vw1'])
    ph(5); softmax(2); norm(1); ph(6)
    if LD == 2: ev('eo', EW + 2, 6, rd=['sw', 'hm2']); OEV[0] = 'eo'
    smm(3, 'c3')
    outk(0); outk(1); outk(2)
    pv(2, 'c5', ['vw1', 'vw2'])
    ph(7); softmax(3); norm(2); ph(8)
    pv(3, 'c5', ['vw2']); outk(3); norm(3)
    outk2(4, 5)
else:
    ev('ea', EA, 4)
    for k in range(8): wtr(k // 6, k % 6)
    n('s_waitcnt vmcnt(%d)\ns_cmp_ge_u32 s36, 6\ns_cbranch_scc1 L_xw\ns_waitcnt vmcnt(0)\nL_xw:' % XN, rd=['ea'] + ['w%d%d' % (i, u) for i in range(8) for u in range(2)], wr=['x'], tag='x')
    for s in range(6): r128(XF + 4 * s, vXr, s * 32, rd=['x'])
    a = unit(0, False); packin(a)
    w128(a, vKw16, 0, wr=['kw0']); w64(a + 4, vKw8, 0, rd=['kw0'], wr=['kw0']); w64(a + 6, vKw16, 1536, wr=['kw1'])
    n(F('s_waitcnt vmcnt(18)\nds_add_u32 v{vAdD}, v{vOne} offset:{EC}' if LATE_C else 's_nop 0'), rd=['u02'], wr=['sc'])
    n(F('s_waitcnt vmcnt(12)\nds_add_u32 v{vAdD}, v{vOne} offset:{ED}' if LATE_D else 's_nop 0'), rd=['u05', 'sc'], wr=['sd'])
    ev('eb', EB, 2, rd=[AN[0]])
    a = unit(1, False); packin(a)
    w64(a, vKw16, 1536 + 8, rd=['kw1'], wr=['kw1']); w64(a + 2, vKw8, 1536, rd=['kw1'], wr=['kw1']); w128(a + 4, vKw16, 3072, wr=['kw2'])
    sig(1, ['kw0', 'kw1'])
    a = unit(2, False); qcvt(0, a)
    if not PHS: ev('ec', EC, 2, rd=[AN[1], 'sc'])
    kread(0, 'c1'); smm(0, 'c1')
    ph(1); softmax(0) if PHS else None
    ph(2)
    if PHS: ev('ec', EC, 2, rd=['sc', 'hm0'])
    a = unit(3, False); qcvt(1, a)
    Xw = n(F('s_waitcnt vmcnt(0)\nds_add_u32 v{vAdD}, v{vOne} offset:{EW}'), rd=['u30', 'sd'], wr=['sw'])
    ev('ed', ED, 2, rd=(['sd', 'hm0'] if PHS else [AN[2], 'sd']))
    kread(1, 'c1'); smm(1, 'c1')
    if not PHS: softmax(0)
    a = unit(4, True); vwrite(0, a, [])
    a = unit(5, False); packin(a)
    w64(a, vKw8, 3072, rd=['kw2'], wr=['kw2']); w128(a + 2, vKw16, 4608, wr=['kw3']); w64(a + 6, vKw8, 4608, rd=['kw3'], wr=['kw3'])
    sig(2, ['vw0', 'kw2', 'kw3'] + krd(0, 1))
    if PHS == 1:
        a = unit(6, False); qcvt(2, a)
        pv(0, 'c2', ['vw0'])
        ph(3); softmax(1); norm(0); ph(4)
        ev('ew', EW, 2, rd=['sw', AN[3]])
        a = unit(7, True); vwrite(1, a, ['c2'] + krd(0, 1))
        kread(2, 'c2'); smm(2, 'c2')
        kread(3, 'c2')
        sig(3, ['vw1'] + krd(2, 3))
        a = unit(8, True)
        pv(1, 'c3', ['vw0', 'vw1'])
        vwrite(2, a, ['c3'] + krd(2, 3))
        sig(4, ['vw2'])
        outk(0)
        ph(5); softmax(2); norm(1); ph(6)
        smm(3, 'c2')
        pv(2, 'c4', ['vw1', 'vw2'])
        outk(1); outk(2)
        ph(7); softmax(3); norm(2); ph(8)
        pv(3, 'c4', ['vw2']); outk(3); norm(3)
        outk(4); outk(5)
    elif PHS == 2:
        pv(0, 'c2', ['vw0'])
        ph(3); softmax(1); norm(0); ph(4)
        ev('ew', EW, 2, rd=['sw', 'hm1'])
        a = unit(7, True); vwrite(1, a, ['c2'] + krd(0, 1))
        a = unit(6, False); qcvt(2, a)
        kread(2, 'c2'); smm(2, 'c2')
        kread(3, 'c2')
        sig(3, ['vw1'] + krd(2, 3))
        pv(1, 'c3', ['vw0', 'vw1'])
        outk(0)
        ph(5); softmax(2); norm(1); ph(6)
        a = unit(8, True)
        vwrite(2, a, ['c3'] + krd(2, 3))
        sig(4, ['vw2'])
        smm(3, 'c2')
        outk(1); outk(2)
        pv(2, 'c4', ['vw1', 'vw2'])
        ph(7); softmax(3); norm(2); ph(8)
        pv(3, 'c4', ['vw2']); outk(3); norm(3)
        outk2(4, 5)
    else:
        pv(0, 'c2', ['vw0'])
        a = unit(6, False); qcvt(2, a)
        ev('ew', EW, 2, rd=['sw', AN[3]])
        kread(2, 'c2'); smm(2, 'c2')
        kread(3, 'c2')
        softmax(1)
        a = unit(7, True); vwrite(1, a, ['c2'] + krd(0, 1))
        sig(3, ['vw1'] + krd(2, 3))
        pv(1, 'c3', ['vw0', 'vw1'])
        smm(3, 'c2')
        a = unit(8, True); vwrite(2, a, ['c3'] + krd(2, 3))
        sig(4, ['vw2'])
        softmax(2)
        outk(0)
        pv(2, 'c4', ['vw1', 'vw2'])
        outk(1); outk(2)
        softmax(3)
        outk(3)
        pv(3, 'c4', ['vw2'])
        outk(4); outk(5)
for T in range(3):
    a = ACC[T]
    packin(a)
    for j in range(4): n('v_permlane16_swap_b32 v%d, v%d' % (a + j, a + 4 + j))
    n('buffer_store_dwordx4 %s, v%d, s[32:35], s41 offen offset:%d%s' % (qn(a, 4), vSoA, T * 64, STM))
    n('buffer_store_dwordx4 %s, v%d, s[32:35], s43 offen offset:%d%s' % (qn(a + 4, 4), vSoB, T * 64, STM), tag='z%d' % T)

STAGS = (sys.argv[sys.argv.index('--tags') + 1] if '--tags' in sys.argv else 'st,s0,e0,s2,e1,s3,e2,e3,o3').split(',')
late = [False]; cur = [PA]; ORD = []
def setp(p):
    if p != cur[0]: A('s_setprio %d' % p); cur[0] = p
def emit(N, name):
    out, t = schedule(N, name)
    seen = []
    rng = {}; cph = {}
    import collections
    mtot = collections.Counter(X.ph for tt, X in out if X.kind == 'mfma'); mdone = collections.Counter()
    m_ = 99
    for tt, X in reversed(out):
        if not (X.ins[0].kind == 'dsr' or X.ins[0].op.startswith(('v_cmp', 's_cbranch'))): m_ = min(m_, X.ph)
        cph[id(X)] = m_
    for tt, X in out:
        p_ = cph[id(X)]; rng[p_] = (rng.get(p_, (tt, tt))[0], tt)
    for tt, X in out:
        if PHS:
            p_ = cph[id(X)]
            a_, b_ = rng[p_]
            if p_ & 1: hi = 1 if tt > a_ + (b_ - a_) * opt('fv', 200) / 100 else 0
            else: hi = 1 if mdone[p_] >= mtot[p_] * opt('fm', 200) / 100 else 0
            if X.kind == 'mfma': mdone[p_] += 1
            setp((PB_ if p_ & 1 else PM) + hi)
        elif late[0] and X.kind in ('mfma', 'valu', 'trans', 'perm'): setp(PM if X.kind == 'mfma' else PB_)
        for I in X.ins: A.add(I)
        seen.append(X)
        if id(X) in CHK:
            nm, off, cmpi, tmp = CHK[id(X)]
            rr = [Y.lines[0] for Y in seen if ('f' + nm) in Y.rd and Y.kind == 'dsr']
            slow.append(F('L_z%s:\n{FRD} v%d, v{vFg} offset:%d\ns_waitcnt lgkmcnt(0)\n%s, v%d\ns_cbranch_vccnz L_z%s\n' % (nm, tmp, off, cmpi, tmp, nm)) + ''.join(l + '\n' for l in rr) + ('s_waitcnt lgkmcnt(0)\n' if rr else '') + 's_branch L_k%s' % nm)
        tg = TAGS.get(id(X))
        if tg: print('  %s@%d' % (tg, tt), end=''); A('; TAG %s' % tg)
        if tg in STAGS: stamp(); ORD.append('%s@%d' % (tg, tt))
        if tg == 's%d' % LATE: late[0] = True
    print()
if PA: A('s_setprio %d' % PA)
emit(N, 'main')
open(sys.argv[1] + '.tags', 'w').write(' '.join(ORD))
if STAMP:
    A('s_waitcnt vmcnt(0)')
    stamp(); stamp(True)
    A('s_lshl_b32 s100, s2, 4\ns_add_u32 s100, s100, s36\ns_lshl_b32 s100, s100, 6')
    A('s_waitcnt lgkmcnt(0)')
    A('v_mbcnt_lo_u32_b32 v17, -1, 0\nv_mbcnt_hi_u32_b32 v17, -1, v17\nv_lshlrev_b32 v17, 2, v17')
    for k in range(_st[0]):
        A('v_writelane_b32 v16, s%d, %d' % (64 + 2 * k, k))
    A('s_mov_b64 exec, 0xffff\nbuffer_store_dword v16, v17, s[96:99], s100 offen')
A('s_endpgm')
A.rawmode = True
for s_ in slow: A(s_)
A.rawmode = False
A('L_end:')
A('s_endpgm')
body = A.finalize()

hdr = open('standalone__window_attn_swin__vision.s.ref').read().split('\n')
hdr = [l for l in hdr if l.startswith(';') and '@launch' not in l]
out = '\n'.join(hdr) + '\n; @launch grid=(256,1,1) block=(512,1,1) lds=%d\n' % L_SIZE
out += '''.amdgcn_target "amdgcn-amd-amdhsa--gfx950"
.text
.globl standalone__window_attn_swin__vision_kernel
.p2align 8
.type standalone__window_attn_swin__vision_kernel,@function
standalone__window_attn_swin__vision_kernel:
''' + body + '''.section .rodata,"a"
.p2align 6
.amdhsa_kernel standalone__window_attn_swin__vision_kernel
  .amdhsa_next_free_vgpr 256
  .amdhsa_next_free_sgpr 102
  .amdhsa_accum_offset 256
  .amdhsa_group_segment_fixed_size 0
  .amdhsa_kernarg_size 72
  .amdhsa_user_sgpr_count 2
  .amdhsa_user_sgpr_kernarg_segment_ptr 1
  .amdhsa_system_sgpr_workgroup_id_x 1
.end_amdhsa_kernel
'''
dst = sys.argv[1]
open(dst, 'w').write(out)
print('instructions:', len(body.split('\n')), 'nop states:', A.nnops)
```

```python
import struct, sys, math
import asmlib
from asmlib import Asm, Node
import sched3 as sched2
from sched3 import schedule
def f32(x): return '0x%08x' % struct.unpack('<I', struct.pack('<f', x))[0]
SCALE = 24 ** -0.5
C_EXP = SCALE * math.log2(math.e)
INV = 24 ** 0.5
STAMP = '--stamp' in sys.argv
XNT = ' nt'
STM = ' nt'
def opt(name, dflt):
    for a in sys.argv:
        if a.startswith('--%s=' % name): return int(a.split('=')[1])
    return dflt
sched2.PRM['nxp'] = 1000; sched2.PRM['nxd'] = 300
for k_ in ('lat', 'lam', 'boost', 'stc', 'soft', 'php', 'nxp', 'nxd'): sched2.PRM[k_] = opt(k_, sched2.PRM[k_])
asmlib.SAFE = sched2.PRM['safe'] = opt('safe', 150)
SPEC = opt('spec', 1)
PA = opt('pa', 1)
PM = opt('pm', 2)
PB_ = opt('pb', 0)
SYNC = opt('sync', 60)
EBIAS = opt('ebias', 16)
PF = opt('pf', 1)
BAR = opt('bar', 0)
LATE = opt('late', 2)

BP, CS, HS = 24, 1472, 5888
L_BI = 640
L_W = 24320
L_WO = L_W + 55296
L_R = L_WO + 18432
RS = 8224
L_SIZE = L_R + 8 * RS
assert L_SIZE == 163840
OOBL = 0x28000
PHS = opt('phs', 3)
QS = opt('qs', 0)
PK = opt('pk', 0)
if QS: INV = math.log2(math.e)
MK = 'c310' if QS else 'c3f5'
LD = opt('ld', 2)
EO = 24
VS = [6144, 1536, 3616] if PHS == 3 else [6144, 0, 3072]
KO = [1536, 3072, 4608, 0] if PHS == 3 else [0, 1536, 3072, 4608]
EP, EA, EB, EC, ED, EW = [4 * e for e in range(6)]

(vXr, vWe, vTo, vBi, vKw16, vKw8, vKr16, vKr8, vV0, vV1, vV2, vV3, vSoA, vSoB, vFg, vPw, vAd, vOne, T0, T1, T2, Mx0, Mx1) = range(1, 24)
vV = [vV0, vV1, vV2, vV3]
vWd = 0
vAdD = 190
XF = 24
WB = 48
ACC = [80, 96, 112]
QF = [128, 136, 144, 152]
OP = 128
KF = [160, 168]
VF = 176
SB = [[192, 208], [224, 240]]
tL, tN, tH, tG, tR, tCc, tX, tXB, tA, tB, tC, tD, tE, tO, tP, tQ, tRp = range(192, 209)
Z = 212
PL = 216
def qn(b, n): return 'v[%d:%d]' % (b, b + n - 1)

A = Asm()
ADD0 = '' if LD == 2 else 'v_mov_b32 v%d, %d\n' % (vAdD, OOBL)
SWAP = 's_xor_b32 s36, s36, 4\n' if opt('swap', 1) else ''
_st = [0]
def stamp(real=False):
    if not STAMP: return
    k = _st[0]; _st[0] += 1
    assert k < 16
    A('%s s[%d:%d]' % ('s_memrealtime' if real else 's_memtime', 64 + 2 * k, 65 + 2 * k))
class D(dict):
    def __missing__(self, k): return globals()[k]
def F(t): return t.format_map(D())
def B(t): A(F(t))
def m32(d, a, b, c): return 'v_mfma_f32_32x32x16_bf16 %s, %s, %s, %s' % (qn(d, 16), qn(a, 4), qn(b, 4), qn(c, 16) if c is not None else '0')
def m8(d, a, b, c): return 'v_mfma_f32_32x32x8_bf16 %s, %s, %s, %s' % (qn(d, 16), qn(a, 2), qn(b, 2), qn(c, 16))
def pk(d, a, b_): return 'v_cvt_pk_bf16_f32 v%d, v%d, v%d' % (d, a, b_)
Z1, Z2, Z3 = Z + 1, Z + 2, Z + 3
PL1, PL2, PL3, PL4, PL5 = range(PL + 1, PL + 6)

B('''
s_cmp_ge_u32 s2, 256
s_cbranch_scc1 L_end
''')
stamp(True); stamp()
B('''
s_load_dwordx2 s[16:17], s[0:1], 0
s_load_dwordx2 s[20:21], s[0:1], 8
s_load_dwordx2 s[28:29], s[0:1], 24
s_load_dwordx2 s[24:25], s[0:1], 16
s_load_dwordx2 s[32:33], s[0:1], 48
''')
if STAMP: B('s_load_dwordx2 s[96:97], s[0:1], 64\ns_mov_b32 s98, 0x200000\ns_mov_b32 s99, 0x00020000')
B('''
v_readfirstlane_b32 s36, v0
v_and_b32 v{tL}, 63, v0                  ; lane
v_mov_b32 v{Z}, 0
v_mov_b32 v{Z1}, 0
v_mov_b32 v{Z2}, 0
v_mov_b32 v{Z3}, 0
s_lshr_b32 s36, s36, 6                ; wave
{SWAP}s_mul_i32 s49, s36, 3040
v_lshl_add_u32 v{tA}, v{tL}, 4, s49
v_mul_u32_u24 v{tX}, 5, v{tL}
ds_write_b128 v{tA}, v[{Z}:{Z3}]
ds_write_b128 v{tA}, v[{Z}:{Z3}] offset:1024
ds_write_b128 v{tA}, v[{Z}:{Z3}] offset:2016
s_and_b32 s37, s36, 1                 ; t
s_lshr_b32 s38, s36, 1                ; i
v_lshrrev_b32 v{tX}, 6, v{tX}            ; tau
s_lshr_b32 s39, s2, 3                 ; wy
s_and_b32 s40, s2, 7
v_sub_u32 v{tX}, v{tL}, v{tX}
s_lshl2_add_u32 s40, s40, s38         ; wx
v_lshlrev_b32 v{tX}, 4, v{tX}
s_mul_i32 s41, s39, 7
v_mov_b32 v{tO}, 0x80000000
s_lshl2_add_u32 s41, s37, s41
v_cmp_gt_u32 vcc, 39, v{tL}
s_add_u32 s41, s41, 3
s_cmp_ge_u32 s41, 224
s_cselect_b32 s41, 0, s41
v_cndmask_b32 v{tXB}, v{tO}, v{tX}, vcc
s_mul_i32 s41, s41, 43008
s_mul_i32 s44, s40, 1344
s_add_u32 s44, s44, 576
s_add_u32 s45, s44, 768
s_cmp_eq_u32 s40, 31
s_cselect_b32 s45, 0, s45
s_add_u32 s44, s44, s41
s_add_u32 s45, s45, s41
s_mul_i32 s46, s36, {RS}
s_add_u32 s46, s46, {L_R}
s_mov_b32 s19, 0x00020000
s_mov_b32 s18, 9633792
s_mov_b32 s27, 0x00020000
s_mov_b32 s26, 18432
s_mov_b32 s62, -1
s_mov_b32 s63, 0xfffff
s_cmp_ge_u32 s36, 4
s_cbranch_scc1 L_g1
''')
def xrow(r, src=None):
    src = r if src is None else src
    t = 's_add_u32 m0, s46, %d\ns_add_u32 s54, s44, %s\nbuffer_load_dwordx4 v{tX}, s[16:19], s54 offen{XNT} lds\n' % (r * 1664, src * 43008 if isinstance(src, int) else src)
    t += 's_add_u32 m0, s46, %d\ns_add_u32 s54, s45, %s\nbuffer_load_dwordx4 v{tXB}, s[16:19], s54 offen{XNT} lds\n' % (r * 1664 + 832, src * 43008 if isinstance(src, int) else src)
    return t
def xa(r, src=None):
    src = r * 43008 if src is None else src
    return 's_add_u32 m0, s46, %d\ns_add_u32 s54, s44, %s\nbuffer_load_dwordx4 v{tX}, s[16:19], s54 offen{XNT} lds\n' % (r * 1664, src)
def xb(r, src=None):
    src = r * 43008 if src is None else src
    return 's_add_u32 m0, s46, %d\ns_add_u32 s54, s45, %s\nbuffer_load_dwordx4 v{tXB}, s[16:19], s54 offen{XNT} lds\n' % (r * 1664 + 832, src)
def wd(sl, sg, ks, dc=0):
    return 's_add_u32 m0, s%d, %d\ns_add_u32 s54, s%d, %d\nbuffer_load_dwordx4 v{tP}, s[20:23], s54 offen lds\n' % (sl, ks * 1024 + dc * 6144, sg, ks * 9216 + dc * 128)
X1 = 's_mov_b64 exec, s[62:63]\n'; X0 = 's_mov_b64 exec, -1\n'
WPAT = """v_lshrrev_b32 v{tB}, 3, v{tL}
v_and_b32 v{tC}, 7, v{tL}
v_mul_u32_u24 v{tB}, 1152, v{tB}
v_lshl_add_u32 v{tP}, v{tC}, 4, v{tB}    ; W voffset
s_mov_b32 s23, 0x00020000
s_mov_b32 s22, 55296
"""
B(WPAT + """s_lshl_b32 s49, s36, 9
v_lshl_add_u32 v{tRp}, v{tL}, 3, s49     ; rpb row 64 w + l
s_mov_b32 s31, 0x00020000
s_mov_b32 s30, 1352
s_lshl_b32 s49, s36, 10
s_add_u32 s49, s49, {L_W}
s_mul_i32 s50, s36, 9216
s_lshr_b32 s51, s36, 1
s_mul_i32 s52, s51, 9216
s_lshl_b32 s51, s51, 10
s_add_u32 s51, s51, {L_W}
s_mul_i32 s53, s37, 30720
s_add_u32 s53, s53, s51
s_mul_i32 s55, s37, 640
s_add_u32 s55, s55, s52
""" + X1 + 's_waitcnt lgkmcnt(0)\n' + xa(0) + X0 + 'buffer_load_dwordx2 v[{PL}:{PL1}], v{tRp}, s[28:31], 0 offen\n' + wd(49, 50, 0, 1) + wd(49, 50, 0, 6) + 's_barrier\n' + X1 + xb(0) + X0 + wd(49, 50, 0, 2) + wd(53, 55, 4, 1) + X1 + xa(1)
  + 's_cmp_eq_u32 s37, 1\ns_cbranch_scc1 L_x1\n' + xb(1) + xa(2) + xb(2) + xa(3) + xb(3) + X0 + 's_branch L_setup\nL_x1:\n' + X0 + wd(51, 52, 4, 2) + X1 + xb(1) + xa(2) + xb(2) + X0 + """
s_branch L_setup
L_g1:
""" + ("""s_cmp_lg_u32 s36, 5
s_cbranch_scc1 L_ncp
s_getpc_b64 s[56:57]
L_pc:
s_add_u32 s56, s56, L_setup-L_pc
s_addc_u32 s57, s57, 0
s_lshl_b32 s49, s39, 9
v_lshl_add_u32 v{tA}, v{tL}, 7, s49
v_min_u32 v{tA}, L_end-L_setup, v{tA}
s_mov_b64 exec, 15
global_load_dword v191, v{tA}, s[56:57]
s_mov_b64 exec, -1
L_ncp:
""" if opt('cpf', 0) else "") + WPAT + ("""s_cmp_lg_u32 s36, 4
s_cbranch_scc1 L_npf
s_mul_i32 s49, s39, 2304
v_lshl_add_u32 v{tA}, v{tL}, 7, s49
s_mov_b64 exec, 0x3ffff
s_cmp_ge_u32 s39, 24
s_waitcnt lgkmcnt(0)
s_cbranch_scc1 L_pf2
buffer_load_dword v{PL}, v{tA}, s[20:23], 0 offen
s_branch L_pf3
L_pf2:
v_subrev_u32 v{tA}, 55296, v{tA}
buffer_load_dword v{PL}, v{tA}, s[24:27], 0 offen
L_pf3:
s_mov_b64 exec, -1
L_npf:
""" if PF else "") + """s_waitcnt lgkmcnt(0)
s_barrier
s_mul_i32 s51, s37, 24576             ; columns c / c + 4
s_add_u32 s51, s51, {L_W}
s_lshl_b32 s52, s37, 9
s_mul_i32 s57, s37, 3072              ; halves t
s_add_u32 s57, s57, {L_W}
s_mul_i32 s58, s37, 27648
s_lshl_b32 s60, s37, 10
""")
A('L_setup:')
stamp()
qa, qb = QF[0] + 6, QF[0] + 7
k0a, k0b, k1a, k1b = KF[0] + 6, KF[0] + 7, KF[1] + 6, KF[1] + 7
B('''
v_and_b32 v{tN}, 31, v{tL}
v_lshrrev_b32 v{tH}, 5, v{tL}            ; hf
v_bfe_u32 v{tG}, v{tL}, 4, 1
v_bfe_u32 v{tR}, v{tL}, 2, 2
v_and_b32 v{tCc}, 3, v{tL}
v_lshlrev_b32 v{tQ}, 4, v{tL}            ; 16 l
s_mov_b32 s101, {L_W}
s_add_u32 s100, s101, 64
s_mul_i32 s47, s38, %d
s_add_u32 s47, s47, {L_R}             ; window region
v_mul_u32_u24 v{tA}, 208, v{tN}
v_lshl_add_u32 v{tA}, v{tH}, 4, v{tA}
v_add_u32 v{vXr}, s46, v{tA}
v_lshl_add_u32 v{tB}, v{tG}, 2, v{tCc}
v_lshlrev_b32 v{tB}, 3, v{tB}
v_lshrrev_b32 v{tC}, 1, v{tR}
v_lshl_add_u32 v{tC}, v{tH}, 2, v{tC}    ; row pair
v_lshl_add_u32 v{tB}, v{tC}, 7, v{tB}
v_and_b32 v{tC}, 1, v{tR}                ; parity
v_mul_u32_u24 v{tD}, 24640, v{tC}
v_add3_u32 v{vWe}, v{tB}, v{tD}, s101
v_mul_u32_u24 v{tD}, 30656, v{tC}
v_add3_u32 v{vWd}, v{tB}, v{tD}, s100
v_lshl_add_u32 v{tC}, v{tH}, 2, v{tR}    ; 4 hf + tR
v_mul_u32_u24 v{tC}, 192, v{tC}
v_and_b32 v{tA}, 1, v{tCc}
v_lshl_add_u32 v{tC}, v{tA}, 5, v{tC}
v_lshl_add_u32 v{tC}, v{tG}, 4, v{tC}
v_lshrrev_b32 v{tA}, 1, v{tCc}
v_lshl_add_u32 v{tC}, v{tA}, 3, v{tC}
v_add_u32 v{vTo}, {L_WO}, v{tC}
; bias: base + c CS + ((3 - qr - 4 t) BP + 4 hf + 4 (1 - (qc>>2))) * 4, c = 3 - (qc&3)
v_bfe_u32 v{tA}, v{tL}, 3, 2             ; qr
v_bfe_u32 v{tB}, v{tL}, 2, 1             ; qc>>2
v_sub_u32 v{tB}, v{tH}, v{tB}
v_lshlrev_b32 v{tB}, 4, v{tB}
v_mul_u32_u24 v{tD}, %d, v{tA}
v_sub_u32 v{tB}, v{tB}, v{tD}
v_mul_u32_u24 v{tD}, {CS}, v{tCc}
v_sub_u32 v{tB}, v{tB}, v{tD}
s_mul_i32 s54, s37, %d
s_sub_u32 s54, %d, s54
v_add_u32 v{vBi}, s54, v{tB}
; K / V exchange
v_add_u32 v{vKw16}, s46, v{tQ}
v_add_u32 v{vKr16}, s47, v{tQ}
v_lshlrev_b32 v{tA}, 3, v{tL}
s_add_u32 s54, s46, 1024
v_add_u32 v{vKw8}, s54, v{tA}
s_add_u32 s54, s47, 1024
v_add_u32 v{vKr8}, s54, v{tA}
v_mov_b32 v{tA}, %d
v_mov_b32 v{tB}, %d
v_cmp_gt_u32 vcc, 8, v{tN}
v_mov_b32 v{tC}, %d
v_mov_b32 v{tD}, %d
s_add_u32 s54, s47, %d
v_cndmask_b32 v{tA}, v{tB}, v{tA}, vcc
v_cmp_gt_u32 vcc, 16, v{tN}
v_mov_b32 v{tE}, s54                     ; ones chunk
v_add_u32 v{vV0}, %d, v{vKr16}
v_cndmask_b32 v{tC}, v{tD}, v{tC}, vcc
v_cmp_gt_u32 vcc, 24, v{tN}
v_add_u32 v{vV1}, v{tA}, v{vKr16}
v_add_u32 v{vV2}, v{tC}, v{vKr16}
v_add_u32 v{vV3}, %d, v{vKr16}
v_cndmask_b32 v{vV0}, v{tE}, v{vV0}, vcc
v_cndmask_b32 v{vV1}, v{tE}, v{vV1}, vcc
v_cndmask_b32 v{vV2}, v{tE}, v{vV2}, vcc
v_cndmask_b32 v{vV3}, v{tE}, v{vV3}, vcc
v_mov_b32 v{Z}, 0x3f803f80
v_mov_b32 v{Z1}, 0x3f803f80
v_mov_b32 v{Z2}, 0x3f803f80
v_mov_b32 v{Z3}, 0x3f803f80
v_mul_u32_u24 v{tA}, 1040, v{tL}
s_add_u32 s54, s46, %d
v_add_u32 v{tA}, s54, v{tA}
s_mov_b64 exec, 3
ds_write_b128 v{tA}, v[{Z}:{Z3}]
s_mov_b64 exec, -1
; store offsets
s_mul_i32 s42, s40, 7
s_add_u32 s42, s42, 3
v_and_b32 v{tB}, 7, v{tL}                ; col
v_add_u32 v{tC}, s42, v{tB}
v_subrev_u32 v{tD}, 224, v{tC}
v_min_u32 v{tC}, v{tC}, v{tD}
v_mul_u32_u24 v{tC}, 192, v{tC}
v_lshrrev_b32 v{tD}, 4, v{tL}
v_lshl_add_u32 v{tC}, v{tD}, 4, v{tC}
v_bfe_u32 v{tA}, v{tL}, 3, 1
v_mul_u32_u24 v{tD}, 43008, v{tA}
v_add_u32 v{tC}, v{tC}, v{tD}
v_cmp_eq_u32 s[14:15], 7, v{tB}
s_cmp_eq_u32 s37, 1
s_cselect_b32 s54, 1, 99
v_cmp_eq_u32 vcc, s54, v{tA}
s_add_u32 s43, s41, 86016
s_mov_b32 s35, 0x00020000
s_mov_b32 s34, 9633792
v_cndmask_b32 v{vSoA}, v{tC}, v{tO}, s[14:15]
s_lshl_b32 s54, s36, 6
v_mov_b32 v{vFg}, s54
v_cndmask_b32 v{vSoB}, v{vSoA}, v{tO}, vcc
; signals
s_xor_b32 s54, s54, 64
v_mov_b32 v{tA}, {OOBL}
v_mov_b32 v{tB}, s54
v_cmp_eq_u32 vcc, 0, v{tL}
v_lshlrev_b32 v{tC}, 6, v{tL}
v_cndmask_b32 v{vPw}, v{tA}, v{tB}, vcc
v_cmp_gt_u32 vcc, 8, v{tL}
v_mov_b32 v{vOne}, 1
; aug slots
s_cmp_eq_u32 s40, 31
s_cselect_b32 s54, 4, 99
v_cndmask_b32 v{vAd}, v{tA}, v{tC}, vcc
v_and_b32 v{tA}, 36, v{tL}
v_cmp_eq_u32 vcc, s54, v{tA}
v_mov_b32 v{tB}, 1.0
v_mov_b32 v{tC}, 0x3f80
v_mov_b32 v{tD}, 0x{MK}
v_mov_b32 v{tE}, 0x{MK}0000
s_cmp_eq_u32 s39, 31
s_cselect_b32 s4, -1, 0
s_mov_b32 s5, 0                       ; s[4:5] = ymask & lower half
s_cmp_eq_u32 s37, 1
s_cselect_b32 s6, s4, 0
s_mov_b32 s7, 0                       ; s[6:7] = same, tile 1 queries only
v_cndmask_b32 v{tA}, v{tC}, v{tB}, vcc   ; q one-hot
v_cndmask_b32 v{tE}, v{tE}, v{tD}, vcc   ; kone
v_mov_b32 v{tB}, 0xff00
v_cmp_lt_u32 vcc, 31, v{tL}
v_cndmask_b32 v{tB}, 0, v{tB}, s[14:15]  ; invalid key
v_mov_b32 v{tC}, 0x{MK}{MK}
v_cndmask_b32 v{k0a}, v{tE}, v{tB}, vcc
v_cndmask_b32 v{k0b}, v{tC}, 0, vcc
v_cndmask_b32 v{qa}, v{tA}, 0, s[6:7]
v_cndmask_b32 v{qb}, 0, v{tA}, s[6:7]
v_cndmask_b32 v{k1a}, v{k0a}, v{k0b}, s[4:5]
v_cndmask_b32 v{k1b}, v{k0b}, v{k0a}, s[4:5]
''' % (2 * RS, BP * 4, 4 * BP * 4, L_BI + 3 * CS + (3 * BP + 4) * 4,
       VS[0] + 384, VS[1] - 128, VS[1] + 256, VS[2] - 256, VS[0] + 1024, VS[0], VS[2] + 128, VS[0] + 1024))
for h in range(1, 4): B('v_mov_b32 v%d, v{qa}\nv_mov_b32 v%d, v{qb}' % (QF[h] + 6, QF[h] + 7))
if LD == 2: B('''
s_mul_i32 s56, s36, 3072
s_mul_i32 s12, s36, 27648
s_add_u32 s12, s12, 1024
s_sub_u32 s13, s56, 6144
s_cmp_lt_u32 s36, 2
s_cselect_b32 s8, s20, s24
s_cselect_b32 s9, s21, s25
s_cselect_b32 s10, s22, s26
s_mov_b32 s11, 0x00020000
s_cselect_b32 s12, s12, s13
s_cselect_b32 s48, 9, 1
s_cselect_b64 vcc, -1, 0
s_cselect_b32 s54, 8, 16
s_lshl_b32 s48, s48, 10
s_lshl_b32 s54, 1, s54
s_add_u32 s13, s12, s48
s_add_u32 s48, s13, s48
s_add_u32 s56, s56, %d
v_cndmask_b32 v191, v{tQ}, v{tP}, vcc
s_lshr_b32 s55, s36, 2
s_add_u32 s54, s54, s55
v_mov_b32 v{vAdD}, s54
''' % (L_W + 49152))
stamp()
def sig_all(off): return 'ds_add_u32 v{vAd}, v{vOne} offset:%d\n' % off
B('''
s_cmp_ge_u32 s36, 4
s_cbranch_scc1 L_d1
s_lshl_b32 s54, s36, 6
v_add_u32 v{tA}, s54, v{tL}              ; idx
v_mul_u32_u24 v{tB}, 79, v{tA}
v_lshrrev_b32 v{tB}, 10, v{tB}           ; i13
v_cmp_gt_u32 vcc, 169, v{tA}
v_mul_u32_u24 v{tB}, %d, v{tB}
v_lshl_add_u32 v{tB}, v{tA}, 2, v{tB}
v_sub_u32 v{tB}, %d, v{tB}               ; 4 e
s_mov_b32 s54, %s
{ADD0}s_cmp_eq_u32 s37, 1
s_waitcnt vmcnt(11)
s_cbranch_scc0 L_r0
s_waitcnt vmcnt(10)
L_r0:
v_lshlrev_b32 v{PL2}, 16, v{PL}
v_and_b32 v{PL3}, 0xffff0000, v{PL}
v_lshlrev_b32 v{PL4}, 16, v{PL1}
v_and_b32 v{PL5}, 0xffff0000, v{PL1}
v_mul_f32 v{PL2}, s54, v{PL2}
v_mul_f32 v{PL3}, s54, v{PL3}
v_mul_f32 v{PL4}, s54, v{PL4}
v_mul_f32 v{PL5}, s54, v{PL5}
s_mov_b64 exec, vcc
''' % ((BP - 13) * 4, (13 * BP + 13) * 4, f32(INV)))
for hh in range(4):
    for c in range(4):
        A('ds_write_b32 v%d, v%d offset:%d' % (tB, PL2 + hh, L_BI + hh * HS + c * (CS - 4)))
XL = [xa(0), xb(0), xa(1), xb(1), xa(2), xb(2), xa(3, 's61'), xb(3, 's61')]
def wo(us):
    t = ''
    for u in us: t += 's_add_u32 m0, s59, %d\ns_add_u32 s54, s60, %d\nbuffer_load_dwordx4 v{tQ}, s[24:27], s54 offen lds\n' % (u * 2048, u * 2048)
    return t
t = X0 + 's_waitcnt vmcnt(6)\ns_cbranch_scc0 L_r1\ns_waitcnt vmcnt(3)\nL_r1:\n' + sig_all(EA) + 's_branch L_main\nL_d1:\n'
t += """s_cmp_eq_u32 s37, 1
s_cselect_b32 s61, 0, 43008
s_add_u32 s61, s61, 86016
s_cmp_ge_u32 s36, 6
s_cbranch_scc1 L_d2
"""
if LD:
    t = t[:t.index('s_cmp_ge_u32 s36, 6\ns_cbranch_scc1 L_d2\n')]
    t += """s_sub_u32 s51, s36, 4
s_mul_i32 s52, s51, 9216              ; ks = j
s_lshl_b32 s60, s51, 10
s_add_u32 s51, s60, {L_W}
s_add_u32 s57, s38, 2                 ; ks = 4 + i'
s_mul_i32 s58, s57, 9216
s_lshl_b32 s57, s57, 10
s_mul_i32 s54, s37, 24576
s_add_u32 s57, s57, s54
s_add_u32 s57, s57, {L_W}
s_lshl_b32 s54, s37, 9
s_add_u32 s58, s58, s54
s_lshl_b32 s49, s37, 10
s_add_u32 s53, s49, {L_W}
s_mul_i32 s55, s37, 9216              ; ks = 4 + t
s_add_u32 s59, s60, {L_WO}
s_add_u32 s50, s49, {L_WO}
"""
    t += wd(51, 52, 0, 0) + wd(51, 52, 0, 4) + wd(57, 58, 0, 0)
    CD = [wd(51, 52, 0, 3), wd(51, 52, 0, 7), wd(57, 58, 0, 3), wd(51, 52, 0, 5), wd(53, 55, 4, 5)]
    if LD == 2:
        seq = {0: 'xcxcxcxcxcxxx', 1: 'xxcxcxcxcxcxx', 2: 'xxxcxcxcxcxcx', 3: 'xxcxcxxcxcxcx', 4: 'cxcxcxcxcxxxx'}[opt('ord', 0)]
        q = {'c': CD, 'x': list(XL)}
        for k, ch in enumerate(seq):
            if ch == 'x' and (k == 0 or seq[k - 1] != 'x'): t += X1
            if ch != 'x' and k and seq[k - 1] == 'x': t += X0
            t += q[ch].pop(0)
            if k + 1 == opt('ebp', 10): t += 's_waitcnt vmcnt(%d)\n' % (k + 1) + sig_all(EB)
        t += X0
if LD == 1:
    t += X1 + ''.join(XL) + X0 + 's_waitcnt vmcnt(8)\n' + sig_all(EB)
    t += ''.join(CD)
    t += wd(51, 52, 0, 8) + wd(53, 55, 4, 8)
    for u in range(4): t += 's_add_u32 m0, s59, %d\ns_add_u32 s54, s60, %d\nbuffer_load_dwordx4 v{tQ}, s[24:27], s54 offen lds\n' % (u * 4096, u * 4096)
    t += 's_add_u32 m0, s50, 16384\ns_add_u32 s54, s49, 16384\nbuffer_load_dwordx4 v{tQ}, s[24:27], s54 offen lds\n'
if LD: XN = 12; LATE_C = LATE_D = False
else:
    t += X1 + ''.join(XL) + X0 + 's_branch L_main\nL_d2:\n'
    WB_ = [wd(51, 52, k) for k in range(6)]; WC_ = [wd(57, 58, k, 5) for k in range(3)]; WD_ = [wd(51, 52, k, 3) for k in range(6)]
    seq = {0: 'BBBBBB' + 'xCxCxCxDxDxDxDxDD', 1: 'BBBBBB' + 'xxxxxxxx' + 'CCCDDDDDD', 2: 'BxBxBxBxBxBxxx' + 'CCCDDDDDD', 3: 'BBBBBB' + 'xCxCxCxxxxx' + 'DDDDDD'}[opt('ord', 0)]
    q = {'B': list(WB_), 'C': list(WC_), 'D': list(WD_), 'x': list(XL)}
    aft = lambda ch: len(seq) - 1 - seq.rindex(ch)
    EBP = min(opt('ebp', 2), aft('B'))
    for k, ch in enumerate(seq):
        if ch == 'x' and seq[k - 1] != 'x': t += X1
        if ch != 'x' and k and seq[k - 1] == 'x': t += X0
        t += q[ch].pop(0)
        if k == seq.rindex('B') + EBP:
            t += 's_waitcnt vmcnt(%d)\n' % EBP + sig_all(EA if PHS == 3 else EB)
    if seq[-1] == 'x': t += X0
    t += 's_add_u32 s59, s60, {L_WO}\n'
    t += ''.join(wd(57, 58, k, 8) for k in range(3)) + wo(range(9))
    XN = aft('x') + 12
    LATE_D = aft('D') < aft('x')
    if PHS != 3: t += 's_waitcnt vmcnt(%d)\n' % (aft('C') + 12) + sig_all(EC) if aft('C') >= aft('x') else ''
    LATE_C = aft('C') < aft('x')
    if not LATE_D and PHS != 3: t += 's_waitcnt vmcnt(12)\n' + sig_all(ED)
if LD == 2: B(t + 'L_main:\n')
else:
    t += 'v_mov_b32 v{vAdD}, v{vAd}\nL_main:\n'
    B(t.replace('L_d1:\n', 'L_d1:\nv_mov_b32 v{vAdD}, {OOBL}\n'))
if BAR:
    B('s_waitcnt vmcnt(0)')
    if BAR == 2: B('s_cmp_lt_u32 s36, 4\ns_cbranch_scc1 L_bar\n' + ''.join('s_add_u32 m0, s56, %d\nbuffer_load_dwordx4 v191, s[8:11], s%d offen lds\n' % (u * 1024, (12, 13, 48)[u]) for u in range(3)) + 's_waitcnt vmcnt(0)\nds_add_u32 v{vAd}, v{vAdD} offset:{ED}\nds_add_u32 v{vAd}, v{vAdD} offset:{EW}\ns_waitcnt lgkmcnt(0)\ns_barrier\ns_endpgm\nL_bar:')
    B('s_barrier')
if QS or PK: A('s_mov_b32 s3, %s' % f32(C_EXP))
A('s_waitcnt lgkmcnt(0)'); A('s_nop 1')
stamp()

slow = []
TAGS = {}
N = []
PH = [0]
def ph(k):
    if PHS: PH[0] = k
LM = [None]
def n(t, tag=None, **k):
    X = Node(t, **k); N.append(X); X.ph = PH[0]
    if PHS == 3 and X.kind == 'mfma':
        if LM[0] is not None: X.after.append((LM[0], 32))
        LM[0] = X
    if tag: TAGS[id(X)] = tag
    return X
_tmp = [0]
FRD = 'ds_read_u8' if LD == 2 else 'ds_read_b32'
CHK = {}
def check(name, off, cmpi, rd=(), after=(), bias=0):
    tmp = (T0, T1, T2)[_tmp[0] % 3]; _tmp[0] += 1
    n(F('%s v%d, v{vFg} offset:%d' % (FRD, tmp, off)), rd=rd, wr=['f' + name], after=after, bias=bias)
    C = n('%s, v%d' % (cmpi, tmp), wr=['vcc'], bias=bias)
    Bn = n('s_cbranch_vccnz L_z%s\nL_k%s:' % (name, name), rd=['vcc', 'f' + name], wr=[name], after=[(C, 24)], bias=bias, tag=name)
    CHK[id(Bn)] = (name, off, cmpi, tmp)
def sp(c): return ('f' + c) if SPEC else c
def ev(name, off, cnt=4, **k): check(name, off, 'v_cmp_ne_u32 vcc, %d' % cnt, **k)
def sig(k, rd, ph0=None):
    X = n(F('ds_add_u32 v{vPw}, v{vOne}'), rd=list(rd) + ['sig'], wr=['sig', 'sg%d' % k])
    if ph0 is not None: X.ph = ph0
    check('c%d' % k, EP, 'v_cmp_gt_u32 vcc, %d' % k, after=[(X, opt('sync%d' % k, SYNC))])
def tr(dst, addr, off, **k): n('ds_read_b64_tr_b16 %s, v%d offset:%d' % (qn(dst, 2), addr, off), **k)
def r128(dst, addr, off, **k): n('ds_read_b128 %s, v%d offset:%d' % (qn(dst, 4), addr, off), **k)
def r64(dst, addr, off, **k): n('ds_read_b64 %s, v%d offset:%d' % (qn(dst, 2), addr, off), **k)
def w128(src, addr, off, **k): n('ds_write_b128 v%d, %s offset:%d' % (addr, qn(src, 4), off), **k)
def w64(src, addr, off, **k): n('ds_write_b64 v%d, %s offset:%d' % (addr, qn(src, 2), off), **k)

UEV = ['ea', 'ea', 'eb', 'ec', 'ed', 'ed', 'ec', 'ew', 'ew']
TAU = [3, 4, 0, 1, 6, 5, 2, 7, 8]
PRE = set()
def wtr(U, s):
    k = 6 * U + s
    if k in PRE: return
    PRE.add(k)
    wb = WB + 4 * (k % 8)
    for u in range(2): tr(wb + 2 * u, vWd if TAU[U] & 1 else vWe, (TAU[U] >> 1) * 6144 + s * 1024 + u * 256, rd=[sp(UEV[U])], wr=(['w%d%d' % (k, u)] if k < 8 else []))
def unit(U, isV):
    a = ACC[U % 3]
    for s in range(6):
        wb = WB + 4 * ((6 * U + s) % 8)
        wtr(U, s)
        x = XF + 4 * s
        n(m32(a, x, wb, a if s else None) if isV else m32(a, wb, x, a if s else None), rd=[UEV[U]], wr=['u%d%d' % (U, s)], tag=('u%d' % U if s == 5 else 'st' if (U, s) == (0, 0) else None))
    return a
def packin(a):
    for j in range(8): n(pk(a + j, a + 2 * j, a + 2 * j + 1))
def qcvt(T, a):
    if QS == 1:
        for i in range(16): n('v_mul_f32 v%d, s3, v%d' % (a + i, a + i))
    if QS == 2:
        for i in range(0, 16, 2): n('v_pk_mul_f32 %s, %s, s[2:3] op_sel:[0,1] op_sel_hi:[1,1]' % (qn(a + i, 2), qn(a + i, 2)))
    for g in range(4):
        h, p = divmod(4 * T + g, 3)
        for j in range(2): n(pk(QF[h] + 2 * p + j, a + 4 * g + 2 * j, a + 4 * g + 2 * j + 1))
def kread(h, c):
    for tk in range(2):
        r128(KF[tk], vKr16, tk * RS + KO[h], rd=[sp(c), 'kw%d' % h], wr=['kr%d%da' % (h, tk)])
        r64(KF[tk] + 4, vKr8, tk * RS + KO[h], rd=[sp(c), 'kw%d' % h], wr=['kr%d%db' % (h, tk)])
def krd(*hs): return ['kr%d%d%s' % (h, tk, x) for h in hs for tk in range(2) for x in 'ab']
def smm(h, c):
    for tk in range(2):
        d = SB[h % 2][tk]
        for a in range(4 - tk): r128(d + 4 * a, vBi, h * HS + (a + 4 * tk + 4) * BP * 4, rd=['ea'])
    for tk in range(2):
        d = SB[h % 2][tk]
        n(m32(d, KF[tk], QF[h], d), rd=[c])
        n(m32(d, KF[tk] + 4, QF[h] + 4, d), rd=[c], tag=('s%d' % h if tk else None))
LE = [None]
def softmax(h):
    m = (Mx0, Mx1)[h % 2]; t_ = m ^ 0
    S0, S1 = SB[h % 2]
    regs = [S0 + i for i in range(16)] + [S1 + i for i in range(12)]
    tm = S1 + 12
    n('v_max3_f32 v%d, v%d, v%d, v%d' % (m, regs[0], regs[1], regs[2]))
    for i in range(3, 27, 2): n('v_max3_f32 v%d, v%d, v%d, v%d' % (m, m, regs[i], regs[i + 1]))
    n('v_max_f32 v%d, v%d, v%d' % (m, m, regs[27]))
    n('v_mov_b32 v%d, v%d' % (tm, m))
    n('v_permlane32_swap_b32 v%d, v%d' % (tm, m))
    n('v_max_f32 v%d, v%d, v%d' % (m, m, tm), tag=('m%d' % h if QS else None))
    if not QS: n('v_mul_f32 v%d, %s, v%d' % (m, f32(-C_EXP), m), tag='m%d' % h)
    for j in range(14):
        if PK & 1:
            r = regs[2 * j]; o_ = h % 2
            if QS: n('v_pk_add_f32 %s, %s, %s op_sel:[0,%d] op_sel_hi:[1,%d] neg_lo:[0,1] neg_hi:[0,1]' % (qn(r, 2), qn(r, 2), qn(Mx0, 2), o_, o_))
            else: n('v_pk_fma_f32 %s, %s, s[2:3], %s op_sel:[0,1,%d] op_sel_hi:[1,1,%d]' % (qn(r, 2), qn(r, 2), qn(Mx0, 2), o_, o_))
        for r in regs[2 * j:2 * j + 2]:
            if not PK & 1: n('v_sub_f32 v%d, v%d, v%d' % (r, r, m) if QS else 'v_fmamk_f32 v%d, v%d, %s, v%d' % (r, r, f32(C_EXP), m))
            LE[0] = n('v_exp_f32 v%d, v%d' % (r, r), after=([(LE[0], opt('ep', 8) if PK & 1 else 12)] if LE[0] else []), bias=EBIAS)
        n(pk(S0 + j, regs[2 * j], regs[2 * j + 1]), tag=('e%d' % h if j == 13 else None), wr=(['hm%d' % h] if j == opt('hj', 8) else []))
def pv(h, c, rd):
    P, o = SB[h % 2]
    rd = rd + [sp(c) if h < (1 if PHS == 3 else 3) or (PHS == 3 and h in (1, 2)) else c]
    r128(VF, vV[h], 0, rd=rd); r128(VF + 4, vV[h], 1040, rd=rd); r128(VF + 8, vV[h], RS, rd=rd); r64(VF + 12, vV[h], RS + 1040, rd=rd)
    n(m32(o, VF, P, None), rd=[c])
    n(m32(o, VF + 4, P + 4, o), rd=[c])
    n(m32(o, VF + 8, P + 8, o), rd=[c])
    n(m8(o, VF + 12, P + 12, o), rd=[c], tag='p%d' % h)
    if PHS: return
    norm(h)
def norm(h):
    P, o = SB[h % 2]
    n('v_rcp_f32 v%d, v%d' % (o + 13, o + 12))
    if PK & 2:
        for i in range(0, 12, 2): n('v_pk_mul_f32 %s, %s, %s op_sel:[0,1] op_sel_hi:[1,1]' % (qn(o + i, 2), qn(o + i, 2), qn(o + 12, 2)))
    else:
        for i in range(12): n('v_mul_f32 v%d, v%d, v%d' % (o + i, o + i, o + 13))
    for j in range(6): n(pk(OP + 6 * h + j, o + 2 * j, o + 2 * j + 1), tag=('o%d' % h if j == 5 else None))
def vwrite(T, a, rd):
    packin(a)
    w128(a, vKw16, VS[T], rd=rd, wr=['vw%d' % T]); w128(a + 4, vKw16, VS[T] + 1040, rd=rd + ['vw%d' % T], wr=['vw%d' % T])
OEV = ['ew']
WOB = [WB + 4 * i for i in range(8)] + [XF + 4 * i for i in range(6)]
def outk(ks):
    for T in range(3):
        wb = WOB[(3 * ks + T) % 14]
        for u in range(2): tr(wb + 2 * u, vTo, ks * 3072 + u * 1536 + T * 64, rd=[sp(OEV[0]) if OEV[0] == 'eo' and ks == 0 else OEV[0]])
        n(m32(ACC[T], wb, OP + 4 * ks, ACC[T] if ks else None), rd=[OEV[0]], tag=('k%d' % ks if T == 2 else None))

def outk2(k0, k1):
    for T in range(3):
        for ks in (k0, k1):
            wb = WOB[(3 * ks + T) % 14]
            for u in range(2): tr(wb + 2 * u, vTo, ks * 3072 + u * 1536 + T * 64, rd=[OEV[0]])
            n(m32(ACC[T], wb, OP + 4 * ks, ACC[T]), tag=('k%d' % ks if T == 2 else None), bias=(2 - T) * opt('tb', 40))
AN = ['u0%d' % opt('an0', 2), 'u%d' % opt('an1', 20), 'u%d' % opt('an2', 30), 'u%d' % opt('an3', 60)]
if PHS == 3:
    UEV[:] = ['ea', 'ea', 'eb' if LD else 'ea', 'ed', 'ed', 'ed', 'ed', 'ew', 'ew']
    ev('ea', EA, 4 if LD else 6)
    NS = 4 if LD else 2
    ORDU = [0, 2, 1, 4, 3, 5, 7, 6, 8]
    SL = {}
    for i_, U in enumerate(ORDU):
        for s in range(6): SL[(U, s)] = (6 * i_ + s) % 8
    def wtr(U, s, first=False):
        k = 6 * U + s
        if k in PRE: return
        PRE.add(k)
        wb = WB + 4 * SL[(U, s)]
        for u in range(2): tr(wb + 2 * u, vWd if TAU[U] & 1 else vWe, (TAU[U] >> 1) * 6144 + s * 1024 + u * 256, rd=[sp(UEV[U])], wr=(['w%d%d' % (k, u)] if first else []))
    def unit(U, isV, a):
        for s in range(6):
            wb = WB + 4 * SL[(U, s)]
            wtr(U, s)
            x = XF + 4 * s
            n(m32(a, x, wb, a if s else None) if isV else m32(a, wb, x, a if s else None), rd=[UEV[U]], wr=['u%d%d' % (U, s)], tag=('u%d' % U if s == 5 else 'st' if (U, s) == (0, 0) else None))
        return a
    F8 = [(0, s) for s in range(6)] + ([] if LD else [(2, 0), (2, 1)])
    for U, s in F8: wtr(U, s, True)
    if LD == 2: n('s_waitcnt vmcnt(0)', rd=['ea'] + ['w%d%d' % (6 * U + s, u) for U, s in F8 for u in range(2)], wr=['x'], tag='x')
    else:
        n('s_waitcnt vmcnt(%d)\ns_cmp_ge_u32 s36, %d\ns_cbranch_scc1 L_xw\ns_waitcnt vmcnt(0)\nL_xw:' % (XN, 4 if LD else 6), rd=['ea'] + ['w%d%d' % (6 * U + s, u) for U, s in F8 for u in range(2)], wr=['x'], tag='x')
    for s in range(6): r128(XF + 4 * s, vXr, s * 32, rd=['x'], wr=(['xr'] if s == 5 else []))
    a = unit(0, False, ACC[0]); packin(a)
    if LD: ev('eb', EB, 4, rd=['u0%d' % opt('eba', 1)])
    w128(a, vKw16, KO[0], wr=['kw0']); w64(a + 4, vKw8, KO[0], rd=['kw0'], wr=['kw0']);
    sig(1, ['kw0'])
    w64(a + 6, vKw16, KO[1], wr=['kw1'])
    def eld(u, after): n('s_add_u32 m0, s56, %d\nbuffer_load_dwordx4 v191, s[8:11], s%d offen lds' % (u * 1024, (12, 13, 48)[u]), rd=[after, 'ld'], wr=['ld'])
    assert LD == 2
    n(F('ds_add_u32 v{vAd}, v{vAdD} offset:{ED}'), rd=['x', 'xr'], wr=['sd'])
    eld(0, 'u05')
    a = unit(2, False, ACC[1]); qcvt(0, a)
    if LD == 2: eld(1, 'u25')
    a = unit(1, False, ACC[2]); packin(a)
    if LD == 2: eld(2, 'u15')
    w64(a, vKw16, KO[1] + 8, rd=['kw1'], wr=['kw1']); w64(a + 2, vKw8, KO[1], rd=['kw1'], wr=['kw1']); w128(a + 4, vKw16, KO[2], wr=['kw2'])
    kread(0, 'c1'); smm(0, 'c1')
    ph(1); softmax(0)
    if LD != 2: Xw = n(F('s_waitcnt vmcnt(0)\nds_add_u32 v{vAdD}, v{vOne} offset:{EW}'), rd=['hm0', 'sd'], wr=['sw'])
    ph(2)
    ev('ed', ED, NS, rd=['sd', 'hm0'])
    a = unit(4, True, ACC[0]); vwrite(0, a, [])
    if LD == 2: Xw = n(F('s_waitcnt vmcnt(0)\nds_add_u32 v{vAd}, v{vAdD} offset:{EW}'), rd=['ed', 'ld', 'u4%d' % opt('swa', 2)], wr=['sw'])
    sig(2, ['vw0', 'kw1'])
    a = unit(3, False, ACC[1]); qcvt(1, a)
    a = unit(5, False, ACC[2]); packin(a)
    w64(a, vKw8, KO[2], rd=['kw2'], wr=['kw2']); w128(a + 2, vKw16, KO[3], wr=['kw3']); w64(a + 6, vKw8, KO[3], rd=['kw3'], wr=['kw3'])
    kread(1, 'c2'); smm(1, 'c2')
    ph(4); sig(3, ['kw2', 'kw3'] + krd(0, 1), ph0=2); ph(2)
    pv(0, 'c2', ['vw0'])
    ph(3); softmax(1); norm(0); ph(4)
    if LD == 2: ev('ew', EW + 1, 2, rd=['sw', 'hm1'])
    else: ev('ew', EW, NS, rd=['sw', 'hm1'])
    kread(2, 'c3')
    a = unit(7, True, ACC[0]); vwrite(1, a, ['c3'] + krd(0, 1))
    sig(4, ['vw1'] + krd(2))
    a = unit(6, False, ACC[1]); qcvt(2, a)
    a = unit(8, True, ACC[2])
    smm(2, 'c3')
    kread(3, 'c3')
    vwrite(2, a, ['c4'] + krd(1, 2))
    ph(6); sig(5, ['vw2'], ph0=4); ph(4)
    pv(1, 'c4', ['vw0', 'vw1'])
    ph(5); softmax(2); norm(1); ph(6)
    if LD == 2: ev('eo', EW + 2, 6, rd=['sw', 'hm2']); OEV[0] = 'eo'
    smm(3, 'c3')
    outk(0); outk(1); outk(2)
    pv(2, 'c5', ['vw1', 'vw2'])
    ph(7); softmax(3); norm(2); ph(8)
    pv(3, 'c5', ['vw2']); outk(3); norm(3)
    outk2(4, 5)
else:
    ev('ea', EA, 4)
    for k in range(8): wtr(k // 6, k % 6)
    n('s_waitcnt vmcnt(%d)\ns_cmp_ge_u32 s36, 6\ns_cbranch_scc1 L_xw\ns_waitcnt vmcnt(0)\nL_xw:' % XN, rd=['ea'] + ['w%d%d' % (i, u) for i in range(8) for u in range(2)], wr=['x'], tag='x')
    for s in range(6): r128(XF + 4 * s, vXr, s * 32, rd=['x'])
    a = unit(0, False); packin(a)
    w128(a, vKw16, 0, wr=['kw0']); w64(a + 4, vKw8, 0, rd=['kw0'], wr=['kw0']); w64(a + 6, vKw16, 1536, wr=['kw1'])
    n(F('s_waitcnt vmcnt(18)\nds_add_u32 v{vAdD}, v{vOne} offset:{EC}' if LATE_C else 's_nop 0'), rd=['u02'], wr=['sc'])
    n(F('s_waitcnt vmcnt(12)\nds_add_u32 v{vAdD}, v{vOne} offset:{ED}' if LATE_D else 's_nop 0'), rd=['u05', 'sc'], wr=['sd'])
    ev('eb', EB, 2, rd=[AN[0]])
    a = unit(1, False); packin(a)
    w64(a, vKw16, 1536 + 8, rd=['kw1'], wr=['kw1']); w64(a + 2, vKw8, 1536, rd=['kw1'], wr=['kw1']); w128(a + 4, vKw16, 3072, wr=['kw2'])
    sig(1, ['kw0', 'kw1'])
    a = unit(2, False); qcvt(0, a)
    if not PHS: ev('ec', EC, 2, rd=[AN[1], 'sc'])
    kread(0, 'c1'); smm(0, 'c1')
    ph(1); softmax(0) if PHS else None
    ph(2)
    if PHS: ev('ec', EC, 2, rd=['sc', 'hm0'])
    a = unit(3, False); qcvt(1, a)
    Xw = n(F('s_waitcnt vmcnt(0)\nds_add_u32 v{vAdD}, v{vOne} offset:{EW}'), rd=['u30', 'sd'], wr=['sw'])
    ev('ed', ED, 2, rd=(['sd', 'hm0'] if PHS else [AN[2], 'sd']))
    kread(1, 'c1'); smm(1, 'c1')
    if not PHS: softmax(0)
    a = unit(4, True); vwrite(0, a, [])
    a = unit(5, False); packin(a)
    w64(a, vKw8, 3072, rd=['kw2'], wr=['kw2']); w128(a + 2, vKw16, 4608, wr=['kw3']); w64(a + 6, vKw8, 4608, rd=['kw3'], wr=['kw3'])
    sig(2, ['vw0', 'kw2', 'kw3'] + krd(0, 1))
    if PHS == 1:
        a = unit(6, False); qcvt(2, a)
        pv(0, 'c2', ['vw0'])
        ph(3); softmax(1); norm(0); ph(4)
        ev('ew', EW, 2, rd=['sw', AN[3]])
        a = unit(7, True); vwrite(1, a, ['c2'] + krd(0, 1))
        kread(2, 'c2'); smm(2, 'c2')
        kread(3, 'c2')
        sig(3, ['vw1'] + krd(2, 3))
        a = unit(8, True)
        pv(1, 'c3', ['vw0', 'vw1'])
        vwrite(2, a, ['c3'] + krd(2, 3))
        sig(4, ['vw2'])
        outk(0)
        ph(5); softmax(2); norm(1); ph(6)
        smm(3, 'c2')
        pv(2, 'c4', ['vw1', 'vw2'])
        outk(1); outk(2)
        ph(7); softmax(3); norm(2); ph(8)
        pv(3, 'c4', ['vw2']); outk(3); norm(3)
        outk(4); outk(5)
    elif PHS == 2:
        pv(0, 'c2', ['vw0'])
        ph(3); softmax(1); norm(0); ph(4)
        ev('ew', EW, 2, rd=['sw', 'hm1'])
        a = unit(7, True); vwrite(1, a, ['c2'] + krd(0, 1))
        a = unit(6, False); qcvt(2, a)
        kread(2, 'c2'); smm(2, 'c2')
        kread(3, 'c2')
        sig(3, ['vw1'] + krd(2, 3))
        pv(1, 'c3', ['vw0', 'vw1'])
        outk(0)
        ph(5); softmax(2); norm(1); ph(6)
        a = unit(8, True)
        vwrite(2, a, ['c3'] + krd(2, 3))
        sig(4, ['vw2'])
        smm(3, 'c2')
        outk(1); outk(2)
        pv(2, 'c4', ['vw1', 'vw2'])
        ph(7); softmax(3); norm(2); ph(8)
        pv(3, 'c4', ['vw2']); outk(3); norm(3)
        outk2(4, 5)
    else:
        pv(0, 'c2', ['vw0'])
        a = unit(6, False); qcvt(2, a)
        ev('ew', EW, 2, rd=['sw', AN[3]])
        kread(2, 'c2'); smm(2, 'c2')
        kread(3, 'c2')
        softmax(1)
        a = unit(7, True); vwrite(1, a, ['c2'] + krd(0, 1))
        sig(3, ['vw1'] + krd(2, 3))
        pv(1, 'c3', ['vw0', 'vw1'])
        smm(3, 'c2')
        a = unit(8, True); vwrite(2, a, ['c3'] + krd(2, 3))
        sig(4, ['vw2'])
        softmax(2)
        outk(0)
        pv(2, 'c4', ['vw1', 'vw2'])
        outk(1); outk(2)
        softmax(3)
        outk(3)
        pv(3, 'c4', ['vw2'])
        outk(4); outk(5)
for T in range(3):
    a = ACC[T]
    packin(a)
    for j in range(4): n('v_permlane16_swap_b32 v%d, v%d' % (a + j, a + 4 + j))
    n('buffer_store_dwordx4 %s, v%d, s[32:35], s41 offen offset:%d%s' % (qn(a, 4), vSoA, T * 64, STM))
    n('buffer_store_dwordx4 %s, v%d, s[32:35], s43 offen offset:%d%s' % (qn(a + 4, 4), vSoB, T * 64, STM), tag='z%d' % T)

STAGS = (sys.argv[sys.argv.index('--tags') + 1] if '--tags' in sys.argv else 'st,s0,e0,s2,e1,s3,e2,e3,o3').split(',')
late = [False]; cur = [PA]; ORD = []
def setp(p):
    if p != cur[0]: A('s_setprio %d' % p); cur[0] = p
def emit(N, name):
    out, t = schedule(N, name)
    seen = []
    rng = {}; cph = {}
    import collections
    mtot = collections.Counter(X.ph for tt, X in out if X.kind == 'mfma'); mdone = collections.Counter()
    m_ = 99
    for tt, X in reversed(out):
        if not (X.ins[0].kind == 'dsr' or X.ins[0].op.startswith(('v_cmp', 's_cbranch'))): m_ = min(m_, X.ph)
        cph[id(X)] = m_
    for tt, X in out:
        p_ = cph[id(X)]; rng[p_] = (rng.get(p_, (tt, tt))[0], tt)
    for tt, X in out:
        if PHS:
            p_ = cph[id(X)]
            a_, b_ = rng[p_]
            if p_ & 1: hi = 1 if tt > a_ + (b_ - a_) * opt('fv', 200) / 100 else 0
            else: hi = 1 if mdone[p_] >= mtot[p_] * opt('fm', 200) / 100 else 0
            if X.kind == 'mfma': mdone[p_] += 1
            if (p_ & 1) and X.ins[0].kind in ('dsr', 'dsw') and opt('lp', 1): setp(3)
            elif (p_ & 1) and cur[0] == 3 and X.ins[0].kind in ('salu', 'wait'): pass
            else: setp((PB_ if p_ & 1 else PM) + hi)
        elif late[0] and X.kind in ('mfma', 'valu', 'trans', 'perm'): setp(PM if X.kind == 'mfma' else PB_)
        for I in X.ins: A.add(I)
        seen.append(X)
        if id(X) in CHK:
            nm, off, cmpi, tmp = CHK[id(X)]
            rr = [Y.lines[0] for Y in seen if ('f' + nm) in Y.rd and Y.kind == 'dsr']
            slow.append(F('L_z%s:\n{FRD} v%d, v{vFg} offset:%d\ns_waitcnt lgkmcnt(0)\n%s, v%d\ns_cbranch_vccnz L_z%s\n' % (nm, tmp, off, cmpi, tmp, nm)) + ''.join(l + '\n' for l in rr) + ('s_waitcnt lgkmcnt(0)\n' if rr else '') + 's_branch L_k%s' % nm)
        tg = TAGS.get(id(X))
        if tg: print('  %s@%d' % (tg, tt), end=''); A('; TAG %s' % tg)
        if tg in STAGS: stamp(); ORD.append('%s@%d' % (tg, tt))
        if tg == 's%d' % LATE: late[0] = True
    print()
if PA: A('s_setprio %d' % PA)
emit(N, 'main')
open(sys.argv[1] + '.tags', 'w').write(' '.join(ORD))
if STAMP:
    A('s_waitcnt vmcnt(0)')
    stamp(); stamp(True)
    A('s_lshl_b32 s100, s2, 4\ns_add_u32 s100, s100, s36\ns_lshl_b32 s100, s100, 6')
    A('s_waitcnt lgkmcnt(0)')
    A('v_mbcnt_lo_u32_b32 v17, -1, 0\nv_mbcnt_hi_u32_b32 v17, -1, v17\nv_lshlrev_b32 v17, 2, v17')
    for k in range(_st[0]):
        A('v_writelane_b32 v16, s%d, %d' % (64 + 2 * k, k))
    A('s_mov_b64 exec, 0xffff\nbuffer_store_dword v16, v17, s[96:99], s100 offen')
A('s_endpgm')
A.rawmode = True
for s_ in slow: A(s_)
A.rawmode = False
A('L_end:')
A('s_endpgm')
body = A.finalize()

hdr = open('standalone__window_attn_swin__vision.s.ref').read().split('\n')
hdr = [l for l in hdr if l.startswith(';') and '@launch' not in l]
out = '\n'.join(hdr) + '\n; @launch grid=(256,1,1) block=(512,1,1) lds=%d\n' % L_SIZE
out += '''.amdgcn_target "amdgcn-amd-amdhsa--gfx950"
.text
.globl standalone__window_attn_swin__vision_kernel
.p2align 8
.type standalone__window_attn_swin__vision_kernel,@function
standalone__window_attn_swin__vision_kernel:
''' + body + '''.section .rodata,"a"
.p2align 6
.amdhsa_kernel standalone__window_attn_swin__vision_kernel
  .amdhsa_next_free_vgpr 256
  .amdhsa_next_free_sgpr 102
  .amdhsa_accum_offset 256
  .amdhsa_group_segment_fixed_size 0
  .amdhsa_kernarg_size 72
  .amdhsa_user_sgpr_count 2
  .amdhsa_user_sgpr_kernarg_segment_ptr 1
  .amdhsa_system_sgpr_workgroup_id_x 1
.end_amdhsa_kernel
'''
dst = sys.argv[1]
open(dst, 'w').write(out)
print('instructions:', len(body.split('\n')), 'nop states:', A.nnops)
```

```python
import re
VR = re.compile(r'\bv\[(\d+):(\d+)\]|\bv(\d+)\b')
TRANS = ('v_exp_f32', 'v_rcp_f32', 'v_log_f32', 'v_rsq_f32', 'v_sqrt_f32')

def vregs(tok):
    out = []
    for m in VR.finditer(tok):
        if m.group(1) is not None:
            out += list(range(int(m.group(1)), int(m.group(2)) + 1))
        else:
            out.append(int(m.group(3)))
    return out

def split_ops(s):
    out, depth, cur = [], 0, ''
    for ch in s:
        if ch == '[': depth += 1
        if ch == ']': depth -= 1
        if ch == ',' and depth == 0:
            out.append(cur.strip()); cur = ''
        else:
            cur += ch
    if cur.strip(): out.append(cur.strip())
    return out

SR = re.compile(r'\bs\[(\d+):(\d+)\]|\bs(\d+)\b|\b(vcc)\b')
def sregs_(tok):
    out = []
    for m in SR.finditer(tok):
        if m.group(1) is not None: out += list(range(int(m.group(1)), int(m.group(2)) + 1))
        elif m.group(3) is not None: out.append(int(m.group(3)))
        else: out.append('vcc')
    return out

class Ins:
    __slots__ = ('text', 'op', 'kind', 'rd', 'wr', 'rdA', 'rdC', 'states', 'raw', 'swr', 'srd', 'np', 't')
    def __init__(self, text):
        self.text = text
        self.raw = False
        self.t = None
        t = text.split(';')[0].strip()
        parts = t.split(None, 1)
        self.op = parts[0] if parts else ''
        ops = split_ops(parts[1]) if len(parts) > 1 else []
        op = self.op
        self.rd, self.wr, self.rdA, self.rdC = set(), set(), set(), set()
        self.states = 1
        self.np = 8 if '32x32' in op else 4
        self.swr, self.srd = set(), set()
        if op.startswith('v_cmp') or op.startswith('v_readfirstlane') or op.startswith('v_readlane'):
            self.swr = set(sregs_(ops[0]))
            for o in ops[1:]: self.srd |= set(sregs_(o))
        elif op.startswith('v_') or op.startswith('buffer_'):
            for o in ops[1:]: self.srd |= set(sregs_(o.split(' ')[0]))
        if op.endswith(':') or op.startswith('.') or op == '':
            self.kind = 'label'; self.states = 0
        elif op == 's_nop':
            self.kind = 'nop'; self.states = int(ops[0], 0) + 1
        elif op.startswith('v_mfma'):
            self.kind = 'mfma'
            self.wr = set(vregs(ops[0])); self.rdA = set(vregs(ops[1])) | set(vregs(ops[2])); self.rdC = set(vregs(ops[3]))
            self.rd = self.rdA | self.rdC
        elif op.startswith('v_permlane'):
            self.kind = 'perm'
            self.wr = set(vregs(ops[0])) | set(vregs(ops[1])); self.rd = set(self.wr)
        elif op.startswith('v_readfirstlane') or op.startswith('v_readlane'):
            self.kind = 'rdlane'; self.rd = set(vregs(ops[1]))
        elif op.startswith('v_cmp'):
            self.kind = 'valu'
            for o in ops[1:]: self.rd |= set(vregs(o))
        elif op.startswith('v_'):
            self.kind = 'trans' if op.replace('_e32', '').replace('_e64', '') in TRANS else 'valu'
            self.wr = set(vregs(ops[0]))
            for o in ops[1:]: self.rd |= set(vregs(o))
            if op.startswith('v_fmac') or op.startswith('v_pk_fmac') or op.startswith('v_writelane'): self.rd |= self.wr
        elif op.startswith('ds_read') :
            self.kind = 'dsr'; self.wr = set(vregs(ops[0])); self.rd = set(vregs(ops[1]))
            if 'd16' in op: self.rd |= self.wr
        elif op.startswith('ds_bpermute') or op.startswith('ds_permute'):
            self.kind = 'dsr'; self.wr = set(vregs(ops[0])); self.rd = set(vregs(ops[1])) | set(vregs(ops[2]))
        elif op.startswith('ds_swizzle'):
            self.kind = 'dsr'; self.wr = set(vregs(ops[0])); self.rd = set(vregs(ops[1]))
        elif op.startswith('ds_add_rtn'):
            self.kind = 'dsr'; self.wr = set(vregs(ops[0])); self.rd = set(vregs(ops[1])) | set(vregs(ops[2]))
        elif op.startswith('ds_'):
            self.kind = 'dsw'
            for o in ops: self.rd |= set(vregs(o))
        elif op.startswith('buffer_load') and ' lds' in (' ' + t):
            self.kind = 'dma'; self.rd = set(vregs(ops[0]))
        elif op.startswith('buffer_load') or op.startswith('global_load'):
            self.kind = 'vld'; self.wr = set(vregs(ops[0])); self.rd = set(vregs(ops[1]))
        elif op.startswith('buffer_store') or op.startswith('global_store'):
            self.kind = 'vst'
            for o in ops[:2]: self.rd |= set(vregs(o))
        elif op.startswith('s_waitcnt'):
            self.kind = 'wait'
        else:
            self.kind = 'salu'

SAFE = 150
TAILOPT = 1
class Asm:
    def __init__(self):
        self.ins = []
        self.rawmode = False
        self.spec = {}; self.tail = {}
    def __call__(self, text):
        for line in text.strip('\n').split('\n'):
            line = line.strip()
            if line:
                I = Ins(line); I.raw = self.rawmode
                self.ins.append(I)
    def add(self, I):
        I.raw = self.rawmode; self.ins.append(I)
    def fence(self):
        self('s_waitcnt lgkmcnt(0)'); self('s_nop 7'); self('s_nop 1')
    def finalize(self):
        out = []
        pos = 0
        lastw = {}
        lastC = {}
        lastst = {}
        lasts = {}
        lgkm = []
        nnops = 0
        lgt = []
        for I in self.ins:
            if I.raw:
                out.append(I); continue
            if I.kind == 'label' and I.op.startswith('L_k') and I.op[3:-1] in self.spec:
                sp_ = self.spec[I.op[3:-1]]
                ok = len(lgkm) <= len(sp_) and len(lgkm) <= 15 and all(a_ == b_ for a_, b_ in zip(lgkm[::-1], sp_[::-1]))
                self.tail[I.op[3:-1]] = len(lgkm) if ok and TAILOPT else 0
            need = 0
            def req(p, n):
                nonlocal need
                need = max(need, n - (pos - p - 1))
            touch = I.rd | I.wr
            idx = -1
            for j, d in enumerate(lgkm):
                if d & touch: idx = j
            if I.kind == 'wait' and 'lgkmcnt' in I.text:
                n = int(re.search(r'lgkmcnt\((\d+)\)', I.text).group(1))
                lgkm = lgkm[len(lgkm) - n:] if n < len(lgkm) else lgkm
                if n == 0: lgkm = []
            elif idx >= 0:
                if I.t is not None:
                    while idx + 1 < len(lgkm) and lgt[len(lgt) - len(lgkm) + idx + 1] is not None and lgt[len(lgt) - len(lgkm) + idx + 1] <= I.t - SAFE: idx += 1
                n = len(lgkm) - 1 - idx
                n = min(n, 15)
                out.append(Ins('s_waitcnt lgkmcnt(%d)' % n)); pos += 1
                lgkm = lgkm[len(lgkm) - n:] if n > 0 else []
            for r in I.srd:
                if r in lasts: req(lasts[r], 5 if I.op.startswith('buffer_') else 2)
            for r in I.rd:
                if r in lastw:
                    p, k, D, np_ = lastw[r]
                    if k == 'mfma':
                        if I.kind == 'mfma':
                            if r in I.rdA: req(p, np_ + 4)
                            if r in I.rdC: req(p, 0 if I.rdC == D else np_ + 2)
                        else: req(p, np_ + 4)
                    elif k in ('valu', 'trans', 'perm'):
                        if I.kind == 'mfma': req(p, 2)
                        elif I.kind == 'perm': req(p, 2)
                        elif I.kind == 'rdlane': req(p, 1)
                        elif k == 'trans' and I.kind in ('valu',): req(p, 1)
                        elif k == 'trans' and I.kind in ('dsw', 'vst', 'dsr', 'dma', 'vld'): req(p, 1)
            for r in I.wr:
                if r in lastw:
                    p, k, D, np_ = lastw[r]
                    if k == 'mfma' and not (I.kind == 'mfma' and I.rdC == D and I.wr == D): req(p, np_ + 4)
                if r in lastC and I.kind in ('valu', 'trans', 'perm'): req(lastC[r][0], lastC[r][1] - 1)
                if r in lastst: req(lastst[r], 2)
            if need > 0:
                nnops += need
                while need > 0:
                    n = min(need, 16)
                    out.append(Ins('s_nop %d' % (n - 1))); pos += n; need -= n
            out.append(I)
            p = pos
            pos += I.states
            for r in I.wr:
                lastw[r] = (p, I.kind, I.wr, I.np)
            for r in I.swr: lasts[r] = p
            if I.kind == 'mfma':
                for r in I.rdC: lastC[r] = (p, I.np)
            if I.kind == 'vst':
                for r in I.rd: lastst[r] = p
            if I.kind == 'dsr': lgkm.append(set(I.wr)); lgt.append(I.t)
            if I.kind == 'dsw': lgkm.append(set()); lgt.append(I.t)
        self.nnops = nnops
        for I in out:
            m_ = re.search(r'lgkmcnt\(@(\w+)\)', I.text)
            if m_: I.text = 's_waitcnt lgkmcnt(%d)' % self.tail.get(m_.group(1), 0)
        return '\n'.join(('    ' + i.text) if i.kind != 'label' else i.text for i in out) + '\n'

class Node:
    __slots__ = ('lines', 'ins', 'rd', 'wr', 'cost', 'kind', 'succ', 'npred', 'prio', 'ready', 'idx', 'lat', 'bias', 'raw', 'after', 'ph')
    def __init__(self, text, rd=(), wr=(), bias=0, cost=None, raw=False, after=()):
        self.raw = raw; self.after = list(after); self.ph = 0
        self.lines = [l.strip() for l in text.strip('\n').split('\n') if l.strip()]
        self.ins = [Ins(l) for l in self.lines]
        self.rd = set(rd); self.wr = set(wr)
        c = 0
        for I in self.ins:
            self.rd |= I.rd; self.wr |= I.wr
            c += {'mfma': 8, 'trans': 8, 'perm': 8, 'label': 0, 'vst': 8, 'dsw': 6}.get(I.kind, 4)
        self.cost = c if cost is None else cost
        ks = [I.kind for I in self.ins]
        self.kind = 'mfma' if ks == ['mfma'] else ('dsr' if 'dsr' in ks else ks[-1])
        self.succ = []; self.npred = 0; self.prio = 0; self.ready = 0; self.bias = bias

LAT_LDS = 120
def schedule(nodes, verbose=None, t0=0):
    n = len(nodes)
    for i, N in enumerate(nodes): N.idx = i; N.succ = []; N.npred = 0; N.ready = t0; N.lat = 0
    lastw = {}; readers = {}
    edges = {}
    def edge(a, b, lat, st=0):
        if a is b: return
        k = (a.idx, b.idx)
        o = edges.get(k, (0, 0))
        edges[k] = (max(o[0], lat), max(o[1], st))
    for N in nodes:
        for P, l_ in N.after: edge(P, N, l_)
        for r in N.rd:
            if r in lastw:
                P = lastw[r]; st = 0
                if isinstance(r, str): lat = P.cost
                elif P.kind == 'mfma':
                    I = N.ins[0]
                    np_ = P.ins[0].np
                    if N.kind == 'mfma' and r in I.rdC and r not in I.rdA: lat = 4 * np_
                    else: lat = 4 * np_ + 12 + (12 if np_ == 8 else 0); st = np_ + 4
                elif P.kind == 'dsr': lat = LAT_LDS
                elif N.kind in ('mfma', 'perm'): lat = P.cost; st = 2
                elif P.kind == 'trans': lat = P.cost; st = 1
                else: lat = P.cost
                edge(P, N, lat, st)
        for r in N.wr:
            if r in lastw:
                P = lastw[r]
                if P.kind == 'mfma' and not (N.kind == 'mfma' and r in N.ins[0].rdC): edge(P, N, 4 * P.ins[0].np + 12, P.ins[0].np + 4)
                elif P.kind == 'dsr': edge(P, N, LAT_LDS)
                else: edge(P, N, P.cost)
            for P in readers.get(r, ()):
                st = 0
                if P.kind == 'mfma' and N.kind in ('valu', 'trans', 'perm') and r in P.ins[0].rdC: st = P.ins[0].np - 1
                if P.kind == 'vst': st = 2
                edge(P, N, P.cost, st)
        for r in N.rd: readers.setdefault(r, []).append(N)
        for r in N.wr: lastw[r] = N; readers[r] = []
    for (a, b), (lat, st) in edges.items():
        nodes[a].succ.append((nodes[b], lat, st)); nodes[b].npred += 1
    for N in reversed(nodes):
        N.prio = N.cost + N.bias
        for S, lat, st in N.succ: N.prio = max(N.prio, max(lat, N.cost + 4 * st) + S.prio + N.bias)
    avail = [N for N in nodes if N.npred == 0]
    t = t0; mfree = 0; out = []; stall = 0; pos = 0
    while avail:
        def est(N):
            e = max(t + 4 * max(0, N.lat - pos), N.ready)
            if N.kind == 'mfma': e = max(e, mfree)
            return e
        now = [N for N in avail if est(N) <= t]
        if now:
            N = max(now, key=lambda X: (X.prio, -X.idx))
        else:
            e = min(est(X) for X in avail)
            N = max([X for X in avail if est(X) == e], key=lambda X: (X.prio, -X.idx))
            stall += e - t; t = e
            pos = max(pos, N.lat)
        avail.remove(N); out.append((t, N))
        if N.kind == 'mfma': mfree = t + 4 * N.ins[0].np
        if not N.raw: pos += sum(1 for I in N.ins if I.kind != 'label')
        for S, lat, st in N.succ:
            S.ready = max(S.ready, t + lat); S.npred -= 1
            S.lat = max(S.lat, pos + st)
            if S.npred == 0: avail.append(S)
        t += N.cost
    assert len(out) == n
    if verbose: print('%s: %d nodes, est %d cycles, stall %d' % (verbose, n, t - t0, stall))
    return out, t
```

```python
from asmlib import Ins, Node
COST = {'ds_write_b128': 20, 'ds_write_b64': 12, 'ds_add_u32': 8, 'ds_write_b32': 8}
PRM = dict(lat=110, lam=6, boost=200, stc=30, brc=10, soft=8, php=1)
def icost(I):
    if I.kind == 'label': return 0
    if I.kind in ('mfma', 'trans', 'perm'): return 8
    if I.kind == 'vst': return PRM['stc']
    if I.op.startswith('s_cbranch'): return PRM['brc']
    return COST.get(I.op, 4)
def isv(I): return I.kind in ('valu', 'trans', 'perm', 'rdlane')
def schedule(nodes, verbose=None):
    LAT = PRM['lat']; lam = PRM['lam']
    n = len(nodes)
    for i, N in enumerate(nodes):
        N.idx = i; N.succ = []; N.npred = 0; N.ready = 0; N.lat = 0
        N.cost = sum(icost(I) for I in N.ins)
    lastw = {}; readers = {}; edges = {}
    def edge(a, b, lat, st=0):
        if a is b: return
        k = (a.idx, b.idx); o = edges.get(k, (0, 0)); edges[k] = (max(o[0], lat), max(o[1], st))
    for N in nodes:
        for P, l_ in N.after: edge(P, N, l_)
        for r in N.rd:
            if r in lastw:
                P = lastw[r]; st = 0
                if isinstance(r, str): lat = P.cost
                elif P.kind == 'mfma':
                    I = N.ins[0]; np_ = P.ins[0].np
                    if N.kind == 'mfma' and r in I.rdC and r not in I.rdA: lat = 4 * np_
                    else: lat = 8 + 4 * (np_ + 4); st = np_ + 4
                elif P.kind == 'dsr': lat = LAT
                elif N.kind in ('mfma', 'perm'): lat = P.cost + 8; st = 2
                elif P.kind == 'trans': lat = P.cost + 4; st = 1
                else: lat = P.cost
                edge(P, N, lat, st)
        for r in N.wr:
            if r in lastw:
                P = lastw[r]
                if P.kind == 'mfma' and not (N.kind == 'mfma' and r in N.ins[0].rdC): edge(P, N, 8 + 4 * (P.ins[0].np + 4), P.ins[0].np + 4)
                elif P.kind == 'dsr': edge(P, N, LAT)
                else: edge(P, N, P.cost)
            for P in readers.get(r, ()):
                st = 0
                if P.kind == 'mfma' and N.kind in ('valu', 'trans', 'perm') and r in P.ins[0].rdC: st = P.ins[0].np - 1
                if P.kind == 'vst': st = 2
                edge(P, N, P.cost + 4 * st, st)
        for r in N.rd: readers.setdefault(r, []).append(N)
        for r in N.wr: lastw[r] = N; readers[r] = []
    for (a, b), (lat, st) in edges.items():
        nodes[a].succ.append((nodes[b], lat, st)); nodes[b].npred += 1
    for N in reversed(nodes):
        N.prio = N.cost + N.bias
        for S, lat, st in N.succ:
            if PRM['php'] and S.ph > N.ph: N.prio = max(N.prio, lat + N.bias)
            else: N.prio = max(N.prio, lat + S.prio + N.bias)
    avail = [N for N in nodes if N.npred == 0]
    t = 0; mfree = 0; lastv = -99; out = []; stall = {}; pos = 0
    lg = []
    import collections
    early = lambda N: N.kind == 'dsr' or N.ins[0].op.startswith(('v_cmp', 's_cbranch'))
    left = collections.Counter(N.ph for N in nodes if not early(N)); tot = dict(left)
    while avail:
        best = None
        cur = min(p_ for p_, c_ in left.items() if c_ > 0) if any(left.values()) else 99
        for N in avail:
            I0 = N.ins[0]
            nxt = N.ph > cur
            softok = (cur % 2 == 0 and left[cur] <= PRM['soft'] and N.kind != 'mfma')
            if PRM.get('vl') and early(N):
                if cur % 2 == 0:
                    if N.ph > cur + 2: continue
                else:
                    if N.ph > cur + 1: continue
                    lim = PRM['vt1'] if cur == 1 else PRM['vt']
                    if N.ins[0].kind == 'dsr' and not (tot[cur] - left[cur] <= PRM['vh'] or left[cur] <= lim): continue
            elif N.ph > cur + (1 if (early(N) or softok) else 0): continue
            w = 0
            touch = N.rd | N.wr
            for d, ti in lg:
                if d & touch: w = 4; break
            e = max(t + w, N.ready, t + 4 * max(0, N.lat - pos))
            why = 'dep'
            if N.kind == 'mfma' and mfree > e: e = mfree; why = 'pipe'
            isl = I0.kind in ('dsr', 'dsw', 'vst')
            if isl and lastv + 12 > e: e = lastv + 12; why = 'v2l'
            sl = e - t - w
            sc = N.prio - lam * sl
            if I0.kind == 'dsr' and sl == 0: sc += PRM['boost']
            if nxt: sc -= PRM.get('nxp', 1000) if not early(N) else PRM.get('nxd', 300)
            key = (sc, -N.idx)
            if best is None or key > best[0]: best = (key, N, e, w, why, sl)
        _, N, e, w, why, sl = best
        if sl: stall[why] = stall.get(why, 0) + sl
        if w:
            touch = N.rd | N.wr
            idx = max(j for j, (d, ti) in enumerate(lg) if d & touch)
            while idx + 1 < len(lg) and lg[idx + 1][1] <= e - PRM.get('safe', 150): idx += 1
            lg = lg[idx + 1:]; pos += 1
        pos = max(pos, N.lat)
        t = e
        avail.remove(N); out.append((t, N))
        if not early(N): left[N.ph] -= 1
        if N.kind == 'mfma': mfree = t + 4 * N.ins[0].np
        tt = t
        for I in N.ins:
            I.t = tt
            c = icost(I)
            if isv(I): lastv = tt + c - 4
            if I.kind == 'dsr': lg.append((set(I.wr), tt))
            if I.kind == 'dsw': lg.append((set(), tt))
            if I.kind != 'label': pos += 1
            tt += c
        for S, lat, st in N.succ:
            S.ready = max(S.ready, t + lat); S.npred -= 1
            S.lat = max(S.lat, pos + st)
            if S.npred == 0: avail.append(S)
        t += N.cost
    assert len(out) == n
    if verbose: print('%s: %d nodes, est %d cycles, stall %s' % (verbose, n, t, stall))
    return out, t
```

```python
import struct, sys, math
import asmlib
from asmlib import Asm, Node
import sched3 as sched2
from sched3 import schedule
def f32(x): return '0x%08x' % struct.unpack('<I', struct.pack('<f', x))[0]
SCALE = 24 ** -0.5
C_EXP = SCALE * math.log2(math.e)
INV = 24 ** 0.5
STAMP = '--stamp' in sys.argv
XNT = ' nt'
STM = ' nt'
def opt(name, dflt):
    for a in sys.argv:
        if a.startswith('--%s=' % name): return int(a.split('=')[1])
    return dflt
sched2.PRM.update(nxp=1000, nxd=100, lam=60, vl=1, vh=4, vt=0, vt1=12)
for k_ in ('lat', 'lam', 'boost', 'stc', 'soft', 'php', 'nxp', 'nxd', 'vl', 'vh', 'vt', 'vt1'): sched2.PRM[k_] = opt(k_, sched2.PRM[k_])
asmlib.SAFE = sched2.PRM['safe'] = opt('safe', 150)
PM = opt('pm', 2)
PB_ = opt('pb', 0)
SYNC = opt('sync', 60)
EBIAS = opt('ebias', 4)
BAR = opt('bar', 0)
QS = opt('qs', 0)
SPIN = opt('spin', 0)
if QS: INV = math.log2(math.e)
MK = 0xc310 if QS else 0xc3f5

BPB = 160
TSZ = 2080; HS = 4160
L_BI = 512
L_RP = L_BI + 4 * HS
L_W = 21504
assert L_RP + 4096 <= L_W and L_W % 256 == 0
L_WO = L_W + 55296
L_R = L_WO + 18432
RP, PBO, RS = 1616, 912, 6432
L_SIZE = opt('lds', 163840)
assert L_R + 8 * RS <= L_SIZE
ZF = L_W // 8

OOBL = 0x28000
FA, FD, FO, FX, FC = 0, 32, 48, 96, 128

(vW1, vW2, vW3, vWa, vWb, vTo, vBAA, vBAB, vBBA, vBBB, vSoA, vSoB, vFg, vPw, vF8, vOne, vSp, vOw, vOr, v16, vXA, vXB, Pc, Zr, T0, T1) = range(26)
vTp = vW1
XF = [26, 50]
WB = 74
ACC = [106, 122]
QB = [138, 146, 154]
KB = [162, 170]
VF = 178
SB = [[192, 208], [224, 240]]
O1, O2, AC3 = 26, 38, 50
tL, tN, tH, tG, tR, tCc, tX, tA, tB, tC, tD, tE, tO, tP, tRp, tJ, tHh, tI, rA, cA, rB, cB, tF, tK = range(192, 216)
Z = 216
PL = 220
U0 = 228
def qn(b, n): return 'v[%d:%d]' % (b, b + n - 1)

A = Asm()
_st = [0]
def stamp(real=False):
    if not STAMP: return
    k = _st[0]; _st[0] += 1
    assert k < 16
    A('%s s[%d:%d]' % ('s_memrealtime' if real else 's_memtime', 64 + 2 * k, 65 + 2 * k))
class D(dict):
    def __missing__(self, k): return globals()[k]
def F(t): return t.format_map(D())
PST = opt('pst', 0) if STAMP else 0
def B(t):
    t = F(t)
    for k in range(4): t = t.replace('@T%d' % k, 's_memtime s[%d:%d]' % (86 + 2 * k, 87 + 2 * k) if PST == 1 else '')
    for k in range(4): t = t.replace('@U%d' % k, 's_memtime s[%d:%d]' % (86 + 2 * k, 87 + 2 * k) if PST == 2 else '')
    A(t)
def m32(d, a, b, c): return 'v_mfma_f32_32x32x16_bf16 %s, %s, %s, %s' % (qn(d, 16), qn(a, 4), qn(b, 4), qn(c, 16) if c is not None else '0')
def m8(d, a, b, c): return 'v_mfma_f32_32x32x8_bf16 %s, %s, %s, %s' % (qn(d, 16), qn(a, 2), qn(b, 2), qn(c, 16))
def pk(d, a, b_): return 'v_cvt_pk_bf16_f32 v%d, v%d, %s' % (d, a, 'v%d' % b_ if b_ is not None else '0')
Z1, Z2, Z3 = Z + 1, Z + 2, Z + 3
PL1, PL2, PL3, PL4, PL5 = range(PL + 1, PL + 6)
U1, U2, U3, U4, U5, U6, U7 = range(U0 + 1, U0 + 8)

B('''
s_cmp_ge_u32 s2, 256
s_cbranch_scc1 L_end
''')
stamp(True); stamp()
ZF = L_W // 4
def xa(r, e=1): return ('s_mov_b64 exec, s[62:63]\n' if e else '') + 's_add_u32 m0, s47, %d\ns_add_u32 s54, s45, s%d\nbuffer_load_dwordx4 v{tX}, s[16:19], s54 offen{XNT} lds\n' % (r * RP, 41 + r)
def xb(r, e=1): return ('s_mov_b64 exec, s[60:61]\n' if e else '') + 's_add_u32 m0, s47, %d\ns_add_u32 s54, s46, s%d\nbuffer_load_dwordx4 v{tX}, s[16:19], s54 offen{XNT} lds\n' % (r * RP + PBO, 41 + r)
X0 = 's_mov_b64 exec, -1\n'
def wd(sl, sg, ks, dc=0):
    return 's_add_u32 m0, s%d, %d\ns_add_u32 s54, s%d, %d\nbuffer_load_dwordx4 v{tP}, s[20:23], s54 offen lds\n' % (sl, ks * 1024 + dc * 6144, sg, ks * 9216 + dc * 128)
def dfl(m0): return 's_mov_b64 exec, 1\n%s\nbuffer_load_dword off, s[28:31], 0 lds\ns_mov_b64 exec, -1\n' % m0
XO = opt('xo', 0)
XL = [xa(0), xa(1, 0), xa(2, 0), xa(3, 0), xb(0), xb(1, 0), xb(2, 0), xb(3, 0)] if XO == 0 else [f(r) for r in range(4) for f in (xa, xb)]
WV = """v_lshrrev_b32 v{tB}, 3, v{tL}
v_and_b32 v{tC}, 7, v{tL}
v_mul_u32_u24 v{tB}, 1152, v{tB}
v_lshl_add_u32 v{tP}, v{tC}, 4, v{tB}    ; W voffset
s_mov_b32 s23, 0x00020000
s_mov_b32 s22, 55296
s_and_b32 s51, s36, 3
s_lshl_b32 s49, s51, 10
s_add_u32 s49, s49, {L_W}             ; ks = w & 3
s_mul_i32 s50, s51, 9216
s_and_b32 s51, s38, 1                 ; i & 1
s_mul_i32 s52, s51, 9216
s_lshl_b32 s51, s51, 10
s_add_u32 s51, s51, {L_W}             ; ks = 4 + (i & 1)
s_mul_i32 s53, s37, 24576
s_add_u32 s53, s53, s51
s_lshl_b32 s55, s37, 9
s_add_u32 s55, s55, s52
"""
XPOS = opt('xpos', 3)
NW1 = opt('nw1', 5)
B("""
s_load_dwordx2 s[20:21], s[0:1], 8
s_load_dwordx2 s[16:17], s[0:1], 0
v_readfirstlane_b32 s36, v0
s_load_dwordx2 s[28:29], s[0:1], 24
s_load_dwordx2 s[12:13], s[0:1], 32
v_and_b32 v{tL}, 63, v0                  ; lane
s_lshr_b32 s39, s2, 3                 ; wy
s_lshr_b32 s36, s36, 6                ; wave
s_xor_b32 s36, s36, 4
s_and_b32 s37, s36, 1                 ; p
s_lshr_b32 s38, s36, 1                ; i
v_lshlrev_b32 v{v16}, 4, v{tL}
s_mul_i32 s47, s36, {RS}
s_add_u32 s47, s47, {L_R}             ; own region
s_mov_b32 s31, 0x00020000
s_mov_b32 s30, 1352
s_cmp_ge_u32 s36, 4
s_cselect_b64 vcc, -1, 0
s_cbranch_scc1 L_g1
s_setprio %d
s_lshl_b32 s49, s36, 3
s_lshr_b32 s49, 0x20000027, s49
s_and_b32 s49, s49, 0xff
s_lshl_b32 s49, s49, 4                ; first rpb byte staged by this wave
s_lshl_b32 s50, s36, 10
s_add_u32 s50, s50, {L_RP}
L_x:
v_mul_u32_u24 v{tX}, 5, v{tL}
s_and_b32 s40, s2, 7
s_lshl2_add_u32 s40, s40, s38         ; wx
v_lshrrev_b32 v{tX}, 6, v{tX}            ; tau
s_mul_i32 s41, s39, %d
s_add_u32 s41, s41, %d                ; row 0 of the window
s_add_u32 s44, s41, %d                ; row 3
v_sub_u32 v{tX}, v{tL}, v{tX}
s_add_u32 s42, s41, %d                ; row 6
s_cmp_eq_u32 s39, 31
s_cselect_b32 s42, %d, s42
v_lshlrev_b32 v{tX}, 4, v{tX}
s_cmp_eq_u32 s37, 1
s_cselect_b32 s41, s42, s41           ; row' 0
s_mov_b32 s43, %d
s_cselect_b32 s43, s43, %d             ; step
s_add_u32 s42, s41, s43
s_add_u32 s43, s42, s43
s_mul_i32 s45, s40, 1344
s_add_u32 s45, s45, 576
s_add_u32 s46, s45, 768
s_cmp_eq_u32 s40, 31
s_cselect_b32 s46, 0, s46
s_mov_b32 s19, 0x00020000
s_mov_b32 s18, 9633792
s_mov_b32 s62, -1
s_mov_b32 s63, 0xfffff                ; 52 lanes
s_mov_b32 s60, -1
s_mov_b32 s61, 0x7f                   ; 39 lanes
s_mov_b32 m0, s50
s_waitcnt lgkmcnt(0)
""" % (opt('pp', 2), 7 * 43008, 3 * 43008, 3 * 43008, 6 * 43008, 2 * 43008, -43008 & 0xffffffff, 43008))
stamp()
XFL = 's_xor_b32 s54, s36, 1\n' + dfl('s_lshl2_add_u32 m0, s54, {FX}\ns_nop 0')
S4 = f32(INV)
cv = ''
QD = [U0, U0 + 4, U0 + 8, U0 + 12]
for e in range(4):
    for d in range(2):
        cv += 'v_lshlrev_b32 v%d, 16, v%d\nv_and_b32 v%d, 0xffff0000, v%d\n' % (QD[2 * d] + 3 - e, PL + 2 * e + d, QD[2 * d + 1] + e, PL + 2 * e + d)
def pm(h): return ''.join('v_pk_mul_f32 v[%d:%d], v[%d:%d], s[8:9]\n' % (QD[h] + 2 * k, QD[h] + 2 * k + 1, QD[h] + 2 * k, QD[h] + 2 * k + 1) for k in range(2))
def bw(h): return 'ds_write_b128 v%d, v[%d:%d] offset:%d\n' % (tA if h & 1 else tB, QD[h], QD[h] + 3, L_BI + h * HS)
B("""s_cbranch_vccnz L_x1
buffer_load_dwordx4 v{v16}, s[28:31], s49 offen lds
s_mov_b64 s[28:29], s[12:13]
s_load_dwordx2 s[24:25], s[0:1], 16
L_x1:
""" + ''.join(XL) + X0 + """@U1
s_load_dwordx2 s[32:33], s[0:1], 48
s_cbranch_vccnz L_g1r
s_branch L_setup
""")
BIAS = """s_lshl_b32 s54, s37, 6
s_add_u32 s54, s54, 1
v_add_u32 v{tJ}, s54, v{tL}              ; L
s_cmp_eq_u32 s38, 1                   ; V table
s_movk_i32 s8, 205
s_cmovk_i32 s8, 158
s_cselect_b32 s9, 0, -184
s_cselect_b32 s10, 0, 1248
v_mul_u32_u24 v{tI}, s8, v{tJ}
s_sub_u32 s50, s50, s49
s_add_u32 s10, s10, s50
v_lshl_add_u32 v{tC}, v{tJ}, 3, s10
v_lshrrev_b32 v{tI}, 11, v{tI}           ; L / 10 | L / 13
s_cmp_eq_u32 s38, 1
s_cselect_b32 s8, 160, 16
v_mad_i32_i24 v{tC}, v{tI}, s9, v{tC}    ; staged source
s_movk_i32 s9, -320
s_cmovk_i32 s9, -2064
s_movk_i32 s10, 1920
s_cmovk_i32 s10, {TSZ}
s_movk_i32 s11, 2064
s_cmovk_i32 s11, %d
v_mul_u32_u24 v{tA}, s8, v{tJ}
@T0
s_waitcnt vmcnt(9)
@T1
s_cbranch_scc1 L_bv
ds_read2_b64 v[{PL}:{PL3}], v{tC} offset1:1
ds_read2_b64 v[{PL4}:{PL7}], v{tC} offset0:2 offset1:3
s_branch L_bw
L_bv:
ds_read2_b64 v[{PL}:{PL3}], v{tC} offset1:13
ds_read2_b64 v[{PL4}:{PL7}], v{tC} offset0:26 offset1:39
L_bw:
v_mad_i32_i24 v{tA}, v{tI}, s9, v{tA}
s_mov_b32 s8, %s
s_mov_b32 s9, %s
v_add_u32 v{tA}, s10, v{tA}              ; odd heads
v_sub_u32 v{tB}, s11, v{tA}              ; even heads (mirrored)
s_waitcnt lgkmcnt(0)
""" % (2064 + 2 * TSZ, S4, S4) + cv + pm(0) + pm(1) + bw(0) + pm(2) + bw(1) + pm(3) + bw(2) + bw(3) + """s_mov_b64 exec, 1
ds_write_b32 v{vFg}, v{vOne} offset:%d
s_mov_b64 exec, -1
@T2
""" % (FA + 16)
PL7 = PL + 7
WF = [wd(49, 50, 0, 1), wd(49, 50, 0, 0), wd(49, 50, 0, 4), wd(49, 50, 0, 2), wd(49, 50, 0, 5), wd(49, 50, 0, 6), wd(53, 55, 4, 0), wd(53, 55, 4, 1), wd(53, 55, 4, 2)]
PFC = ("""s_cmp_lg_u32 s36, 4
s_cbranch_scc1 L_npf
s_mul_i32 s54, s39, 2304
v_lshl_add_u32 v{tRp}, v{tL}, 7, s54
s_mov_b64 exec, 0x3ffff
s_cmp_ge_u32 s39, 24
s_cbranch_scc1 L_pf2
buffer_load_dword v{PL}, v{tRp}, s[20:23], 0 offen
s_branch L_pf3
L_pf2:
v_subrev_u32 v{tRp}, 55296, v{tRp}
buffer_load_dword v{PL}, v{tRp}, s[24:27], 0 offen
L_pf3:
s_mov_b64 exec, -1
L_npf:
""" if opt('pf', 1) else '')
PFP = opt('pfp', NW1)
if PFP: WF[PFP - 1] += PFC
else: WF[0] = PFC + WF[0]
LW = [wd(49, 50, 0, 3), wd(49, 50, 0, 7), wd(49, 50, 0, 8), wd(53, 55, 4, 3), wd(51, 52, 4, 8)]
B("""L_g1:
s_setprio %d
s_load_dwordx2 s[24:25], s[0:1], 16
v_mov_b32 v{Z}, 0
v_mov_b32 v{Z1}, 0
v_lshlrev_b32 v{tA}, 3, v{tL}
ds_write_b64 v{tA}, v[{Z}:{Z1}]
""" % opt('p1', 3) + WV + """s_and_b32 s3, s36, 3
s_lshl_b32 s3, s3, 2
s_mov_b32 s27, 0x00020000
s_mov_b32 s26, 18432
s_waitcnt lgkmcnt(0)
s_mov_b64 s[28:29], s[12:13]
@T0
""" + ''.join(WF[:NW1]) + """@T1
s_setprio %d
s_branch L_setup
L_g1b:
s_mov_b64 vcc, -1
@T2
""" % opt('p2', 0) + ''.join(WF[NW1:]) + dfl('s_mov_b32 m0, s3\ns_nop 0') + """@T3
s_branch L_x
L_g1r:
""" + XFL + ''.join(LW) + dfl('s_add_u32 m0, s3, {FD}\ns_nop 0') + """@U2
s_branch L_q%d
""" % XPOS)
def g1x(k):
    if k == XPOS: return 's_barrier\ns_cmp_ge_u32 s36, 4\ns_cbranch_scc1 L_g1b\n@U0\n' + XFL + '@U2\nL_q%d:\n' % k
    return ''
A('L_setup:')
if SPIN: A('s_mov_b32 s101, 100000')
if STAMP: B('s_load_dwordx2 s[96:97], s[0:1], 64\ns_mov_b32 s98, 0x200000\ns_mov_b32 s99, 0x00020000')
B('''
s_lshl_b32 s10, s36, 2
v_mov_b32 v{vFg}, s10
s_xor_b32 s10, s10, 4
v_mov_b32 v{tA}, {OOBL}
v_mov_b32 v{tB}, s10
v_cmp_eq_u32 vcc, 0, v{tL}
v_and_b32 v{vF8}, 7, v{tL}
v_mov_b32 v{vOne}, 1
v_lshlrev_b32 v{vF8}, 2, v{vF8}
v_cndmask_b32 v{vPw}, v{tA}, v{tB}, vcc
''')
def lit4(a): return '0x%08x' % sum((x & 255) << (8 * i) for i, x in enumerate(a))
t = '''
v_and_b32 v{tN}, 31, v{tL}
v_lshrrev_b32 v{tH}, 5, v{tL}            ; hf
v_bfe_u32 v{tG}, v{tL}, 4, 1
v_bfe_u32 v{tR}, v{tL}, 2, 2
v_and_b32 v{tCc}, 3, v{tL}               ; also i
v_bfe_u32 v{tJ}, v{tL}, 3, 2             ; j
v_bfe_u32 v{tHh}, v{tL}, 2, 1            ; h
s_xor_b32 s48, s36, 1
s_mul_i32 s48, s48, {RS}
s_add_u32 s48, s48, {L_R}
v_cmp_eq_u32 s[4:5], 1, v{tHh}
v_cmp_eq_u32 s[6:7], 3, v{tJ}
v_add_u32 v{tA}, 4, v{tJ}
v_add_u32 v{tB}, 3, v{tCc}
v_cmp_lt_u32 s[8:9], 31, v{tL}
v_cndmask_b32 v{rA}, v{tJ}, v{tCc}, s[4:5]
v_cndmask_b32 v{cA}, v{tCc}, v{tA}, s[4:5]
v_cndmask_b32 v{rB}, v{tA}, v{tB}, s[4:5]
v_cndmask_b32 v{cB}, v{tB}, v{tJ}, s[4:5]
v_cndmask_b32 v{rA}, v{rA}, 3, s[6:7]
v_cndmask_b32 v{cA}, v{cA}, 3, s[6:7]
v_cndmask_b32 v{rB}, v{rB}, 3, s[6:7]
v_cndmask_b32 v{cB}, v{cB}, 3, s[6:7]
s_mul_i32 s10, s37, 6
s_cmp_eq_u32 s37, 1
s_cselect_b32 s11, -1, 1
v_mad_i32_i24 v{tA}, v{cA}, s11, s10
'''
t = t[:t.index('v_mad_i32_i24')]
def absx(d, s): return 'v_sub_u32 v%d, 6, v%d\nv_cndmask_b32 v%d, v%d, v%d, s[12:13]\n' % (d, s, d, s, d)
t += 's_cselect_b64 s[12:13], -1, 0\n'
def xcol(d, c, tmp):
    return 'v_mul_u32_u24 v%d, 208, v%d\nv_cmp_lt_u32 vcc, 3, v%d\nv_add_u32 v%d, %d, v%d\nv_cndmask_b32 v%d, v%d, v%d, vcc\n' % (d, c, c, tmp, PBO - 832, d, d, d, tmp)
t += absx(U0, cA) + absx(U1, rA) + absx(U2, cB) + absx(U3, rB)
t += xcol(tA, U0, tB) + '''v_mul_u32_u24 v{tB}, {RP}, v{rA}
v_lshl_add_u32 v{tA}, v{tH}, 4, v{tA}
v_add3_u32 v{vXA}, v{tA}, v{tB}, s47
''' + xcol(tA, U2, tB) + '''v_sub_u32 v{tB}, 6, v{rB}
v_mul_u32_u24 v{tB}, {RP}, v{tB}
v_lshl_add_u32 v{tA}, v{tH}, 4, v{tA}
v_mov_b32 v{tC}, s47
v_mov_b32 v{tD}, s48
v_cmp_eq_u32 vcc, 3, v{rB}
v_add_u32 v{tA}, v{tA}, v{tB}
v_cndmask_b32 v{tC}, v{tD}, v{tC}, vcc
v_add_u32 v{vXB}, v{tA}, v{tC}
; W bases
v_lshrrev_b32 v{tA}, 1, v{tCc}
v_lshl_add_u32 v{tA}, v{tG}, 1, v{tA}    ; g
v_lshlrev_b32 v{tA}, 3, v{tA}            ; 8 g
v_and_b32 v{tB}, 1, v{tCc}
v_lshlrev_b32 v{tB}, 3, v{tB}            ; 8 sub
v_and_b32 v{tC}, 1, v{tR}
v_mul_u32_u24 v{tC}, 576, v{tC}
s_mul_i32 s10, s37, 48
v_add3_u32 v{tB}, v{tB}, v{tC}, s10      ; 8 sub + 576 parity + 48 p
v_lshrrev_b32 v{tC}, 1, v{tR}
v_lshl_add_u32 v{tC}, v{tH}, 2, v{tC}
v_lshlrev_b32 v{tC}, 7, v{tC}
v_add_u32 v{tC}, {L_W}, v{tC}            ; common
'''
TG = [[12, 13, 14, 0], [1, 2, 6, 7], [8, 18, 19, 20], [24, 25, 26, 27], [30, 31, 32, 33]]
for k, gq in enumerate(TG):
    t += '''s_mov_b32 s10, %s
v_lshrrev_b32 v{tD}, v{tA}, s10
v_and_b32 v{tD}, 0xff, v{tD}
v_lshl_add_u32 v{tD}, v{tD}, 4, v{tB}
v_lshrrev_b32 v{tE}, 7, v{tD}
v_and_b32 v{tD}, 127, v{tD}
v_mul_u32_u24 v{tE}, 6144, v{tE}
v_add3_u32 v%d, v{tD}, v{tE}, v{tC}
''' % (lit4(gq), vW1 + k)
t += '''v_lshl_add_u32 v{tC}, v{tH}, 2, v{tR}    ; 4 hf + tR
v_mul_u32_u24 v{tC}, 192, v{tC}
v_and_b32 v{tA}, 1, v{tCc}
v_lshl_add_u32 v{tC}, v{tA}, 5, v{tC}
v_lshl_add_u32 v{tC}, v{tG}, 4, v{tC}
v_lshrrev_b32 v{tA}, 1, v{tCc}
v_lshl_add_u32 v{tC}, v{tA}, 3, v{tC}
s_mul_i32 s10, s37, 4608
s_add_u32 s10, s10, {L_WO}
v_add_u32 v{vTo}, s10, v{tC}
s_mul_i32 s14, s37, 9216
s_sub_u32 s14, 4608, s14              ; partner heads - own heads
; bias bases
s_mul_i32 s10, s37, {HS}
s_add_u32 s10, s10, %d
v_mov_b32 v{tK}, {BPB}
v_mul_u32_u24 v{tF}, %d, v{tH}
v_cndmask_b32 v{U4}, v{tK}, 16, s[8:9]   ; row multiplier
v_cndmask_b32 v{U5}, 16, v{tK}, s[8:9]   ; col multiplier
v_add_u32 v{tF}, s10, v{tF}              ; base, key tile A
v_mul_u32_u24 v{tK}, %d, v{tH}
v_mul_u32_u24 v{tA}, v{rA}, v{U4}
v_mul_u32_u24 v{tB}, v{rB}, v{U4}
v_sub_u32 v{tK}, %d, v{tK}               ; key tile B - A
v_mad_u32_u24 v{tA}, v{cA}, v{U5}, v{tA}
v_mad_u32_u24 v{tB}, v{cB}, v{U5}, v{tB}
v_sub_u32 v{vBAA}, v{tF}, v{tA}
v_sub_u32 v{vBBA}, v{tF}, v{tB}
v_add_u32 v{vBAB}, v{vBAA}, v{tK}
v_add_u32 v{vBBB}, v{vBBA}, v{tK}
''' % (L_BI + 6 * BPB + 96, TSZ + 4 * BPB, 8 * BPB, 4 * BPB + 48)
t += '''; store offsets
s_mul_i32 s10, s40, 7
s_add_u32 s10, s10, 3
s_mul_i32 s11, s39, 7
s_add_u32 s11, s11, 3
v_add_u32 v{tA}, s10, v{U0}
v_add_u32 v{tB}, s11, v{U1}
v_subrev_u32 v{tC}, 224, v{tA}
v_subrev_u32 v{tD}, 224, v{tB}
v_min_u32 v{tA}, v{tA}, v{tC}
v_min_u32 v{tB}, v{tB}, v{tD}
v_mul_u32_u24 v{tA}, 192, v{tA}
v_mul_u32_u24 v{tB}, 43008, v{tB}
v_mov_b32 v{tO}, 0x80000000
s_sub_u32 s10, 24, s37
v_add_u32 v{tA}, v{tA}, v{tB}
v_cmp_lt_u32 vcc, s10, v{tN}             ; invalid for the store
v_lshrrev_b32 v{tD}, 4, v{tL}
v_lshlrev_b32 v{tD}, 4, v{tD}
v_cndmask_b32 v{tA}, v{tA}, v{tO}, vcc
s_mov_b32 s35, 0x00020000
s_mov_b32 s34, 9633792
v_mov_b32 v{tB}, v{tA}
s_nop 1
v_permlane16_swap_b32 v{tA}, v{tB}
v_add_u32 v{vSoA}, v{tA}, v{tD}
v_add_u32 v{vSoB}, v{tB}, v{tD}
; O exchange
v_lshl_add_u32 v{vOw}, v{tL}, 3, s47
v_xor_b32 v{tA}, 3, v{tL}
v_lshlrev_b32 v{tB}, 4, v{tJ}
v_sub_u32 v{tA}, v{tA}, v{tB}
v_add_u32 v{tA}, 16, v{tA}               ; j -> 2 - j, i -> 3 - i
v_lshlrev_b32 v{tB}, 5, v{tH}
v_add_u32 v{tB}, 24, v{tB}
v_cndmask_b32 v{tA}, v{tA}, v{tB}, s[6:7]
v_lshl_add_u32 v{vOr}, v{tA}, 3, s48
v_mov_b32 v{Zr}, 0
; aug slots
s_cmp_eq_u32 s39, 31
s_cselect_b32 s10, 3, 99
s_cmp_eq_u32 s40, 31
s_cselect_b32 s11, 3, 99
s_mov_b32 s56, 0x3f80
s_mov_b32 s57, 0
s_mov_b32 s58, 0xffff
s_mov_b32 s59, 0
v_mov_b32 v{tE}, 0x%04x%04x
v_cmp_lt_u32 vcc, 24, v{tN}
v_mov_b32 v{tA}, 0xff00
v_mov_b32 v{tF}, 0x3f80
v_cndmask_b32 v{tK}, 0, v{tA}, vcc       ; invalid key
''' % (MK, MK)
for X in range(2):
    c_, r_ = (U0, U1) if X == 0 else (U2, U3)
    q, k = QB[X] + 6, KB[X] + 6
    t += '''v_cmp_lt_u32 vcc, s10, v%d
v_cmp_lt_u32 s[12:13], s11, v%d
v_cndmask_b32 v{tA}, 0, 32, vcc
v_cndmask_b32 v{tB}, 0, 16, s[12:13]
v_add_u32 v{tA}, v{tA}, v{tB}
v_lshlrev_b64 v[{U4}:{U5}], v{tA}, s[56:57]
v_lshlrev_b64 v[{U6}:{U7}], v{tA}, s[58:59]
v_cndmask_b32 v%d, v{U4}, v{tF}, s[8:9]
v_cndmask_b32 v%d, v{U5}, 0, s[8:9]
v_bfi_b32 v{U6}, v{U6}, 0, v{tE}
v_bfi_b32 v{U7}, v{U7}, 0, v{tE}
v_cndmask_b32 v%d, v{U6}, v{tK}, s[8:9]
v_cndmask_b32 v%d, v{U7}, 0, s[8:9]
''' % (r_, c_, q, q + 1, k, k + 1)
t += 'v_mov_b32 v%d, v%d\nv_mov_b32 v%d, v%d\n' % (QB[2] + 6, QB[1] + 6, QB[2] + 7, QB[1] + 7)
for i in range(14): t += 'v_mov_b32 v%d, 0x3f803f80\n' % (VF + i)
t += """s_mov_b32 s56, 0x00ffffff
s_mov_b32 s57, 0x00ffffff
s_mov_b32 s58, -1
s_mov_b32 s59, 0
"""
MARK = ['; begin', '; W bases', '; bias bases', '; store offsets', '; O exchange', '; aug slots', '; end']
t = '; begin\n' + t + '; end\n'
for k, mk in enumerate(MARK): t = t.replace(mk + '\n', g1x(k) + mk + '\n')
B(t)
stamp()
B('s_cmp_ge_u32 s36, 4\ns_cbranch_scc1 L_main\n' + BIAS + 'L_main:\n')
B('s_mov_b32 s27, 0x00020000\ns_mov_b32 s26, 18432\ns_mul_i32 s15, s36, 2304\ns_add_u32 s52, s15, {L_WO}\ns_lshl2_add_u32 s53, s36, {FO}')
if BAR:
    B('s_waitcnt vmcnt(0)\ns_barrier')
if QS: A('s_mov_b32 s3, %s' % f32(C_EXP))
A('v_mov_b32 v%d, 0\nv_mov_b32 v%d, 0' % (SB[0][0] + 12, SB[1][0] + 12))
A('s_waitcnt lgkmcnt(0)'); A('s_nop 1')
stamp()

slow = []
TAGS = {}
N = []
PH = [0]
def ph(k): PH[0] = k
LM = [None]
def n(t, tag=None, **k):
    X = Node(t, **k); N.append(X); X.ph = PH[0]
    if X.kind == 'mfma':
        if LM[0] is not None: X.after.append((LM[0], 32))
        LM[0] = X
    if tag: TAGS[id(X)] = tag
    return X
_tmp = [0]
CHK = {}
def check(name, off, cmpi, rd=(), after=(), bias=0, ad=vFg):
    tmp = (T0, T1)[_tmp[0] % 2]; _tmp[0] += 1
    off = 'v%d offset:%d' % (ad, off)
    n(F('ds_read_b32 v%d, %s' % (tmp, off)), rd=rd, wr=['f' + name], after=after, bias=bias)
    C = n('%s, v%d' % (cmpi, tmp), wr=['vcc'], bias=bias)
    Bn = n('s_cbranch_vccnz L_z%s\nL_k%s:' % (name, name), rd=['vcc', 'f' + name], wr=[name], after=[(C, 24)], bias=bias, tag=name)
    CHK[id(Bn)] = (name, off, cmpi, tmp)
def sp(c): return 'f' + c
def ev(name, off, **k): check(name, off, 'v_cmp_eq_u32 vcc, 0', **k)
SG = {}
def sig(k, rd): SG[k] = n(F('ds_add_u32 v{vPw}, v{vOne} offset:{FC}'), rd=list(rd) + ['sig'], wr=['sig', 'sg%d' % k], bias=opt('nb%d' % (2 * k - 4), 0))
def chk(k, rd=()): check('c%d' % k, FC, 'v_cmp_gt_u32 vcc, %d' % (k - 1), rd=rd, after=[(SG[k], opt('sync%d' % k, SYNC))])
def tr(dst, addr, off, **k): n('ds_read_b64_tr_b16 %s, v%d offset:%d' % (qn(dst, 2), addr, off), **k)
def r128(dst, addr, off, **k): n('ds_read_b128 %s, v%d offset:%d' % (qn(dst, 4), addr, off), **k)
def r64(dst, addr, off, **k): n('ds_read_b64 %s, v%d offset:%d' % (qn(dst, 2), addr, off), **k)
def w64(src, addr, off, **k): n('ds_write_b64 v%d, %s offset:%d' % (addr, qn(src, 2), off), **k)

UEV = ['ea', 'ea', 'ed', 'ed', 'ed']
ORDU = [0, 1, 3, 2, 4]
SL = {(U, s): (6 * ORDU.index(U) + s) % 8 for U in range(5) for s in range(6)}
PRE = set()
def wtr(U, s, first=False):
    if (U, s) in PRE: return
    PRE.add((U, s))
    wb = WB + 4 * SL[(U, s)]
    for u in range(2): tr(wb + 2 * u, vW1 + U, s * 1024 + u * 256, rd=[sp(UEV[U])], wr=(['w%d%d' % (s, u)] if first else []))
def unit(U, X, a, ks=range(6), rd=()):
    for s in ks:
        wb = WB + 4 * SL[(U, s)]
        wtr(U, s)
        x = XF[X] + 4 * s
        nm = 'u%d%s' % (U, 'AB'[X])
        n(m32(a, x, wb, a if s else None) if U >= 3 else m32(a, wb, x, a if s else None), rd=[UEV[U]] + list(rd), wr=[nm + str(s)], tag=(nm if s == 5 else 'st' if (U, X, s) == (0, 0, 0) else None))
def cvg(a, dsts, rd=()):
    for g, (d, isq) in enumerate(dsts):
        if isq and QS:
            for i in range(4): n('v_mul_f32 v%d, s3, v%d' % (a + 4 * g + i, a + 4 * g + i))
        for j in range(2): n(pk(d + j, a + 4 * g + 2 * j, a + 4 * g + 2 * j + 1))
def Qa(X): return QB[0] if X == 0 else QB[2]
def Qb(X): return QB[2] if X == 0 else QB[1]
def cvT(U, X, a):
    k = KB[X]
    if U == 0: cvg(a, [(k, 0), (k + 2, 0), (k + 4, 0), (Qa(X), 1)])
    if U == 1: cvg(a, [(Qa(X) + 2, 1), (Qa(X) + 4, 1), (Qb(X), 1), (Qb(X) + 2, 1)])
    if U == 2: cvg(a, [(Qb(X) + 4, 1), (k, 0), (k + 2, 0), (k + 4, 0)])
VD = [[VF, VF + 1, VF + 2, VF + 3, VF + 8, VF + 9, VF + 12], [VF + 4, VF + 5, VF + 6, VF + 7, VF + 10, VF + 11]]
def cvV(X, a):
    d = VD[X]
    for lo, hi in ((0, 4), (4, len(d))):
        n('s_mov_b64 exec, s[56:57]\n' + '\n'.join(pk(d[j], a + 2 * j, a + 2 * j + 1) for j in range(lo, hi)) + '\ns_mov_b64 exec, -1')
def smm(k):
    hb, X = k >> 1, 1 - (k & 1)
    SA_, SB_ = SB[k % 2]
    q = (Qb if hb else Qa)(X)
    o = hb * 2 * HS
    BD = [['u0B0', 'u0B2', 'u0B4', 'u0B5', 'u1B0', 'u1B2', 'u1B4'], ['u1A%d' % M0X] * 7, [], []][k] if XO1 else []
    bd = lambda j: ['ea'] + BD[j:j + 1]
    for j in range(3): r128(SA_ + 4 * j, vBAA + 2 * X, o + j * BPB, rd=bd(j))
    n('s_mov_b64 exec, s[58:59]\nds_read_b32 v%d, v%d offset:%d\ns_mov_b64 exec, -1' % (SA_ + 12, vBAA + 2 * X, o + 3 * BPB + 12), rd=bd(3) + [SA_ + 12])
    for j in range(3): r128(SB_ + 4 * j, vBAA + 2 * X + 1, o + j * BPB, rd=bd(4 + j))
    n(m32(SA_, KB[0], q, SA_)); n(m32(SA_, KB[0] + 4, q + 4, SA_))
    n(m32(SB_, KB[1], q, SB_)); n(m32(SB_, KB[1] + 4, q + 4, SB_), tag='s%d' % k, wr=['s%d' % k])
LE = [None]; NE = [0]
def softmax(k):
    SA_, SB_ = SB[k % 2]
    m, tm = SB_ + 12, SB_ + 13
    regs = [SA_ + i for i in range(13)] + [SB_ + i for i in range(12)]
    n('v_max3_f32 v%d, v%d, v%d, v%d' % (m, regs[0], regs[1], regs[2]))
    for i in range(3, 25, 2): n('v_max3_f32 v%d, v%d, v%d, v%d' % (m, m, regs[i], regs[i + 1]))
    n('v_mov_b32 v%d, v%d' % (tm, m))
    n('v_permlane32_swap_b32 v%d, v%d' % (tm, m))
    n('v_max_f32 v%d, v%d, v%d' % (m, m, tm), tag=('m%d' % k if QS else None))
    if not QS: n('v_mul_f32 v%d, %s, v%d' % (m, f32(-C_EXP), m), tag='m%d' % k)
    def ex(r):
        n('v_sub_f32 v%d, v%d, v%d' % (r, r, m) if QS else 'v_fmamk_f32 v%d, v%d, %s, v%d' % (r, r, f32(C_EXP), m))
        NE[0] += 1
        LE[0] = n('v_exp_f32 v%d, v%d' % (r, r), after=([(LE[0], 12)] if LE[0] else []), bias=EBIAS, wr=(['X%d' % k] if NE[0] % 25 == opt('edx', 20) else []))
    pairs = [(SA_ + j, SA_ + 2 * j) for j in range(6)] + [(Pc, SA_ + 12)] + [(SA_ + 8 + j, SB_ + 2 * j) for j in range(4)] + [(SA_ + 6, SB_ + 8), (SA_ + 7, SB_ + 10)]
    for i, (d, r) in enumerate(pairs):
        ex(r)
        if d != Pc: ex(r + 1)
        n(pk(d, r, r + 1 if d != Pc else None), tag=('e%d' % k if i == 12 else None), wr=(['e%d' % k] if i == opt('sxi', 1) else []))
def pv(k):
    P, o = SB[k % 2]
    n(m32(o, VF, P, None))
    n(m8(o, VF + 12, Pc, o))
    n(m32(o, VF + 4, P + 8, o))
    n(m32(o, VF + 8, P + 4, o), tag='p%d' % k, wr=['p%d' % k])
def norm(k):
    P, o = SB[k % 2]
    nb = opt('nb%d' % k, 0)
    n('v_rcp_f32 v%d, v%d' % (o + 13, o + 12), bias=nb)
    for i in range(12): n('v_mul_f32 v%d, v%d, v%d' % (o + i, o + i, o + 13), bias=nb)
    d = o if not k & 1 else (O1, O2)[k >> 1] + 6
    for j in range(6): n(pk(d + j, o + 2 * j, o + 2 * j + 1), tag=('o%d' % k if j == 5 else None), bias=nb)
def send(k, rd=()):
    o = SB[k % 2][1]
    for j in range(3): w64(o + 2 * j, vOw, (3 * RP if k == 0 else 0) + j * 512, rd=rd, wr=['ow%d%d' % (k, j)], bias=opt('nb%d' % k, 0))
    sig(2 + k // 2, ['ow%d%d' % (k, j) for j in range(3)])
def recv(k):
    c = 'c%d' % (2 + k // 2)
    for j in range(3): r64((O1, O2)[k // 2] + 2 * j, vOr, (3 * RP if k == 0 else 0) + j * 512, rd=[sp(c)])
OAC = [ACC[0], AC3, ACC[1]]
WOB = [WB + 24, WB + 28, QB[0], QB[0] + 4, QB[1], QB[1] + 4, WB, WB + 4, WB + 8, WB + 12, WB + 16, WB + 20, 66, 70]
KSEQ = {0: [0, 1, 2], 1: [2, 0, 1]}[opt('ord6', 1)] + [3, 4, 5]
def wofr(ks, T):
    wb = WOB[(3 * KSEQ.index(ks) + T) % 14]
    for u in range(2):
        g = 2 * (ks % 3) + u
        tr(wb + 2 * u, vTp if g < 3 else vTo, (ks // 3) * 9216 + (g % 3) * 1536 + T * 64, rd=[sp('eo') if KSEQ.index(ks) < 2 else 'eo', 'tp'])
    return wb
def outk(ks, rd=()):
    for T in range(3):
        wb = wofr(ks, T)
        n(m32(OAC[T], wb, O1 + 4 * ks, OAC[T] if KSEQ.index(ks) else None), rd=['eo'] + list(rd), wr=['K%d%d' % (ks, T)], tag=('k%d' % ks if T == 2 else None))
def outk2(k0, k1):
    for T in range(3):
        for ks in (k0, k1):
            wb = wofr(ks, T)
            n(m32(OAC[T], wb, O1 + 4 * ks, OAC[T]), rd=['eo'], tag=('k%d' % ks if T == 2 else None), bias=(2 - T) * opt('tb', 40))

a0, a1 = ACC
ev('ea', FA, ad=vF8)
for s in range(6): wtr(0, s, True)
n('s_waitcnt vmcnt(6)\ns_cmp_ge_u32 s36, 4\ns_cbranch_scc1 L_xw\ns_waitcnt vmcnt(0)\nL_xw:', rd=['ea'] + ['w%d%d' % (s, u) for s in range(6) for u in range(2)], wr=['x'], tag='x')
for s in range(6): r128(XF[0] + 4 * s, vXA, s * 32, rd=['x'], wr=(['xr'] if s == 5 else []))
ev('c1', FX, rd=['xr'])
XO1 = opt('xo1', 1)
if XO1:
    unit(0, 0, a0, range(1))
    for s in range(6):
        if s in (2, 4): unit(0, 0, a0, range(s // 2, s // 2 + 1))
        r128(XF[1] + 4 * s, vXB, s * 32, rd=[sp('c1'), 'u0A%d' % (s // 2)])
    unit(0, 0, a0, range(3, 6)); cvT(0, 0, a0)
else:
    for s in range(6): r128(XF[1] + 4 * s, vXB, s * 32, rd=[sp('c1')])
    unit(0, 0, a0); cvT(0, 0, a0)
unit(0, 1, a1, rd=['c1']); cvT(0, 1, a1)
n(F('v_add_u32 v{vTp}, s14, v{vTo}'), rd=['ea', 'u0B0'], wr=['tp'])
unit(1, 1, a0); cvT(1, 1, a0)
M0X = opt('m0x', 3)
WOA = {0: ['s0', 's0', 's0'], 1: ['u0B2', 'u1B0', 'u1B4']}[opt('woa', 0)]
unit(1, 0, a1, range(M0X))
smm(0)
ph(opt('wop', 1))
n(F('s_mov_b32 m0, s52\ns_nop 0\nbuffer_load_dwordx4 v{v16}, s[24:27], s15 offen lds'), rd=['x', WOA[0]], wr=['ld'])
n(F('buffer_load_dwordx4 v{v16}, s[24:27], s15 offen offset:1024 lds'), rd=['ld', WOA[1]], wr=['ld'])
n(F('s_mov_b64 exec, 0xffff\nbuffer_load_dwordx4 v{v16}, s[24:27], s15 offen offset:2048 lds\n' + dfl('s_mov_b32 m0, s53\ns_nop 0')), rd=['ld', WOA[2]], wr=['ld'])
ph(1); softmax(0)
ph(2)
for j in range(2): n('v_mov_b32 v%d, v%d' % (QB[2] + 6 + j, QB[0] + 6 + j))
ev('ed', FD - 16, ad=vF8, rd=['X0'])
unit(1, 0, a1, range(M0X, 6)); cvT(1, 0, a1)
if opt('m2o', 0): smm(1)
unit(3, 0, a0); cvV(0, a0)
unit(3, 1, a1); cvV(1, a1)
if not opt('m2o', 0): smm(1)
pv(0)
ph(3); softmax(1); norm(0)
ph(opt('sp0', 4)); send(0)
ph(4)
unit(2, 1, a0); cvT(2, 1, a0)
unit(2, 0, a1); cvT(2, 0, a1)
pv(1)
smm(2)
unit(4, 0, a0); cvV(0, a0)
ph(5); softmax(2); norm(1)
ph(6)
C2B = opt('c2b', 3)
if C2B < 0: chk(2, rd=['u4A%d' % opt('c2a', 0)]); recv(0)
ev('eo', FO, ad=vF8, rd=['u4A%d' % opt('eoa', 1)])
unit(4, 1, a1); cvV(1, a1)
if 6 > C2B >= 0: chk(2, rd=['u4B%d' % C2B]); recv(0)
smm(3)
if C2B == 6: chk(2, rd=['s3']); recv(0)
pv(2)
if C2B == 7: chk(2, rd=['p2']); recv(0)
for ks in KSEQ[:3]: outk(ks, ['c2'] if ks < 2 else [])
ph(7); norm(2)
ph(opt('sp2', 7)); send(2, ['c2'])
ph(7); softmax(3)
ph(8)
chk(3); recv(2)
pv(3); outk(3, ['c3']); norm(3)
outk2(4, 5)
for T in range(3):
    a = OAC[T]
    for j in range(8): n(pk(a + j, a + 2 * j, a + 2 * j + 1))
    for j in range(4): n('v_permlane16_swap_b32 v%d, v%d' % (a + j, a + 4 + j))
    n('buffer_store_dwordx4 %s, v%d, s[32:35], 0 offen offset:%d%s' % (qn(a, 4), vSoA, T * 64, STM))
    n('buffer_store_dwordx4 %s, v%d, s[32:35], 0 offen offset:%d%s' % (qn(a + 4, 4), vSoB, T * 64, STM), tag='z%d' % T)

STAGS = (sys.argv[sys.argv.index('--tags') + 1] if '--tags' in sys.argv else 'st,s0,e0,p0,o0,u4A,o1,k2,e3').split(',')
cur = [0]; ORD = []
def setp(p):
    if p != cur[0]: A('s_setprio %d' % p); cur[0] = p
def emit(N, name):
    out, t = schedule(N, name)
    seen = []
    rng = {}; cph = {}
    import collections
    mtot = collections.Counter(X.ph for tt, X in out if X.kind == 'mfma'); mdone = collections.Counter()
    m_ = 99
    for tt, X in reversed(out):
        if not (X.kind == 'dsr' or X.ins[0].op.startswith(('v_cmp', 's_cbranch'))): m_ = min(m_, X.ph)
        cph[id(X)] = m_
    for tt, X in out:
        p_ = cph[id(X)]; rng[p_] = (rng.get(p_, (tt, tt))[0], tt)
    for tt, X in out:
        p_ = cph[id(X)]
        a_, b_ = rng[p_]
        if p_ & 1: hi = 1 if tt > a_ + (b_ - a_) * opt('fv', 30) / 100 else 0
        else: hi = 1 if mdone[p_] >= mtot[p_] * opt('fm', 50) / 100 else 0
        if X.kind == 'mfma': mdone[p_] += 1
        if (p_ & 1) and X.ins[0].kind in ('dsr', 'dsw') and opt('lp', 1): setp(3)
        elif (p_ & 1) and cur[0] == 3 and X.ins[0].kind in ('salu', 'wait') and len(X.ins) == 1: pass
        else: setp((PB_ if p_ & 1 else PM) + hi)
        for I in X.ins: A.add(I)
        seen.append(X)
        if id(X) in CHK:
            nm, off, cmpi, tmp = CHK[id(X)]
            rr = [Y.lines[0] for Y in seen if ('f' + nm) in Y.rd and Y.kind == 'dsr']
            slow.append(F('L_z%s:\n%sds_read_b32 v%d, %s\ns_waitcnt lgkmcnt(0)\n%s, v%d\ns_cbranch_vccnz L_z%s\nL_y%s:\n' % (nm, ('s_sub_u32 s101, s101, 1\ns_cmp_lt_i32 s101, 0\ns_cbranch_scc1 L_y%s\n' % nm) if SPIN else '', tmp, off, cmpi, tmp, nm, nm)) + ''.join(l + '\n' for l in rr) + ('s_waitcnt lgkmcnt(0)\n' if rr else '') + 's_branch L_k%s' % nm)
        tg = TAGS.get(id(X))
        if tg: print('  %s@%d' % (tg, tt), end=''); A('; TAG %s' % tg)
        if tg in STAGS: stamp(); ORD.append('%s@%d' % (tg, tt))
    print()
emit(N, 'main')
open(sys.argv[1] + '.tags', 'w').write(' '.join(ORD))
if STAMP:
    A('s_waitcnt vmcnt(0)')
    stamp(); stamp(True)
    A('s_lshl_b32 s100, s2, 4\ns_add_u32 s100, s100, s36\ns_lshl_b32 s100, s100, 6')
    A('s_waitcnt lgkmcnt(0)')
    A('v_mbcnt_lo_u32_b32 v17, -1, 0\nv_mbcnt_hi_u32_b32 v17, -1, v17\nv_lshlrev_b32 v17, 2, v17')
    for k in range(15 if PST else _st[0]):
        A('v_writelane_b32 v16, s%d, %d' % (64 + 2 * k, k))
    A('s_mov_b64 exec, 0xffff\nbuffer_store_dword v16, v17, s[96:99], s100 offen')
A('s_endpgm')
A.rawmode = True
for s_ in slow: A(s_)
A.rawmode = False
A('L_end:')
A('s_endpgm')
body = A.finalize()

hdr = open('standalone__window_attn_swin__vision.s.ref').read().split('\n')
hdr = [l for l in hdr if l.startswith(';') and '@launch' not in l]
out = '\n'.join(hdr) + '\n; @launch grid=(256,1,1) block=(512,1,1) lds=%d\n' % L_SIZE
out += '''.amdgcn_target "amdgcn-amd-amdhsa--gfx950"
.text
.globl standalone__window_attn_swin__vision_kernel
.p2align 8
.type standalone__window_attn_swin__vision_kernel,@function
standalone__window_attn_swin__vision_kernel:
''' + body + '''.section .rodata,"a"
.p2align 6
.amdhsa_kernel standalone__window_attn_swin__vision_kernel
  .amdhsa_next_free_vgpr 256
  .amdhsa_next_free_sgpr 102
  .amdhsa_accum_offset 256
  .amdhsa_group_segment_fixed_size 0
  .amdhsa_kernarg_size 72
  .amdhsa_user_sgpr_count 2
  .amdhsa_user_sgpr_kernarg_segment_ptr 1
  .amdhsa_system_sgpr_workgroup_id_x 1
.end_amdhsa_kernel
'''
dst = sys.argv[1]
open(dst, 'w').write(out)
print('instructions:', len(body.split('\n')), 'nop states:', A.nnops)
```

```python
import struct, sys, math
import asmlib
from asmlib import Asm, Node
import sched3 as sched2
from sched3 import schedule
def f32(x): return '0x%08x' % struct.unpack('<I', struct.pack('<f', x))[0]
SCALE = 24 ** -0.5
C_EXP = SCALE * math.log2(math.e)
INV = 24 ** 0.5
STAMP = '--stamp' in sys.argv
XNT = ' nt'
STM = {0: ' nt', 1: ' sc0 sc1 nt', 2: ' sc1', 3: ' sc0 sc1', 4: ' sc1 nt'}[int(([a.split('=')[1] for a in sys.argv if a.startswith('--stm=')] + ['0'])[0])]
def opt(name, dflt):
    for a in sys.argv:
        if a.startswith('--%s=' % name): return int(a.split('=')[1])
    return dflt
sched2.PRM.update(nxp=1000, nxd=100, lam=60, vl=1, vh=4, vt=0, vt1=12)
for k_ in ('lat', 'lam', 'boost', 'stc', 'soft', 'php', 'nxp', 'nxd', 'vl', 'vh', 'vt', 'vt1'): sched2.PRM[k_] = opt(k_, sched2.PRM[k_])
asmlib.SAFE = sched2.PRM['safe'] = opt('safe', 150)
PM = opt('pm', 2)
PB_ = opt('pb', 0)
SYNC = opt('sync', 60)
EBIAS = opt('ebias', 4)
BAR = opt('bar', 0)
QS = opt('qs', 0)
SPIN = opt('spin', 0)
if QS: INV = math.log2(math.e)
MK = 0xc310 if QS else 0xc3f5

BPB = 160
TSZ = 2080; HS = 4160
L_BI = 512
L_RP = L_BI + 4 * HS
L_W = 21504
assert L_RP + 4096 <= L_W and L_W % 256 == 0
L_WO = L_W + 55296
L_R = L_WO + 18432
RP, PBO, RS = 1616, 912, 6432
L_SIZE = opt('lds', 163840)
assert L_R + 8 * RS <= L_SIZE
ZF = L_W // 8

OOBL = 0x28000
FA, FD, FO, FX, FC = 0, 32, 48, 96, 128

(vW1, vW2, vW3, vWa, vWb, vTo, vBAA, vBAB, vBBA, vBBB, vSoA, vSoB, vFg, vPw, vF8, vOne, vSp, vOw, vOr, v16, vXA, vXB, Pc, Zr, T0, T1) = range(26)
vTp = vW1
XF = [26, 50]
WB = 74
ACC = [106, 122]
QB = [138, 146, 154]
KB = [162, 170]
VF = 178
SB = [[192, 208], [224, 240]]
O1, O2, AC3 = 26, 38, 50
tL, tN, tH, tG, tR, tCc, tX, tA, tB, tC, tD, tE, tO, tP, tRp, tJ, tHh, tI, rA, cA, rB, cB, tF, tK = range(192, 216)
Z = 216
PL = 220
U0 = 228
def qn(b, n): return 'v[%d:%d]' % (b, b + n - 1)

A = Asm()
_st = [0]
def stamp(real=False):
    if not STAMP: return
    k = _st[0]; _st[0] += 1
    assert k < 16
    A('%s s[%d:%d]' % ('s_memrealtime' if real else 's_memtime', 64 + 2 * k, 65 + 2 * k))
class D(dict):
    def __missing__(self, k): return globals()[k]
def F(t): return t.format_map(D())
PST = opt('pst', 0) if STAMP else 0
def B(t):
    t = F(t)
    for k in range(4): t = t.replace('@T%d' % k, 's_memtime s[%d:%d]' % (86 + 2 * k, 87 + 2 * k) if PST == 1 else '')
    for k in range(4): t = t.replace('@U%d' % k, 's_memtime s[%d:%d]' % (86 + 2 * k, 87 + 2 * k) if PST == 2 else '')
    A(t)
def m32(d, a, b, c): return 'v_mfma_f32_32x32x16_bf16 %s, %s, %s, %s' % (qn(d, 16), qn(a, 4), qn(b, 4), qn(c, 16) if c is not None else '0')
def m8(d, a, b, c): return 'v_mfma_f32_32x32x8_bf16 %s, %s, %s, %s' % (qn(d, 16), qn(a, 2), qn(b, 2), qn(c, 16))
def pk(d, a, b_): return 'v_cvt_pk_bf16_f32 v%d, v%d, %s' % (d, a, 'v%d' % b_ if b_ is not None else '0')
Z1, Z2, Z3 = Z + 1, Z + 2, Z + 3
PL1, PL2, PL3, PL4, PL5 = range(PL + 1, PL + 6)
U1, U2, U3, U4, U5, U6, U7 = range(U0 + 1, U0 + 8)

B('''
s_cmp_ge_u32 s2, 256
s_cbranch_scc1 L_end
''')
stamp(True); stamp()
ZF = L_W // 4
def xa(r, e=1): return ('s_mov_b64 exec, s[62:63]\n' if e else '') + 's_add_u32 m0, s47, %d\ns_add_u32 s54, s45, s%d\nbuffer_load_dwordx4 v{tX}, s[16:19], s54 offen{XNT} lds\n' % (r * RP, 41 + r)
def xb(r, e=1): return ('s_mov_b64 exec, s[60:61]\n' if e else '') + 's_add_u32 m0, s47, %d\ns_add_u32 s54, s46, s%d\nbuffer_load_dwordx4 v{tX}, s[16:19], s54 offen{XNT} lds\n' % (r * RP + PBO, 41 + r)
X0 = 's_mov_b64 exec, -1\n'
def wd(sl, sg, ks, dc=0):
    return 's_add_u32 m0, s%d, %d\ns_add_u32 s54, s%d, %d\nbuffer_load_dwordx4 v{tP}, s[20:23], s54 offen lds\n' % (sl, ks * 1024 + dc * 6144, sg, ks * 9216 + dc * 128)
def dfl(m0): return 's_mov_b64 exec, 1\n%s\nbuffer_load_dword off, s[28:31], 0 lds\ns_mov_b64 exec, -1\n' % m0
XO = opt('xo', 0)
XL = [xa(0), xa(1, 0), xa(2, 0), xa(3, 0), xb(0), xb(1, 0), xb(2, 0), xb(3, 0)] if XO == 0 else [f(r) for r in range(4) for f in (xa, xb)]
WV = """v_lshrrev_b32 v{tB}, 3, v{tL}
v_and_b32 v{tC}, 7, v{tL}
v_mul_u32_u24 v{tB}, 1152, v{tB}
v_lshl_add_u32 v{tP}, v{tC}, 4, v{tB}    ; W voffset
s_mov_b32 s23, 0x00020000
s_mov_b32 s22, 55296
s_and_b32 s51, s36, 3
s_lshl_b32 s49, s51, 10
s_add_u32 s49, s49, {L_W}             ; ks = w & 3
s_mul_i32 s50, s51, 9216
s_and_b32 s51, s38, 1                 ; i & 1
s_mul_i32 s52, s51, 9216
s_lshl_b32 s51, s51, 10
s_add_u32 s51, s51, {L_W}             ; ks = 4 + (i & 1)
s_mul_i32 s53, s37, 24576
s_add_u32 s53, s53, s51
s_lshl_b32 s55, s37, 9
s_add_u32 s55, s55, s52
"""
XPOS = opt('xpos', 3)
NW1 = opt('nw1', 5)
B("""
s_load_dwordx2 s[20:21], s[0:1], 8
s_load_dwordx2 s[16:17], s[0:1], 0
v_readfirstlane_b32 s36, v0
s_load_dwordx2 s[28:29], s[0:1], 24
s_load_dwordx2 s[12:13], s[0:1], 32
v_and_b32 v{tL}, 63, v0                  ; lane
s_lshr_b32 s39, s2, 3                 ; wy
s_lshr_b32 s36, s36, 6                ; wave
s_xor_b32 s36, s36, 4
s_and_b32 s37, s36, 1                 ; p
s_lshr_b32 s38, s36, 1                ; i
v_lshlrev_b32 v{v16}, 4, v{tL}
s_mul_i32 s47, s36, {RS}
s_add_u32 s47, s47, {L_R}             ; own region
s_mov_b32 s31, 0x00020000
s_mov_b32 s30, 1352
s_cmp_ge_u32 s36, 4
s_cselect_b64 vcc, -1, 0
s_cbranch_scc1 L_g1
s_setprio %d
s_lshl_b32 s49, s36, 3
s_lshr_b32 s49, 0x20000027, s49
s_and_b32 s49, s49, 0xff
s_lshl_b32 s49, s49, 4                ; first rpb byte staged by this wave
s_lshl_b32 s50, s36, 10
s_add_u32 s50, s50, {L_RP}
L_x:
v_mul_u32_u24 v{tX}, 5, v{tL}
s_and_b32 s40, s2, 7
s_lshl2_add_u32 s40, s40, s38         ; wx
v_lshrrev_b32 v{tX}, 6, v{tX}            ; tau
s_mul_i32 s41, s39, %d
s_add_u32 s41, s41, %d                ; row 0 of the window
s_add_u32 s44, s41, %d                ; row 3
v_sub_u32 v{tX}, v{tL}, v{tX}
s_add_u32 s42, s41, %d                ; row 6
s_cmp_eq_u32 s39, 31
s_cselect_b32 s42, %d, s42
v_lshlrev_b32 v{tX}, 4, v{tX}
s_cmp_eq_u32 s37, 1
s_cselect_b32 s41, s42, s41           ; row' 0
s_mov_b32 s43, %d
s_cselect_b32 s43, s43, %d             ; step
s_add_u32 s42, s41, s43
s_add_u32 s43, s42, s43
s_mul_i32 s45, s40, 1344
s_add_u32 s45, s45, 576
s_add_u32 s46, s45, 768
s_cmp_eq_u32 s40, 31
s_cselect_b32 s46, 0, s46
s_mov_b32 s19, 0x00020000
s_mov_b32 s18, 9633792
s_mov_b32 s62, -1
s_mov_b32 s63, 0xfffff                ; 52 lanes
s_mov_b32 s60, -1
s_mov_b32 s61, 0x7f                   ; 39 lanes
s_mov_b32 m0, s50
s_waitcnt lgkmcnt(0)
""" % (opt('pp', 2), 7 * 43008, 3 * 43008, 3 * 43008, 6 * 43008, 2 * 43008, -43008 & 0xffffffff, 43008))
stamp()
XFL = 's_xor_b32 s54, s36, 1\n' + dfl('s_lshl2_add_u32 m0, s54, {FX}\ns_nop 0')
S4 = f32(INV)
cv = ''
QD = [U0, U0 + 4, U0 + 8, U0 + 12]
for e in range(4):
    for d in range(2):
        cv += 'v_lshlrev_b32 v%d, 16, v%d\nv_and_b32 v%d, 0xffff0000, v%d\n' % (QD[2 * d] + 3 - e, PL + 2 * e + d, QD[2 * d + 1] + e, PL + 2 * e + d)
def pm(h): return ''.join('v_pk_mul_f32 v[%d:%d], v[%d:%d], s[8:9]\n' % (QD[h] + 2 * k, QD[h] + 2 * k + 1, QD[h] + 2 * k, QD[h] + 2 * k + 1) for k in range(2))
def bw(h): return 'ds_write_b128 v%d, v[%d:%d] offset:%d\n' % (tA if h & 1 else tB, QD[h], QD[h] + 3, L_BI + h * HS)
B("""s_cbranch_vccnz L_x1
buffer_load_dwordx4 v{v16}, s[28:31], s49 offen lds
s_mov_b64 s[28:29], s[12:13]
s_load_dwordx2 s[24:25], s[0:1], 16
L_x1:
""" + ''.join(XL) + X0 + """@U1
s_load_dwordx2 s[32:33], s[0:1], 48
s_cbranch_vccnz L_g1r
s_branch L_setup
""")
BIAS = """s_lshl_b32 s54, s37, 6
s_add_u32 s54, s54, 1
v_add_u32 v{tJ}, s54, v{tL}              ; L
s_cmp_eq_u32 s38, 1                   ; V table
s_movk_i32 s8, 205
s_cmovk_i32 s8, 158
s_cselect_b32 s9, 0, -184
s_cselect_b32 s10, 0, 1248
v_mul_u32_u24 v{tI}, s8, v{tJ}
s_sub_u32 s50, s50, s49
s_add_u32 s10, s10, s50
v_lshl_add_u32 v{tC}, v{tJ}, 3, s10
v_lshrrev_b32 v{tI}, 11, v{tI}           ; L / 10 | L / 13
s_cmp_eq_u32 s38, 1
s_cselect_b32 s8, 160, 16
v_mad_i32_i24 v{tC}, v{tI}, s9, v{tC}    ; staged source
s_movk_i32 s9, -320
s_cmovk_i32 s9, -2064
s_movk_i32 s10, 1920
s_cmovk_i32 s10, {TSZ}
s_movk_i32 s11, 2064
s_cmovk_i32 s11, %d
v_mul_u32_u24 v{tA}, s8, v{tJ}
@T0
s_waitcnt vmcnt(9)
@T1
s_cbranch_scc1 L_bv
ds_read2_b64 v[{PL}:{PL3}], v{tC} offset1:1
ds_read2_b64 v[{PL4}:{PL7}], v{tC} offset0:2 offset1:3
s_branch L_bw
L_bv:
ds_read2_b64 v[{PL}:{PL3}], v{tC} offset1:13
ds_read2_b64 v[{PL4}:{PL7}], v{tC} offset0:26 offset1:39
L_bw:
v_mad_i32_i24 v{tA}, v{tI}, s9, v{tA}
s_mov_b32 s8, %s
s_mov_b32 s9, %s
v_add_u32 v{tA}, s10, v{tA}              ; odd heads
v_sub_u32 v{tB}, s11, v{tA}              ; even heads (mirrored)
s_waitcnt lgkmcnt(0)
""" % (2064 + 2 * TSZ, S4, S4) + cv + pm(0) + pm(1) + bw(0) + pm(2) + bw(1) + pm(3) + bw(2) + bw(3) + """s_mov_b64 exec, 1
ds_write_b32 v{vFg}, v{vOne} offset:%d
s_mov_b64 exec, -1
@T2
""" % (FA + 16)
PL7 = PL + 7
WF = [wd(49, 50, 0, 1), wd(49, 50, 0, 0), wd(49, 50, 0, 4), wd(49, 50, 0, 2), wd(49, 50, 0, 5), wd(49, 50, 0, 6), wd(53, 55, 4, 0), wd(53, 55, 4, 1), wd(53, 55, 4, 2)]
PFC = ("""s_cmp_lg_u32 s36, 4
s_cbranch_scc1 L_npf
s_mul_i32 s54, s39, 2304
v_lshl_add_u32 v{tRp}, v{tL}, 7, s54
s_mov_b64 exec, 0x3ffff
s_cmp_ge_u32 s39, 24
s_cbranch_scc1 L_pf2
buffer_load_dword v{PL}, v{tRp}, s[20:23], 0 offen
s_branch L_pf3
L_pf2:
v_subrev_u32 v{tRp}, 55296, v{tRp}
buffer_load_dword v{PL}, v{tRp}, s[24:27], 0 offen
L_pf3:
s_mov_b64 exec, -1
L_npf:
""" if opt('pf', 1) else '')
PFP = opt('pfp', NW1)
if PFP: WF[PFP - 1] += PFC
else: WF[0] = PFC + WF[0]
LW = [wd(49, 50, 0, 3), wd(49, 50, 0, 7), wd(49, 50, 0, 8), wd(53, 55, 4, 3), wd(51, 52, 4, 8)]
B("""L_g1:
s_setprio %d
s_load_dwordx2 s[24:25], s[0:1], 16
v_mov_b32 v{Z}, 0
v_mov_b32 v{Z1}, 0
v_lshlrev_b32 v{tA}, 3, v{tL}
ds_write_b64 v{tA}, v[{Z}:{Z1}]
""" % opt('p1', 3) + WV + """s_and_b32 s3, s36, 3
s_lshl_b32 s3, s3, 2
s_mov_b32 s27, 0x00020000
s_mov_b32 s26, 18432
s_waitcnt lgkmcnt(0)
s_mov_b64 s[28:29], s[12:13]
@T0
""" + ''.join(WF[:NW1]) + """@T1
s_setprio %d
s_branch L_setup
L_g1b:
s_mov_b64 vcc, -1
@T2
""" % opt('p2', 0) + ''.join(WF[NW1:]) + dfl('s_mov_b32 m0, s3\ns_nop 0') + """@T3
s_branch L_x
L_g1r:
""" + XFL + ''.join(LW) + dfl('s_add_u32 m0, s3, {FD}\ns_nop 0') + """@U2
s_branch L_q%d
""" % XPOS)
def g1x(k):
    if k == XPOS: return 's_barrier\ns_cmp_ge_u32 s36, 4\ns_cbranch_scc1 L_g1b\n@U0\n' + XFL + '@U2\nL_q%d:\n' % k
    return ''
A('L_setup:')
if SPIN: A('s_mov_b32 s101, 100000')
if STAMP: B('s_load_dwordx2 s[96:97], s[0:1], 64\ns_mov_b32 s98, 0x200000\ns_mov_b32 s99, 0x00020000')
B('''
s_lshl_b32 s10, s36, 2
v_mov_b32 v{vFg}, s10
s_xor_b32 s10, s10, 4
v_mov_b32 v{tA}, {OOBL}
v_mov_b32 v{tB}, s10
v_cmp_eq_u32 vcc, 0, v{tL}
v_and_b32 v{vF8}, 7, v{tL}
v_mov_b32 v{vOne}, 1
v_lshlrev_b32 v{vF8}, 2, v{vF8}
v_cndmask_b32 v{vPw}, v{tA}, v{tB}, vcc
''')
def lit4(a): return '0x%08x' % sum((x & 255) << (8 * i) for i, x in enumerate(a))
t = '''
v_and_b32 v{tN}, 31, v{tL}
v_lshrrev_b32 v{tH}, 5, v{tL}            ; hf
v_bfe_u32 v{tG}, v{tL}, 4, 1
v_bfe_u32 v{tR}, v{tL}, 2, 2
v_and_b32 v{tCc}, 3, v{tL}               ; also i
v_bfe_u32 v{tJ}, v{tL}, 3, 2             ; j
v_bfe_u32 v{tHh}, v{tL}, 2, 1            ; h
s_xor_b32 s48, s36, 1
s_mul_i32 s48, s48, {RS}
s_add_u32 s48, s48, {L_R}
v_cmp_eq_u32 s[4:5], 1, v{tHh}
v_cmp_eq_u32 s[6:7], 3, v{tJ}
v_add_u32 v{tA}, 4, v{tJ}
v_add_u32 v{tB}, 3, v{tCc}
v_cmp_lt_u32 s[8:9], 31, v{tL}
v_cndmask_b32 v{rA}, v{tJ}, v{tCc}, s[4:5]
v_cndmask_b32 v{cA}, v{tCc}, v{tA}, s[4:5]
v_cndmask_b32 v{rB}, v{tA}, v{tB}, s[4:5]
v_cndmask_b32 v{cB}, v{tB}, v{tJ}, s[4:5]
v_cndmask_b32 v{rA}, v{rA}, 3, s[6:7]
v_cndmask_b32 v{cA}, v{cA}, 3, s[6:7]
v_cndmask_b32 v{rB}, v{rB}, 3, s[6:7]
v_cndmask_b32 v{cB}, v{cB}, 3, s[6:7]
s_mul_i32 s10, s37, 6
s_cmp_eq_u32 s37, 1
s_cselect_b32 s11, -1, 1
v_mad_i32_i24 v{tA}, v{cA}, s11, s10
'''
t = t[:t.index('v_mad_i32_i24')]
def absx(d, s): return 'v_sub_u32 v%d, 6, v%d\nv_cndmask_b32 v%d, v%d, v%d, s[12:13]\n' % (d, s, d, s, d)
t += 's_cselect_b64 s[12:13], -1, 0\n'
def xcol(d, c, tmp):
    return 'v_mul_u32_u24 v%d, 208, v%d\nv_cmp_lt_u32 vcc, 3, v%d\nv_add_u32 v%d, %d, v%d\nv_cndmask_b32 v%d, v%d, v%d, vcc\n' % (d, c, c, tmp, PBO - 832, d, d, d, tmp)
t += absx(U0, cA) + absx(U1, rA) + absx(U2, cB) + absx(U3, rB)
t += xcol(tA, U0, tB) + '''v_mul_u32_u24 v{tB}, {RP}, v{rA}
v_lshl_add_u32 v{tA}, v{tH}, 4, v{tA}
v_add3_u32 v{vXA}, v{tA}, v{tB}, s47
''' + xcol(tA, U2, tB) + '''v_sub_u32 v{tB}, 6, v{rB}
v_mul_u32_u24 v{tB}, {RP}, v{tB}
v_lshl_add_u32 v{tA}, v{tH}, 4, v{tA}
v_mov_b32 v{tC}, s47
v_mov_b32 v{tD}, s48
v_cmp_eq_u32 vcc, 3, v{rB}
v_add_u32 v{tA}, v{tA}, v{tB}
v_cndmask_b32 v{tC}, v{tD}, v{tC}, vcc
v_add_u32 v{vXB}, v{tA}, v{tC}
; W bases
v_lshrrev_b32 v{tA}, 1, v{tCc}
v_lshl_add_u32 v{tA}, v{tG}, 1, v{tA}    ; g
v_lshlrev_b32 v{tA}, 3, v{tA}            ; 8 g
v_and_b32 v{tB}, 1, v{tCc}
v_lshlrev_b32 v{tB}, 3, v{tB}            ; 8 sub
v_and_b32 v{tC}, 1, v{tR}
v_mul_u32_u24 v{tC}, 576, v{tC}
s_mul_i32 s10, s37, 48
v_add3_u32 v{tB}, v{tB}, v{tC}, s10      ; 8 sub + 576 parity + 48 p
v_lshrrev_b32 v{tC}, 1, v{tR}
v_lshl_add_u32 v{tC}, v{tH}, 2, v{tC}
v_lshlrev_b32 v{tC}, 7, v{tC}
v_add_u32 v{tC}, {L_W}, v{tC}            ; common
'''
TG = [[12, 13, 14, 0], [1, 2, 6, 7], [8, 18, 19, 20], [24, 25, 26, 27], [30, 31, 32, 33]]
for k, gq in enumerate(TG):
    t += '''s_mov_b32 s10, %s
v_lshrrev_b32 v{tD}, v{tA}, s10
v_and_b32 v{tD}, 0xff, v{tD}
v_lshl_add_u32 v{tD}, v{tD}, 4, v{tB}
v_lshrrev_b32 v{tE}, 7, v{tD}
v_and_b32 v{tD}, 127, v{tD}
v_mul_u32_u24 v{tE}, 6144, v{tE}
v_add3_u32 v%d, v{tD}, v{tE}, v{tC}
''' % (lit4(gq), vW1 + k)
t += '''v_lshl_add_u32 v{tC}, v{tH}, 2, v{tR}    ; 4 hf + tR
v_mul_u32_u24 v{tC}, 192, v{tC}
v_and_b32 v{tA}, 1, v{tCc}
v_lshl_add_u32 v{tC}, v{tA}, 5, v{tC}
v_lshl_add_u32 v{tC}, v{tG}, 4, v{tC}
v_lshrrev_b32 v{tA}, 1, v{tCc}
v_lshl_add_u32 v{tC}, v{tA}, 3, v{tC}
s_mul_i32 s10, s37, 4608
s_add_u32 s10, s10, {L_WO}
v_add_u32 v{vTo}, s10, v{tC}
s_mul_i32 s14, s37, 9216
s_sub_u32 s14, 4608, s14              ; partner heads - own heads
; bias bases
s_mul_i32 s10, s37, {HS}
s_add_u32 s10, s10, %d
v_mov_b32 v{tK}, {BPB}
v_mul_u32_u24 v{tF}, %d, v{tH}
v_cndmask_b32 v{U4}, v{tK}, 16, s[8:9]   ; row multiplier
v_cndmask_b32 v{U5}, 16, v{tK}, s[8:9]   ; col multiplier
v_add_u32 v{tF}, s10, v{tF}              ; base, key tile A
v_mul_u32_u24 v{tK}, %d, v{tH}
v_mul_u32_u24 v{tA}, v{rA}, v{U4}
v_mul_u32_u24 v{tB}, v{rB}, v{U4}
v_sub_u32 v{tK}, %d, v{tK}               ; key tile B - A
v_mad_u32_u24 v{tA}, v{cA}, v{U5}, v{tA}
v_mad_u32_u24 v{tB}, v{cB}, v{U5}, v{tB}
v_sub_u32 v{vBAA}, v{tF}, v{tA}
v_sub_u32 v{vBBA}, v{tF}, v{tB}
v_add_u32 v{vBAB}, v{vBAA}, v{tK}
v_add_u32 v{vBBB}, v{vBBA}, v{tK}
''' % (L_BI + 6 * BPB + 96, TSZ + 4 * BPB, 8 * BPB, 4 * BPB + 48)
t += '''; store offsets
s_mul_i32 s10, s40, 7
s_add_u32 s10, s10, 3
s_mul_i32 s11, s39, 7
s_add_u32 s11, s11, 3
v_add_u32 v{tA}, s10, v{U0}
v_add_u32 v{tB}, s11, v{U1}
v_subrev_u32 v{tC}, 224, v{tA}
v_subrev_u32 v{tD}, 224, v{tB}
v_min_u32 v{tA}, v{tA}, v{tC}
v_min_u32 v{tB}, v{tB}, v{tD}
v_mul_u32_u24 v{tA}, 192, v{tA}
v_mul_u32_u24 v{tB}, 43008, v{tB}
v_mov_b32 v{tO}, 0x80000000
s_sub_u32 s10, 24, s37
v_add_u32 v{tA}, v{tA}, v{tB}
v_cmp_lt_u32 vcc, s10, v{tN}             ; invalid for the store
v_lshrrev_b32 v{tD}, 4, v{tL}
v_lshlrev_b32 v{tD}, 4, v{tD}
v_cndmask_b32 v{tA}, v{tA}, v{tO}, vcc
s_mov_b32 s35, 0x00020000
s_mov_b32 s34, 9633792
v_mov_b32 v{tB}, v{tA}
s_nop 1
v_permlane16_swap_b32 v{tA}, v{tB}
v_add_u32 v{vSoA}, v{tA}, v{tD}
v_add_u32 v{vSoB}, v{tB}, v{tD}
; O exchange
v_lshl_add_u32 v{vOw}, v{tL}, 3, s47
v_xor_b32 v{tA}, 3, v{tL}
v_lshlrev_b32 v{tB}, 4, v{tJ}
v_sub_u32 v{tA}, v{tA}, v{tB}
v_add_u32 v{tA}, 16, v{tA}               ; j -> 2 - j, i -> 3 - i
v_lshlrev_b32 v{tB}, 5, v{tH}
v_add_u32 v{tB}, 24, v{tB}
v_cndmask_b32 v{tA}, v{tA}, v{tB}, s[6:7]
v_lshl_add_u32 v{vOr}, v{tA}, 3, s48
v_mov_b32 v{Zr}, 0
; aug slots
s_cmp_eq_u32 s39, 31
s_cselect_b32 s10, 3, 99
s_cmp_eq_u32 s40, 31
s_cselect_b32 s11, 3, 99
s_mov_b32 s56, 0x3f80
s_mov_b32 s57, 0
s_mov_b32 s58, 0xffff
s_mov_b32 s59, 0
v_mov_b32 v{tE}, 0x%04x%04x
v_cmp_lt_u32 vcc, 24, v{tN}
v_mov_b32 v{tA}, 0xff00
v_mov_b32 v{tF}, 0x3f80
v_cndmask_b32 v{tK}, 0, v{tA}, vcc       ; invalid key
''' % (MK, MK)
for X in range(2):
    c_, r_ = (U0, U1) if X == 0 else (U2, U3)
    q, k = QB[X] + 6, KB[X] + 6
    t += '''v_cmp_lt_u32 vcc, s10, v%d
v_cmp_lt_u32 s[12:13], s11, v%d
v_cndmask_b32 v{tA}, 0, 32, vcc
v_cndmask_b32 v{tB}, 0, 16, s[12:13]
v_add_u32 v{tA}, v{tA}, v{tB}
v_lshlrev_b64 v[{U4}:{U5}], v{tA}, s[56:57]
v_lshlrev_b64 v[{U6}:{U7}], v{tA}, s[58:59]
v_cndmask_b32 v%d, v{U4}, v{tF}, s[8:9]
v_cndmask_b32 v%d, v{U5}, 0, s[8:9]
v_bfi_b32 v{U6}, v{U6}, 0, v{tE}
v_bfi_b32 v{U7}, v{U7}, 0, v{tE}
v_cndmask_b32 v%d, v{U6}, v{tK}, s[8:9]
v_cndmask_b32 v%d, v{U7}, 0, s[8:9]
''' % (r_, c_, q, q + 1, k, k + 1)
t += 'v_mov_b32 v%d, v%d\nv_mov_b32 v%d, v%d\n' % (QB[2] + 6, QB[1] + 6, QB[2] + 7, QB[1] + 7)
for i in range(14): t += 'v_mov_b32 v%d, 0x3f803f80\n' % (VF + i)
t += """s_mov_b32 s56, 0x00ffffff
s_mov_b32 s57, 0x00ffffff
s_mov_b32 s58, -1
s_mov_b32 s59, 0
"""
MARK = ['; begin', '; W bases', '; bias bases', '; store offsets', '; O exchange', '; aug slots', '; end']
t = '; begin\n' + t + '; end\n'
for k, mk in enumerate(MARK): t = t.replace(mk + '\n', g1x(k) + mk + '\n')
B(t)
stamp()
B('s_setprio %d\ns_cmp_ge_u32 s36, 4\ns_cbranch_scc1 L_main\ns_setprio %d\n' % ((opt('g1p', 0), opt('g0p', 3)) if opt('fixp', 0) else (0, 2)) + BIAS + 'L_main:\n')
B('s_mov_b32 s27, 0x00020000\ns_mov_b32 s26, 18432\ns_mul_i32 s15, s36, 2304\ns_add_u32 s52, s15, {L_WO}\ns_lshl2_add_u32 s53, s36, {FO}')
if BAR:
    B('s_waitcnt vmcnt(0)\ns_barrier')
if QS: A('s_mov_b32 s3, %s' % f32(C_EXP))
A('v_mov_b32 v%d, 0\nv_mov_b32 v%d, 0' % (SB[0][0] + 12, SB[1][0] + 12))
A('s_waitcnt lgkmcnt(0)'); A('s_nop 1')
stamp()

slow = []
TAGS = {}
N = []
PH = [0]
def ph(k): PH[0] = k if not opt('noph', 0) else 0
LM = [None]
def n(t, tag=None, **k):
    X = Node(t, **k); N.append(X); X.ph = PH[0]
    if X.kind == 'mfma':
        if LM[0] is not None and not opt('nolm', 0): X.after.append((LM[0], 32))
        LM[0] = X
    if tag: TAGS[id(X)] = tag
    return X
_tmp = [0]
CHK = {}
def check(name, off, cmpi, rd=(), after=(), bias=0, ad=vFg):
    tmp = (T0, T1)[_tmp[0] % 2]; _tmp[0] += 1
    off = 'v%d offset:%d' % (ad, off)
    n(F('ds_read_b32 v%d, %s' % (tmp, off)), rd=rd, wr=['f' + name], after=after, bias=bias)
    C = n('%s, v%d' % (cmpi, tmp), wr=['vcc'], bias=bias)
    Bn = n('s_cbranch_vccnz L_z%s\nL_k%s:' % (name, name), rd=['vcc', 'f' + name], wr=[name], after=[(C, 24)], bias=bias, tag=name)
    CHK[id(Bn)] = (name, off, cmpi, tmp)
def sp(c): return 'f' + c
def ev(name, off, **k): check(name, off, 'v_cmp_eq_u32 vcc, 0', **k)
SG = {}
def sig(k, rd): SG[k] = n(F('ds_add_u32 v{vPw}, v{vOne} offset:{FC}'), rd=list(rd) + ['sig'], wr=['sig', 'sg%d' % k], bias=opt('nb%d' % (2 * k - 4), 0))
def chk(k, rd=()): check('c%d' % k, FC, 'v_cmp_gt_u32 vcc, %d' % (k - 1), rd=rd, after=[(SG[k], opt('sync%d' % k, SYNC))])
def tr(dst, addr, off, **k): n('ds_read_b64_tr_b16 %s, v%d offset:%d' % (qn(dst, 2), addr, off), **k)
def r128(dst, addr, off, **k): n('ds_read_b128 %s, v%d offset:%d' % (qn(dst, 4), addr, off), **k)
def r64(dst, addr, off, **k): n('ds_read_b64 %s, v%d offset:%d' % (qn(dst, 2), addr, off), **k)
def w64(src, addr, off, **k): n('ds_write_b64 v%d, %s offset:%d' % (addr, qn(src, 2), off), **k)

UEV = ['ea', 'ea', 'ed', 'ed', 'ed']
ORDU = [0, 1, 3, 2, 4]
SL = {(U, s): (6 * ORDU.index(U) + s) % 8 for U in range(5) for s in range(6)}
PRE = set()
def wtr(U, s, first=False):
    if (U, s) in PRE: return
    PRE.add((U, s))
    wb = WB + 4 * SL[(U, s)]
    for u in range(2): tr(wb + 2 * u, vW1 + U, s * 1024 + u * 256, rd=[sp(UEV[U])], wr=(['w%d%d' % (s, u)] if first else []))
def unit(U, X, a, ks=range(6), rd=()):
    for s in ks:
        wb = WB + 4 * SL[(U, s)]
        wtr(U, s)
        x = XF[X] + 4 * s
        nm = 'u%d%s' % (U, 'AB'[X])
        n(m32(a, x, wb, a if s else None) if U >= 3 else m32(a, wb, x, a if s else None), rd=[UEV[U]] + list(rd), wr=[nm + str(s)], tag=(nm if s == 5 else 'st' if (U, X, s) == (0, 0, 0) else None))
def cvg(a, dsts, rd=()):
    for g, (d, isq) in enumerate(dsts):
        if isq and QS:
            for i in range(4): n('v_mul_f32 v%d, s3, v%d' % (a + 4 * g + i, a + 4 * g + i))
        for j in range(2): n(pk(d + j, a + 4 * g + 2 * j, a + 4 * g + 2 * j + 1))
def Qa(X): return QB[0] if X == 0 else QB[2]
def Qb(X): return QB[2] if X == 0 else QB[1]
def cvT(U, X, a):
    k = KB[X]
    if U == 0: cvg(a, [(k, 0), (k + 2, 0), (k + 4, 0), (Qa(X), 1)])
    if U == 1: cvg(a, [(Qa(X) + 2, 1), (Qa(X) + 4, 1), (Qb(X), 1), (Qb(X) + 2, 1)])
    if U == 2: cvg(a, [(Qb(X) + 4, 1), (k, 0), (k + 2, 0), (k + 4, 0)])
VD = [[VF, VF + 1, VF + 2, VF + 3, VF + 8, VF + 9, VF + 12], [VF + 4, VF + 5, VF + 6, VF + 7, VF + 10, VF + 11]]
def cvV(X, a):
    d = VD[X]
    for lo, hi in ((0, 4), (4, len(d))):
        n('s_mov_b64 exec, s[56:57]\n' + '\n'.join(pk(d[j], a + 2 * j, a + 2 * j + 1) for j in range(lo, hi)) + '\ns_mov_b64 exec, -1')
def smm(k):
    hb, X = k >> 1, 1 - (k & 1)
    SA_, SB_ = SB[k % 2]
    q = (Qb if hb else Qa)(X)
    o = hb * 2 * HS
    BD = [['u0B0', 'u0B2', 'u0B4', 'u0B5', 'u1B0', 'u1B2', 'u1B4'], ['u1A%d' % M0X] * 7, [], []][k] if XO1 else []
    bd = lambda j: ['ea'] + BD[j:j + 1]
    for j in range(3): r128(SA_ + 4 * j, vBAA + 2 * X, o + j * BPB, rd=bd(j))
    n('s_mov_b64 exec, s[58:59]\nds_read_b32 v%d, v%d offset:%d\ns_mov_b64 exec, -1' % (SA_ + 12, vBAA + 2 * X, o + 3 * BPB + 12), rd=bd(3) + [SA_ + 12])
    for j in range(3): r128(SB_ + 4 * j, vBAA + 2 * X + 1, o + j * BPB, rd=bd(4 + j))
    n(m32(SA_, KB[0], q, SA_)); n(m32(SA_, KB[0] + 4, q + 4, SA_))
    n(m32(SB_, KB[1], q, SB_)); n(m32(SB_, KB[1] + 4, q + 4, SB_), tag='s%d' % k, wr=['s%d' % k])
LE = [None]; NE = [0]
def softmax(k):
    SA_, SB_ = SB[k % 2]
    m, tm = SB_ + 12, SB_ + 13
    regs = [SA_ + i for i in range(13)] + [SB_ + i for i in range(12)]
    n('v_max3_f32 v%d, v%d, v%d, v%d' % (m, regs[0], regs[1], regs[2]))
    for i in range(3, 25, 2): n('v_max3_f32 v%d, v%d, v%d, v%d' % (m, m, regs[i], regs[i + 1]))
    n('v_mov_b32 v%d, v%d' % (tm, m))
    n('v_permlane32_swap_b32 v%d, v%d' % (tm, m))
    n('v_max_f32 v%d, v%d, v%d' % (m, m, tm), tag=('m%d' % k if QS else None))
    if not QS: n('v_mul_f32 v%d, %s, v%d' % (m, f32(-C_EXP), m), tag='m%d' % k)
    def ex(r):
        n('v_sub_f32 v%d, v%d, v%d' % (r, r, m) if QS else 'v_fmamk_f32 v%d, v%d, %s, v%d' % (r, r, f32(C_EXP), m))
        NE[0] += 1
        LE[0] = n('v_exp_f32 v%d, v%d' % (r, r), after=([(LE[0], 12)] if LE[0] else []), bias=EBIAS, wr=(['X%d' % k] if NE[0] % 25 == opt('edx', 20) else []))
    pairs = [(SA_ + j, SA_ + 2 * j) for j in range(6)] + [(Pc, SA_ + 12)] + [(SA_ + 8 + j, SB_ + 2 * j) for j in range(4)] + [(SA_ + 6, SB_ + 8), (SA_ + 7, SB_ + 10)]
    for i, (d, r) in enumerate(pairs):
        ex(r)
        if d != Pc: ex(r + 1)
        n(pk(d, r, r + 1 if d != Pc else None), tag=('e%d' % k if i == 12 else None), wr=(['e%d' % k] if i == opt('sxi', 1) else []))
def pv(k):
    P, o = SB[k % 2]
    n(m32(o, VF, P, None))
    n(m8(o, VF + 12, Pc, o))
    n(m32(o, VF + 4, P + 8, o))
    n(m32(o, VF + 8, P + 4, o), tag='p%d' % k, wr=['p%d' % k])
def norm(k):
    P, o = SB[k % 2]
    nb = opt('nb%d' % k, 0)
    n('v_rcp_f32 v%d, v%d' % (o + 13, o + 12), bias=nb)
    for i in range(12): n('v_mul_f32 v%d, v%d, v%d' % (o + i, o + i, o + 13), bias=nb)
    d = o if not k & 1 else (O1, O2)[k >> 1] + 6
    for j in range(6): n(pk(d + j, o + 2 * j, o + 2 * j + 1), tag=('o%d' % k if j == 5 else None), bias=nb)
def send(k, rd=()):
    o = SB[k % 2][1]
    for j in range(3): w64(o + 2 * j, vOw, (3 * RP if k == 0 else 0) + j * 512, rd=rd, wr=['ow%d%d' % (k, j)], bias=opt('nb%d' % k, 0))
    sig(2 + k // 2, ['ow%d%d' % (k, j) for j in range(3)])
def recv(k):
    c = 'c%d' % (2 + k // 2)
    for j in range(3): r64((O1, O2)[k // 2] + 2 * j, vOr, (3 * RP if k == 0 else 0) + j * 512, rd=[sp(c)])
OAC = [ACC[0], AC3, ACC[1]]
WOB = [WB + 24, WB + 28, QB[0], QB[0] + 4, QB[1], QB[1] + 4, WB, WB + 4, WB + 8, WB + 12, WB + 16, WB + 20, 66, 70]
KSEQ = {0: [0, 1, 2], 1: [2, 0, 1]}[opt('ord6', 1)] + [3, 4, 5]
def wofr(ks, T):
    wb = WOB[(3 * KSEQ.index(ks) + T) % 14]
    for u in range(2):
        g = 2 * (ks % 3) + u
        tr(wb + 2 * u, vTp if g < 3 else vTo, (ks // 3) * 9216 + (g % 3) * 1536 + T * 64, rd=[sp('eo') if KSEQ.index(ks) < 2 else 'eo', 'tp'])
    return wb
def outk(ks, rd=()):
    for T in range(3):
        wb = wofr(ks, T)
        n(m32(OAC[T], wb, O1 + 4 * ks, OAC[T] if KSEQ.index(ks) else None), rd=['eo'] + list(rd), wr=['K%d%d' % (ks, T)], tag=('k%d' % ks if T == 2 else None))
def outk2(k0, k1):
    for T in range(3):
        for ks in (k0, k1):
            wb = wofr(ks, T)
            n(m32(OAC[T], wb, O1 + 4 * ks, OAC[T]), rd=['eo'], tag=('k%d' % ks if T == 2 else None), bias=(2 - T) * opt('tb', 40))

a0, a1 = ACC
ev('ea', FA, ad=vF8)
for s in range(6): wtr(0, s, True)
n('s_waitcnt vmcnt(6)\ns_cmp_ge_u32 s36, 4\ns_cbranch_scc1 L_xw\ns_waitcnt vmcnt(0)\nL_xw:', rd=['ea'] + ['w%d%d' % (s, u) for s in range(6) for u in range(2)], wr=['x'], tag='x')
for s in range(6): r128(XF[0] + 4 * s, vXA, s * 32, rd=['x'], wr=(['xr'] if s == 5 else []))
ev('c1', FX, rd=['xr'])
XO1 = opt('xo1', 1)
if XO1:
    unit(0, 0, a0, range(1))
    for s in range(6):
        if s in (2, 4): unit(0, 0, a0, range(s // 2, s // 2 + 1))
        r128(XF[1] + 4 * s, vXB, s * 32, rd=[sp('c1'), 'u0A%d' % (s // 2)])
    unit(0, 0, a0, range(3, 6)); cvT(0, 0, a0)
else:
    for s in range(6): r128(XF[1] + 4 * s, vXB, s * 32, rd=[sp('c1')])
    unit(0, 0, a0); cvT(0, 0, a0)
unit(0, 1, a1, rd=['c1']); cvT(0, 1, a1)
n(F('v_add_u32 v{vTp}, s14, v{vTo}'), rd=['ea', 'u0B0'], wr=['tp'])
unit(1, 1, a0); cvT(1, 1, a0)
M0X = opt('m0x', 3)
WOA = {0: ['s0', 's0', 's0'], 1: ['u0B2', 'u1B0', 'u1B4']}[opt('woa', 0)]
unit(1, 0, a1, range(M0X))
smm(0)
ph(opt('wop', 1))
n(F('s_mov_b32 m0, s52\ns_nop 0\nbuffer_load_dwordx4 v{v16}, s[24:27], s15 offen lds'), rd=['x', WOA[0]], wr=['ld'])
n(F('buffer_load_dwordx4 v{v16}, s[24:27], s15 offen offset:1024 lds'), rd=['ld', WOA[1]], wr=['ld'])
n(F('s_mov_b64 exec, 0xffff\nbuffer_load_dwordx4 v{v16}, s[24:27], s15 offen offset:2048 lds\n' + dfl('s_mov_b32 m0, s53\ns_nop 0')), rd=['ld', WOA[2]], wr=['ld'])
ph(1); softmax(0)
ph(2)
for j in range(2): n('v_mov_b32 v%d, v%d' % (QB[2] + 6 + j, QB[0] + 6 + j))
ev('ed', FD - 16, ad=vF8, rd=['X0'])
unit(1, 0, a1, range(M0X, 6)); cvT(1, 0, a1)
if opt('m2o', 0): smm(1)
unit(3, 0, a0); cvV(0, a0)
unit(3, 1, a1); cvV(1, a1)
if not opt('m2o', 0): smm(1)
pv(0)
ph(3); softmax(1); norm(0)
ph(opt('sp0', 4)); send(0)
ph(4)
unit(2, 1, a0); cvT(2, 1, a0)
unit(2, 0, a1); cvT(2, 0, a1)
pv(1)
smm(2)
unit(4, 0, a0); cvV(0, a0)
ph(5); softmax(2); norm(1)
ph(6)
C2B = opt('c2b', 3)
if C2B < 0: chk(2, rd=['u4A%d' % opt('c2a', 0)]); recv(0)
ev('eo', FO, ad=vF8, rd=['u4A%d' % opt('eoa', 1)])
unit(4, 1, a1); cvV(1, a1)
if 6 > C2B >= 0: chk(2, rd=['u4B%d' % C2B]); recv(0)
smm(3)
if C2B == 6: chk(2, rd=['s3']); recv(0)
pv(2)
if C2B == 7: chk(2, rd=['p2']); recv(0)
for ks in KSEQ[:3]: outk(ks, ['c2'] if ks < 2 else [])
ph(7); norm(2)
ph(opt('sp2', 7)); send(2, ['c2'])
ph(7); softmax(3)
ph(8)
chk(3); recv(2)
pv(3); outk(3, ['c3']); norm(3)
outk2(4, 5)
for T in range(3):
    a = OAC[T]
    for j in range(8): n(pk(a + j, a + 2 * j, a + 2 * j + 1))
    for j in range(4): n('v_permlane16_swap_b32 v%d, v%d' % (a + j, a + 4 + j))
    n('buffer_store_dwordx4 %s, v%d, s[32:35], 0 offen offset:%d%s' % (qn(a, 4), vSoA, T * 64, STM))
    n('buffer_store_dwordx4 %s, v%d, s[32:35], 0 offen offset:%d%s' % (qn(a + 4, 4), vSoB, T * 64, STM), tag='z%d' % T)

STAGS = (sys.argv[sys.argv.index('--tags') + 1] if '--tags' in sys.argv else 'st,s0,e0,p0,o0,u4A,o1,k2,e3').split(',')
cur = [0]; ORD = []
FIXP = opt('fixp', 0)
def setp(p):
    if FIXP: return
    if p != cur[0]: A('s_setprio %d' % p); cur[0] = p
def emit(N, name):
    out, t = schedule(N, name)
    seen = []
    rng = {}; cph = {}
    import collections
    mtot = collections.Counter(X.ph for tt, X in out if X.kind == 'mfma'); mdone = collections.Counter()
    m_ = 99
    for tt, X in reversed(out):
        if not (X.kind == 'dsr' or X.ins[0].op.startswith(('v_cmp', 's_cbranch'))): m_ = min(m_, X.ph)
        cph[id(X)] = m_
    for tt, X in out:
        p_ = cph[id(X)]; rng[p_] = (rng.get(p_, (tt, tt))[0], tt)
    for tt, X in out:
        p_ = cph[id(X)]
        a_, b_ = rng[p_]
        if p_ & 1: hi = 1 if tt > a_ + (b_ - a_) * opt('fv', 30) / 100 else 0
        else: hi = 1 if mdone[p_] >= mtot[p_] * opt('fm', 50) / 100 else 0
        if X.kind == 'mfma': mdone[p_] += 1
        if (p_ & 1) and X.ins[0].kind in ('dsr', 'dsw') and opt('lp', 1): setp(3)
        elif (p_ & 1) and cur[0] == 3 and X.ins[0].kind in ('salu', 'wait') and len(X.ins) == 1: pass
        else: setp((PB_ if p_ & 1 else PM) + hi)
        for I in X.ins: A.add(I)
        seen.append(X)
        if id(X) in CHK:
            nm, off, cmpi, tmp = CHK[id(X)]
            rr = [Y.lines[0] for Y in seen if ('f' + nm) in Y.rd and Y.kind == 'dsr']
            slow.append(F('L_z%s:\n%sds_read_b32 v%d, %s\ns_waitcnt lgkmcnt(0)\n%s, v%d\ns_cbranch_vccnz L_z%s\nL_y%s:\n' % (nm, ('s_sub_u32 s101, s101, 1\ns_cmp_lt_i32 s101, 0\ns_cbranch_scc1 L_y%s\n' % nm) if SPIN else '', tmp, off, cmpi, tmp, nm, nm)) + ''.join(l + '\n' for l in rr) + ('s_waitcnt lgkmcnt(0)\n' if rr else '') + 's_branch L_k%s' % nm)
        tg = TAGS.get(id(X))
        if tg: print('  %s@%d' % (tg, tt), end=''); A('; TAG %s' % tg)
        if tg in STAGS: stamp(); ORD.append('%s@%d' % (tg, tt))
    print()
emit(N, 'main')
open(sys.argv[1] + '.tags', 'w').write(' '.join(ORD))
if STAMP:
    A('s_waitcnt vmcnt(0)')
    stamp(); stamp(True)
    A('s_lshl_b32 s100, s2, 4\ns_add_u32 s100, s100, s36\ns_lshl_b32 s100, s100, 6')
    A('s_waitcnt lgkmcnt(0)')
    A('v_mbcnt_lo_u32_b32 v17, -1, 0\nv_mbcnt_hi_u32_b32 v17, -1, v17\nv_lshlrev_b32 v17, 2, v17')
    for k in range(15 if PST else _st[0]):
        A('v_writelane_b32 v16, s%d, %d' % (64 + 2 * k, k))
    A('s_mov_b64 exec, 0xffff\nbuffer_store_dword v16, v17, s[96:99], s100 offen')
A('s_endpgm')
A.rawmode = True
for s_ in slow: A(s_)
A.rawmode = False
A('L_end:')
A('s_endpgm')
body = A.finalize()

hdr = open('standalone__window_attn_swin__vision.s.ref').read().split('\n')
hdr = [l for l in hdr if l.startswith(';') and '@launch' not in l]
out = '\n'.join(hdr) + '\n; @launch grid=(256,1,1) block=(512,1,1) lds=%d\n' % L_SIZE
out += '''.amdgcn_target "amdgcn-amd-amdhsa--gfx950"
.text
.globl standalone__window_attn_swin__vision_kernel
.p2align 8
.type standalone__window_attn_swin__vision_kernel,@function
standalone__window_attn_swin__vision_kernel:
''' + body + '''.section .rodata,"a"
.p2align 6
.amdhsa_kernel standalone__window_attn_swin__vision_kernel
  .amdhsa_next_free_vgpr 256
  .amdhsa_next_free_sgpr 102
  .amdhsa_accum_offset 256
  .amdhsa_group_segment_fixed_size 0
  .amdhsa_kernarg_size 72
  .amdhsa_user_sgpr_count 2
  .amdhsa_user_sgpr_kernarg_segment_ptr 1
  .amdhsa_system_sgpr_workgroup_id_x 1
.end_amdhsa_kernel
'''
dst = sys.argv[1]
open(dst, 'w').write(out)
print('instructions:', len(body.split('\n')), 'nop states:', A.nnops)
```

```python
import struct, sys, math
import asmlib
from asmlib import Asm, Node
import sched3 as sched2
from sched3 import schedule
def f32(x): return '0x%08x' % struct.unpack('<I', struct.pack('<f', x))[0]
SCALE = 24 ** -0.5
C_EXP = SCALE * math.log2(math.e)
INV = 24 ** 0.5
STAMP = '--stamp' in sys.argv
XNT = ' nt'
STM = {0: ' nt', 1: ' sc0 sc1 nt', 2: ' sc1', 3: ' sc0 sc1', 4: ' sc1 nt'}[int(([a.split('=')[1] for a in sys.argv if a.startswith('--stm=')] + ['0'])[0])]
def opt(name, dflt):
    for a in sys.argv:
        if a.startswith('--%s=' % name): return int(a.split('=')[1])
    return dflt
sched2.PRM.update(nxp=1000, nxd=100, lam=60, vl=1, vh=4, vt=0, vt1=12)
for k_ in ('lat', 'lam', 'boost', 'stc', 'soft', 'php', 'nxp', 'nxd', 'vl', 'vh', 'vt', 'vt1'): sched2.PRM[k_] = opt(k_, sched2.PRM[k_])
asmlib.SAFE = sched2.PRM['safe'] = opt('safe', 150)
PM = opt('pm', 2)
PB_ = opt('pb', 0)
SYNC = opt('sync', 60)
EBIAS = opt('ebias', 4)
BAR = opt('bar', 0)
QS = opt('qs', 0)
SPIN = opt('spin', 0)
if QS: INV = math.log2(math.e)
MK = 0xc310 if QS else 0xc3f5

BPB = 160
TSZ = 2080; HS = 4160
L_BI = 512
L_RP = L_BI + 4 * HS
L_W = 21504
assert L_RP + 4096 <= L_W and L_W % 256 == 0
L_WO = L_W + 55296
L_R = L_WO + 18432
RP, PBO, RS = 1616, 912, 6432
L_SIZE = opt('lds', 163840)
assert L_R + 8 * RS <= L_SIZE
ZF = L_W // 8

OOBL = 0x28000
FA, FD, FO, FX, FC = 0, 32, 48, 96, 128

(vW1, vW2, vW3, vWa, vWb, vTo, vBAA, vBAB, vBBA, vBBB, vSoA, vSoB, vFg, vPw, vF8, vOne, vSp, vOw, vOr, v16, vXA, vXB, Pc, Zr, T0, T1) = range(26)
vTp = vW1
XF = [26, 50]
WB = 74
ACC = [106, 122]
QB = [138, 146, 154]
KB = [162, 170]
VF = 178
SB = [[192, 208], [224, 240]]
O1, O2, AC3 = 26, 38, 50
tL, tN, tH, tG, tR, tCc, tX, tA, tB, tC, tD, tE, tO, tP, tRp, tJ, tHh, tI, rA, cA, rB, cB, tF, tK = range(192, 216)
Z = 216
PL = 220
U0 = 228
def qn(b, n): return 'v[%d:%d]' % (b, b + n - 1)

A = Asm()
_st = [0]
def stamp(real=False):
    if not STAMP: return
    k = _st[0]; _st[0] += 1
    assert k < 16
    A('%s s[%d:%d]' % ('s_memrealtime' if real else 's_memtime', 64 + 2 * k, 65 + 2 * k))
class D(dict):
    def __missing__(self, k): return globals()[k]
def F(t): return t.format_map(D())
PST = opt('pst', 0) if STAMP else 0
G0L = opt('g0l', 0); G1L = opt('g1l', 0); S0 = opt('s0', 0); S1 = opt('s1', 0); HM = opt('hm', 255)
STG = G0L or G1L or S0 or S1
def slp(n): return 's_sleep %d\n' % n if n else ''
def B(t):
    t = F(t)
    t = t.replace('@LATE', 's_and_b32 s100, s2, %d\ns_bcnt1_i32_b32 s100, s100\ns_and_b32 s100, s100, 1' % HM if STG else '')
    for k in range(4): t = t.replace('@T%d' % k, 's_memtime s[%d:%d]' % (86 + 2 * k, 87 + 2 * k) if PST == 1 else '')
    for k in range(4): t = t.replace('@U%d' % k, 's_memtime s[%d:%d]' % (86 + 2 * k, 87 + 2 * k) if PST == 2 else '')
    A(t)
def m32(d, a, b, c): return 'v_mfma_f32_32x32x16_bf16 %s, %s, %s, %s' % (qn(d, 16), qn(a, 4), qn(b, 4), qn(c, 16) if c is not None else '0')
def m8(d, a, b, c): return 'v_mfma_f32_32x32x8_bf16 %s, %s, %s, %s' % (qn(d, 16), qn(a, 2), qn(b, 2), qn(c, 16))
def pk(d, a, b_): return 'v_cvt_pk_bf16_f32 v%d, v%d, %s' % (d, a, 'v%d' % b_ if b_ is not None else '0')
Z1, Z2, Z3 = Z + 1, Z + 2, Z + 3
PL1, PL2, PL3, PL4, PL5 = range(PL + 1, PL + 6)
U1, U2, U3, U4, U5, U6, U7 = range(U0 + 1, U0 + 8)

B('''
s_cmp_ge_u32 s2, 256
s_cbranch_scc1 L_end
''')
stamp(True); stamp()
ZF = L_W // 4
def xa(r, e=1): return ('s_mov_b64 exec, s[62:63]\n' if e else '') + 's_add_u32 m0, s47, %d\ns_add_u32 s54, s45, s%d\nbuffer_load_dwordx4 v{tX}, s[16:19], s54 offen{XNT} lds\n' % (r * RP, 41 + r)
def xb(r, e=1): return ('s_mov_b64 exec, s[60:61]\n' if e else '') + 's_add_u32 m0, s47, %d\ns_add_u32 s54, s46, s%d\nbuffer_load_dwordx4 v{tX}, s[16:19], s54 offen{XNT} lds\n' % (r * RP + PBO, 41 + r)
X0 = 's_mov_b64 exec, -1\n'
def wd(sl, sg, ks, dc=0):
    return 's_add_u32 m0, s%d, %d\ns_add_u32 s54, s%d, %d\nbuffer_load_dwordx4 v{tP}, s[20:23], s54 offen lds\n' % (sl, ks * 1024 + dc * 6144, sg, ks * 9216 + dc * 128)
def dfl(m0): return 's_mov_b64 exec, 1\n%s\nbuffer_load_dword off, s[28:31], 0 lds\ns_mov_b64 exec, -1\n' % m0
XO = opt('xo', 0)
XL = [xa(0), xa(1, 0), xa(2, 0), xa(3, 0), xb(0), xb(1, 0), xb(2, 0), xb(3, 0)] if XO == 0 else [f(r) for r in range(4) for f in (xa, xb)]
WV = """v_lshrrev_b32 v{tB}, 3, v{tL}
v_and_b32 v{tC}, 7, v{tL}
v_mul_u32_u24 v{tB}, 1152, v{tB}
v_lshl_add_u32 v{tP}, v{tC}, 4, v{tB}    ; W voffset
s_mov_b32 s23, 0x00020000
s_mov_b32 s22, 55296
s_and_b32 s51, s36, 3
s_lshl_b32 s49, s51, 10
s_add_u32 s49, s49, {L_W}             ; ks = w & 3
s_mul_i32 s50, s51, 9216
s_and_b32 s51, s38, 1                 ; i & 1
s_mul_i32 s52, s51, 9216
s_lshl_b32 s51, s51, 10
s_add_u32 s51, s51, {L_W}             ; ks = 4 + (i & 1)
s_mul_i32 s53, s37, 24576
s_add_u32 s53, s53, s51
s_lshl_b32 s55, s37, 9
s_add_u32 s55, s55, s52
"""
XPOS = opt('xpos', 3)
NW1 = opt('nw1', 5)
B("""
s_load_dwordx2 s[20:21], s[0:1], 8
s_load_dwordx2 s[16:17], s[0:1], 0
v_readfirstlane_b32 s36, v0
s_load_dwordx2 s[28:29], s[0:1], 24
s_load_dwordx2 s[12:13], s[0:1], 32
v_and_b32 v{tL}, 63, v0                  ; lane
s_lshr_b32 s39, s2, 3                 ; wy
s_lshr_b32 s36, s36, 6                ; wave
s_xor_b32 s36, s36, 4
s_and_b32 s37, s36, 1                 ; p
s_lshr_b32 s38, s36, 1                ; i
v_lshlrev_b32 v{v16}, 4, v{tL}
s_mul_i32 s47, s36, {RS}
s_add_u32 s47, s47, {L_R}             ; own region
s_mov_b32 s31, 0x00020000
s_mov_b32 s30, 1352
@LATE
s_cmp_ge_u32 s36, 4
s_cselect_b64 vcc, -1, 0
s_cbranch_scc1 L_g1
s_setprio %d
s_lshl_b32 s49, s36, 3
s_lshr_b32 s49, 0x20000027, s49
s_and_b32 s49, s49, 0xff
s_lshl_b32 s49, s49, 4                ; first rpb byte staged by this wave
s_lshl_b32 s50, s36, 10
s_add_u32 s50, s50, {L_RP}
L_x:
v_mul_u32_u24 v{tX}, 5, v{tL}
s_and_b32 s40, s2, 7
s_lshl2_add_u32 s40, s40, s38         ; wx
v_lshrrev_b32 v{tX}, 6, v{tX}            ; tau
s_mul_i32 s41, s39, %d
s_add_u32 s41, s41, %d                ; row 0 of the window
s_add_u32 s44, s41, %d                ; row 3
v_sub_u32 v{tX}, v{tL}, v{tX}
s_add_u32 s42, s41, %d                ; row 6
s_cmp_eq_u32 s39, 31
s_cselect_b32 s42, %d, s42
v_lshlrev_b32 v{tX}, 4, v{tX}
s_cmp_eq_u32 s37, 1
s_cselect_b32 s41, s42, s41           ; row' 0
s_mov_b32 s43, %d
s_cselect_b32 s43, s43, %d             ; step
s_add_u32 s42, s41, s43
s_add_u32 s43, s42, s43
s_mul_i32 s45, s40, 1344
s_add_u32 s45, s45, 576
s_add_u32 s46, s45, 768
s_cmp_eq_u32 s40, 31
s_cselect_b32 s46, 0, s46
s_mov_b32 s19, 0x00020000
s_mov_b32 s18, 9633792
s_mov_b32 s62, -1
s_mov_b32 s63, 0xfffff                ; 52 lanes
s_mov_b32 s60, -1
s_mov_b32 s61, 0x7f                   ; 39 lanes
s_mov_b32 m0, s50
s_waitcnt lgkmcnt(0)
""" % (opt('pp', 2), 7 * 43008, 3 * 43008, 3 * 43008, 6 * 43008, 2 * 43008, -43008 & 0xffffffff, 43008))
stamp()
XFL = 's_xor_b32 s54, s36, 1\n' + dfl('s_lshl2_add_u32 m0, s54, {FX}\ns_nop 0')
LW = [wd(49, 50, 0, 3), wd(49, 50, 0, 7), wd(49, 50, 0, 8), wd(53, 55, 4, 3), wd(51, 52, 4, 8)]
LWF = ''.join(LW) + dfl('s_add_u32 m0, s3, {FD}\ns_nop 0')
S4 = f32(INV)
cv = ''
QD = [U0, U0 + 4, U0 + 8, U0 + 12]
for e in range(4):
    for d in range(2):
        cv += 'v_lshlrev_b32 v%d, 16, v%d\nv_and_b32 v%d, 0xffff0000, v%d\n' % (QD[2 * d] + 3 - e, PL + 2 * e + d, QD[2 * d + 1] + e, PL + 2 * e + d)
def pm(h): return ''.join('v_pk_mul_f32 v[%d:%d], v[%d:%d], s[8:9]\n' % (QD[h] + 2 * k, QD[h] + 2 * k + 1, QD[h] + 2 * k, QD[h] + 2 * k + 1) for k in range(2))
def bw(h): return 'ds_write_b128 v%d, v[%d:%d] offset:%d\n' % (tA if h & 1 else tB, QD[h], QD[h] + 3, L_BI + h * HS)
B("""s_cbranch_vccnz L_x1
buffer_load_dwordx4 v{v16}, s[28:31], s49 offen lds
s_mov_b64 s[28:29], s[12:13]
s_load_dwordx2 s[24:25], s[0:1], 16
L_x1:
""" + ('s_cmp_eq_u32 s100, 0\ns_cbranch_scc1 L_x2\ns_cbranch_vccz %s\n' % ('L_x3' if G0L else 'L_x2') + (LWF if G1L else '') + slp(S1) + 'L_x2:\n' if STG else '') + ''.join(XL) + X0 + """L_x3:
@U1
s_load_dwordx2 s[32:33], s[0:1], 48
s_cbranch_vccnz L_g1r
s_branch L_setup
""")
BIAS = """s_lshl_b32 s54, s37, 6
s_add_u32 s54, s54, 1
v_add_u32 v{tJ}, s54, v{tL}              ; L
s_cmp_eq_u32 s38, 1                   ; V table
s_movk_i32 s8, 205
s_cmovk_i32 s8, 158
s_cselect_b32 s9, 0, -184
s_cselect_b32 s10, 0, 1248
v_mul_u32_u24 v{tI}, s8, v{tJ}
s_sub_u32 s50, s50, s49
s_add_u32 s10, s10, s50
v_lshl_add_u32 v{tC}, v{tJ}, 3, s10
v_lshrrev_b32 v{tI}, 11, v{tI}           ; L / 10 | L / 13
s_cmp_eq_u32 s38, 1
s_cselect_b32 s8, 160, 16
v_mad_i32_i24 v{tC}, v{tI}, s9, v{tC}    ; staged source
s_movk_i32 s9, -320
s_cmovk_i32 s9, -2064
s_movk_i32 s10, 1920
s_cmovk_i32 s10, {TSZ}
s_movk_i32 s11, 2064
s_cmovk_i32 s11, %d
v_mul_u32_u24 v{tA}, s8, v{tJ}
@T0
s_waitcnt vmcnt(9)
@T1
s_cbranch_scc1 L_bv
ds_read2_b64 v[{PL}:{PL3}], v{tC} offset1:1
ds_read2_b64 v[{PL4}:{PL7}], v{tC} offset0:2 offset1:3
s_branch L_bw
L_bv:
ds_read2_b64 v[{PL}:{PL3}], v{tC} offset1:13
ds_read2_b64 v[{PL4}:{PL7}], v{tC} offset0:26 offset1:39
L_bw:
v_mad_i32_i24 v{tA}, v{tI}, s9, v{tA}
s_mov_b32 s8, %s
s_mov_b32 s9, %s
v_add_u32 v{tA}, s10, v{tA}              ; odd heads
v_sub_u32 v{tB}, s11, v{tA}              ; even heads (mirrored)
s_waitcnt lgkmcnt(0)
""" % (2064 + 2 * TSZ, S4, S4) + cv + pm(0) + pm(1) + bw(0) + pm(2) + bw(1) + pm(3) + bw(2) + bw(3) + """s_mov_b64 exec, 1
ds_write_b32 v{vFg}, v{vOne} offset:%d
s_mov_b64 exec, -1
@T2
""" % (FA + 16)
PL7 = PL + 7
WF = [wd(49, 50, 0, 1), wd(49, 50, 0, 0), wd(49, 50, 0, 4), wd(49, 50, 0, 2), wd(49, 50, 0, 5), wd(49, 50, 0, 6), wd(53, 55, 4, 0), wd(53, 55, 4, 1), wd(53, 55, 4, 2)]
PFC = ("""s_cmp_lg_u32 s36, 4
s_cbranch_scc1 L_npf
s_mul_i32 s54, s39, 2304
v_lshl_add_u32 v{tRp}, v{tL}, 7, s54
s_mov_b64 exec, 0x3ffff
s_cmp_ge_u32 s39, 24
s_cbranch_scc1 L_pf2
buffer_load_dword v{PL}, v{tRp}, s[20:23], 0 offen
s_branch L_pf3
L_pf2:
v_subrev_u32 v{tRp}, 55296, v{tRp}
buffer_load_dword v{PL}, v{tRp}, s[24:27], 0 offen
L_pf3:
s_mov_b64 exec, -1
L_npf:
""" if opt('pf', 1) else '')
PFP = opt('pfp', NW1)
if PFP: WF[PFP - 1] += PFC
else: WF[0] = PFC + WF[0]
B("""L_g1:
s_setprio %d
s_load_dwordx2 s[24:25], s[0:1], 16
v_mov_b32 v{Z}, 0
v_mov_b32 v{Z1}, 0
v_lshlrev_b32 v{tA}, 3, v{tL}
ds_write_b64 v{tA}, v[{Z}:{Z1}]
""" % opt('p1', 3) + WV + """s_and_b32 s3, s36, 3
s_lshl_b32 s3, s3, 2
s_mov_b32 s27, 0x00020000
s_mov_b32 s26, 18432
s_waitcnt lgkmcnt(0)
s_mov_b64 s[28:29], s[12:13]
@T0
""" + ''.join(WF[:NW1]) + """@T1
s_setprio %d
s_branch L_setup
L_g1b:
s_mov_b64 vcc, -1
@T2
""" % opt('p2', 0) + ''.join(WF[NW1:]) + dfl('s_mov_b32 m0, s3\ns_nop 0') + """@T3
s_branch L_x
L_g1r:
""" + XFL + ('s_cmp_lg_u32 s100, 0\ns_cbranch_scc1 L_q%d\n' % XPOS if G1L else '') + LWF + """@U2
s_branch L_q%d
""" % XPOS)
def g1x(k):
    if k == XPOS: return 's_barrier\ns_cmp_ge_u32 s36, 4\ns_cbranch_scc1 L_g1b\n@U0\n' + ('s_cmp_eq_u32 s100, 0\ns_cbranch_scc1 L_x4\n' + slp(S0) + ''.join(XL) + X0 + 'L_x4:\n' if G0L else '') + XFL + '@U2\nL_q%d:\n' % k
    return ''
A('L_setup:')
if SPIN: A('s_mov_b32 s101, 100000')
if STAMP: B('s_load_dwordx2 s[96:97], s[0:1], 64\ns_mov_b32 s98, 0x200000\ns_mov_b32 s99, 0x00020000')
B('''
s_lshl_b32 s10, s36, 2
v_mov_b32 v{vFg}, s10
s_xor_b32 s10, s10, 4
v_mov_b32 v{tA}, {OOBL}
v_mov_b32 v{tB}, s10
v_cmp_eq_u32 vcc, 0, v{tL}
v_and_b32 v{vF8}, 7, v{tL}
v_mov_b32 v{vOne}, 1
v_lshlrev_b32 v{vF8}, 2, v{vF8}
v_cndmask_b32 v{vPw}, v{tA}, v{tB}, vcc
''')
def lit4(a): return '0x%08x' % sum((x & 255) << (8 * i) for i, x in enumerate(a))
t = '''
v_and_b32 v{tN}, 31, v{tL}
v_lshrrev_b32 v{tH}, 5, v{tL}            ; hf
v_bfe_u32 v{tG}, v{tL}, 4, 1
v_bfe_u32 v{tR}, v{tL}, 2, 2
v_and_b32 v{tCc}, 3, v{tL}               ; also i
v_bfe_u32 v{tJ}, v{tL}, 3, 2             ; j
v_bfe_u32 v{tHh}, v{tL}, 2, 1            ; h
s_xor_b32 s48, s36, 1
s_mul_i32 s48, s48, {RS}
s_add_u32 s48, s48, {L_R}
v_cmp_eq_u32 s[4:5], 1, v{tHh}
v_cmp_eq_u32 s[6:7], 3, v{tJ}
v_add_u32 v{tA}, 4, v{tJ}
v_add_u32 v{tB}, 3, v{tCc}
v_cmp_lt_u32 s[8:9], 31, v{tL}
v_cndmask_b32 v{rA}, v{tJ}, v{tCc}, s[4:5]
v_cndmask_b32 v{cA}, v{tCc}, v{tA}, s[4:5]
v_cndmask_b32 v{rB}, v{tA}, v{tB}, s[4:5]
v_cndmask_b32 v{cB}, v{tB}, v{tJ}, s[4:5]
v_cndmask_b32 v{rA}, v{rA}, 3, s[6:7]
v_cndmask_b32 v{cA}, v{cA}, 3, s[6:7]
v_cndmask_b32 v{rB}, v{rB}, 3, s[6:7]
v_cndmask_b32 v{cB}, v{cB}, 3, s[6:7]
s_mul_i32 s10, s37, 6
s_cmp_eq_u32 s37, 1
s_cselect_b32 s11, -1, 1
v_mad_i32_i24 v{tA}, v{cA}, s11, s10
'''
t = t[:t.index('v_mad_i32_i24')]
def absx(d, s): return 'v_sub_u32 v%d, 6, v%d\nv_cndmask_b32 v%d, v%d, v%d, s[12:13]\n' % (d, s, d, s, d)
t += 's_cselect_b64 s[12:13], -1, 0\n'
def xcol(d, c, tmp):
    return 'v_mul_u32_u24 v%d, 208, v%d\nv_cmp_lt_u32 vcc, 3, v%d\nv_add_u32 v%d, %d, v%d\nv_cndmask_b32 v%d, v%d, v%d, vcc\n' % (d, c, c, tmp, PBO - 832, d, d, d, tmp)
t += absx(U0, cA) + absx(U1, rA) + absx(U2, cB) + absx(U3, rB)
t += xcol(tA, U0, tB) + '''v_mul_u32_u24 v{tB}, {RP}, v{rA}
v_lshl_add_u32 v{tA}, v{tH}, 4, v{tA}
v_add3_u32 v{vXA}, v{tA}, v{tB}, s47
''' + xcol(tA, U2, tB) + '''v_sub_u32 v{tB}, 6, v{rB}
v_mul_u32_u24 v{tB}, {RP}, v{tB}
v_lshl_add_u32 v{tA}, v{tH}, 4, v{tA}
v_mov_b32 v{tC}, s47
v_mov_b32 v{tD}, s48
v_cmp_eq_u32 vcc, 3, v{rB}
v_add_u32 v{tA}, v{tA}, v{tB}
v_cndmask_b32 v{tC}, v{tD}, v{tC}, vcc
v_add_u32 v{vXB}, v{tA}, v{tC}
; W bases
v_lshrrev_b32 v{tA}, 1, v{tCc}
v_lshl_add_u32 v{tA}, v{tG}, 1, v{tA}    ; g
v_lshlrev_b32 v{tA}, 3, v{tA}            ; 8 g
v_and_b32 v{tB}, 1, v{tCc}
v_lshlrev_b32 v{tB}, 3, v{tB}            ; 8 sub
v_and_b32 v{tC}, 1, v{tR}
v_mul_u32_u24 v{tC}, 576, v{tC}
s_mul_i32 s10, s37, 48
v_add3_u32 v{tB}, v{tB}, v{tC}, s10      ; 8 sub + 576 parity + 48 p
v_lshrrev_b32 v{tC}, 1, v{tR}
v_lshl_add_u32 v{tC}, v{tH}, 2, v{tC}
v_lshlrev_b32 v{tC}, 7, v{tC}
v_add_u32 v{tC}, {L_W}, v{tC}            ; common
'''
TG = [[12, 13, 14, 0], [1, 2, 6, 7], [8, 18, 19, 20], [24, 25, 26, 27], [30, 31, 32, 33]]
for k, gq in enumerate(TG):
    t += '''s_mov_b32 s10, %s
v_lshrrev_b32 v{tD}, v{tA}, s10
v_and_b32 v{tD}, 0xff, v{tD}
v_lshl_add_u32 v{tD}, v{tD}, 4, v{tB}
v_lshrrev_b32 v{tE}, 7, v{tD}
v_and_b32 v{tD}, 127, v{tD}
v_mul_u32_u24 v{tE}, 6144, v{tE}
v_add3_u32 v%d, v{tD}, v{tE}, v{tC}
''' % (lit4(gq), vW1 + k)
t += '''v_lshl_add_u32 v{tC}, v{tH}, 2, v{tR}    ; 4 hf + tR
v_mul_u32_u24 v{tC}, 192, v{tC}
v_and_b32 v{tA}, 1, v{tCc}
v_lshl_add_u32 v{tC}, v{tA}, 5, v{tC}
v_lshl_add_u32 v{tC}, v{tG}, 4, v{tC}
v_lshrrev_b32 v{tA}, 1, v{tCc}
v_lshl_add_u32 v{tC}, v{tA}, 3, v{tC}
s_mul_i32 s10, s37, 4608
s_add_u32 s10, s10, {L_WO}
v_add_u32 v{vTo}, s10, v{tC}
s_mul_i32 s14, s37, 9216
s_sub_u32 s14, 4608, s14              ; partner heads - own heads
; bias bases
s_mul_i32 s10, s37, {HS}
s_add_u32 s10, s10, %d
v_mov_b32 v{tK}, {BPB}
v_mul_u32_u24 v{tF}, %d, v{tH}
v_cndmask_b32 v{U4}, v{tK}, 16, s[8:9]   ; row multiplier
v_cndmask_b32 v{U5}, 16, v{tK}, s[8:9]   ; col multiplier
v_add_u32 v{tF}, s10, v{tF}              ; base, key tile A
v_mul_u32_u24 v{tK}, %d, v{tH}
v_mul_u32_u24 v{tA}, v{rA}, v{U4}
v_mul_u32_u24 v{tB}, v{rB}, v{U4}
v_sub_u32 v{tK}, %d, v{tK}               ; key tile B - A
v_mad_u32_u24 v{tA}, v{cA}, v{U5}, v{tA}
v_mad_u32_u24 v{tB}, v{cB}, v{U5}, v{tB}
v_sub_u32 v{vBAA}, v{tF}, v{tA}
v_sub_u32 v{vBBA}, v{tF}, v{tB}
v_add_u32 v{vBAB}, v{vBAA}, v{tK}
v_add_u32 v{vBBB}, v{vBBA}, v{tK}
''' % (L_BI + 6 * BPB + 96, TSZ + 4 * BPB, 8 * BPB, 4 * BPB + 48)
t += '''; store offsets
s_mul_i32 s10, s40, 7
s_add_u32 s10, s10, 3
s_mul_i32 s11, s39, 7
s_add_u32 s11, s11, 3
v_add_u32 v{tA}, s10, v{U0}
v_add_u32 v{tB}, s11, v{U1}
v_subrev_u32 v{tC}, 224, v{tA}
v_subrev_u32 v{tD}, 224, v{tB}
v_min_u32 v{tA}, v{tA}, v{tC}
v_min_u32 v{tB}, v{tB}, v{tD}
v_mul_u32_u24 v{tA}, 192, v{tA}
v_mul_u32_u24 v{tB}, 43008, v{tB}
v_mov_b32 v{tO}, 0x80000000
s_sub_u32 s10, 24, s37
v_add_u32 v{tA}, v{tA}, v{tB}
v_cmp_lt_u32 vcc, s10, v{tN}             ; invalid for the store
v_lshrrev_b32 v{tD}, 4, v{tL}
v_lshlrev_b32 v{tD}, 4, v{tD}
v_cndmask_b32 v{tA}, v{tA}, v{tO}, vcc
s_mov_b32 s35, 0x00020000
s_mov_b32 s34, 9633792
v_mov_b32 v{tB}, v{tA}
s_nop 1
v_permlane16_swap_b32 v{tA}, v{tB}
v_add_u32 v{vSoA}, v{tA}, v{tD}
v_add_u32 v{vSoB}, v{tB}, v{tD}
@STP
; O exchange
v_lshl_add_u32 v{vOw}, v{tL}, 3, s47
v_xor_b32 v{tA}, 3, v{tL}
v_lshlrev_b32 v{tB}, 4, v{tJ}
v_sub_u32 v{tA}, v{tA}, v{tB}
v_add_u32 v{tA}, 16, v{tA}               ; j -> 2 - j, i -> 3 - i
v_lshlrev_b32 v{tB}, 5, v{tH}
v_add_u32 v{tB}, 24, v{tB}
v_cndmask_b32 v{tA}, v{tA}, v{tB}, s[6:7]
v_lshl_add_u32 v{vOr}, v{tA}, 3, s48
v_mov_b32 v{Zr}, 0
; aug slots
s_cmp_eq_u32 s39, 31
s_cselect_b32 s10, 3, 99
s_cmp_eq_u32 s40, 31
s_cselect_b32 s11, 3, 99
s_mov_b32 s56, 0x3f80
s_mov_b32 s57, 0
s_mov_b32 s58, 0xffff
s_mov_b32 s59, 0
v_mov_b32 v{tE}, 0x%04x%04x
v_cmp_lt_u32 vcc, 24, v{tN}
v_mov_b32 v{tA}, 0xff00
v_mov_b32 v{tF}, 0x3f80
v_cndmask_b32 v{tK}, 0, v{tA}, vcc       ; invalid key
''' % (MK, MK)
for X in range(2):
    c_, r_ = (U0, U1) if X == 0 else (U2, U3)
    q, k = QB[X] + 6, KB[X] + 6
    t += '''v_cmp_lt_u32 vcc, s10, v%d
v_cmp_lt_u32 s[12:13], s11, v%d
v_cndmask_b32 v{tA}, 0, 32, vcc
v_cndmask_b32 v{tB}, 0, 16, s[12:13]
v_add_u32 v{tA}, v{tA}, v{tB}
v_lshlrev_b64 v[{U4}:{U5}], v{tA}, s[56:57]
v_lshlrev_b64 v[{U6}:{U7}], v{tA}, s[58:59]
v_cndmask_b32 v%d, v{U4}, v{tF}, s[8:9]
v_cndmask_b32 v%d, v{U5}, 0, s[8:9]
v_bfi_b32 v{U6}, v{U6}, 0, v{tE}
v_bfi_b32 v{U7}, v{U7}, 0, v{tE}
v_cndmask_b32 v%d, v{U6}, v{tK}, s[8:9]
v_cndmask_b32 v%d, v{U7}, 0, s[8:9]
''' % (r_, c_, q, q + 1, k, k + 1)
t += 'v_mov_b32 v%d, v%d\nv_mov_b32 v%d, v%d\n' % (QB[2] + 6, QB[1] + 6, QB[2] + 7, QB[1] + 7)
for i in range(14): t += 'v_mov_b32 v%d, 0x3f803f80\n' % (VF + i)
t += """s_mov_b32 s56, 0x00ffffff
s_mov_b32 s57, 0x00ffffff
s_mov_b32 s58, -1
s_mov_b32 s59, 0
"""
STP = opt('stp', 0)
STPC = {0: '', 2: '', 4: '', 5: '', 6: '', 7: '', 1: """s_lshl_b32 s10, s2, 3
s_add_u32 s10, s10, s36
s_mul_i32 s10, s10, 4704
v_lshl_add_u32 v{vSoA}, v{tL}, 4, s10
v_cmp_lt_u32 vcc, 48, v{tL}
v_cndmask_b32 v{vSoA}, v{vSoA}, v{tO}, vcc
v_add_u32 v{vSoB}, 784, v{vSoA}
""", 3: """s_lshl_b32 s10, s2, 3
s_add_u32 s10, s10, s36
s_mul_i32 s10, s10, 4608
v_lshl_add_u32 v{vSoA}, v{tL}, 4, s10
v_cmp_lt_u32 vcc, 47, v{tL}
v_cndmask_b32 v{vSoA}, v{vSoA}, v{tO}, vcc
v_add_u32 v{vSoB}, 768, v{vSoA}
"""}[STP]
t = t.replace('@STP\n', STPC)
MARK = ['; begin', '; W bases', '; bias bases', '; store offsets', '; O exchange', '; aug slots', '; end']
t = '; begin\n' + t + '; end\n'
for k, mk in enumerate(MARK): t = t.replace(mk + '\n', g1x(k) + mk + '\n')
B(t)
stamp()
B('s_setprio %d\ns_cmp_ge_u32 s36, 4\ns_cbranch_scc1 L_main\ns_setprio %d\n' % ((opt('g1p', 0), opt('g0p', 3)) if opt('fixp', 0) else (0, 2)) + BIAS + 'L_main:\n')
B('s_mov_b32 s27, 0x00020000\ns_mov_b32 s26, 18432\ns_mul_i32 s15, s36, 2304\ns_add_u32 s52, s15, {L_WO}\ns_lshl2_add_u32 s53, s36, {FO}' + ('\ns_lshl_b32 s100, s100, 2\ns_sub_u32 s100, s36, s100' if G1L else ''))
if BAR:
    B('s_waitcnt vmcnt(0)\ns_barrier')
if QS: A('s_mov_b32 s3, %s' % f32(C_EXP))
if opt('pkf', 0): A('s_mov_b32 s4, %s\ns_mov_b32 s5, %s' % (f32(C_EXP), f32(C_EXP)))
A('v_mov_b32 v%d, 0\nv_mov_b32 v%d, 0' % (SB[0][0] + 12, SB[1][0] + 12))
A('s_waitcnt lgkmcnt(0)'); A('s_nop 1')
stamp()

slow = []
TAGS = {}
N = []
PH = [0]
def ph(k): PH[0] = k if not opt('noph', 0) else 0
LM = [None]
def n(t, tag=None, **k):
    X = Node(t, **k); N.append(X); X.ph = PH[0]
    if X.kind == 'mfma':
        if LM[0] is not None and not opt('nolm', 0): X.after.append((LM[0], 32))
        LM[0] = X
    if tag: TAGS[id(X)] = tag
    return X
_tmp = [0]
CHK = {}
def check(name, off, cmpi, rd=(), after=(), bias=0, ad=vFg):
    tmp = (T0, T1)[_tmp[0] % 2]; _tmp[0] += 1
    off = 'v%d offset:%d' % (ad, off)
    n(F('ds_read_b32 v%d, %s' % (tmp, off)), rd=rd, wr=['f' + name], after=after, bias=bias)
    C = n('%s, v%d' % (cmpi, tmp), wr=['vcc'], bias=bias)
    Bn = n('s_cbranch_vccnz L_z%s\nL_k%s:' % (name, name), rd=['vcc', 'f' + name], wr=[name], after=[(C, 24)], bias=bias, tag=name)
    CHK[id(Bn)] = (name, off, cmpi, tmp)
def sp(c): return 'f' + c
def ev(name, off, **k): check(name, off, 'v_cmp_eq_u32 vcc, 0', **k)
SG = {}
def sig(k, rd): SG[k] = n(F('ds_add_u32 v{vPw}, v{vOne} offset:{FC}'), rd=list(rd) + ['sig'], wr=['sig', 'sg%d' % k], bias=opt('nb%d' % (2 * k - 4), 0))
def chk(k, rd=()): check('c%d' % k, FC, 'v_cmp_gt_u32 vcc, %d' % (k - 1), rd=rd, after=[(SG[k], opt('sync%d' % k, SYNC))])
def tr(dst, addr, off, **k): n('ds_read_b64_tr_b16 %s, v%d offset:%d' % (qn(dst, 2), addr, off), **k)
def r128(dst, addr, off, **k): n('ds_read_b128 %s, v%d offset:%d' % (qn(dst, 4), addr, off), **k)
def r64(dst, addr, off, **k): n('ds_read_b64 %s, v%d offset:%d' % (qn(dst, 2), addr, off), **k)
def w64(src, addr, off, **k): n('ds_write_b64 v%d, %s offset:%d' % (addr, qn(src, 2), off), **k)

UEV = ['ea', 'ea', 'ed', 'ed', 'ed']
ORDU = [0, 1, 3, 2, 4]
SL = {(U, s): (6 * ORDU.index(U) + s) % 8 for U in range(5) for s in range(6)}
PRE = set()
def wtr(U, s, first=False):
    if (U, s) in PRE: return
    PRE.add((U, s))
    wb = WB + 4 * SL[(U, s)]
    for u in range(2): tr(wb + 2 * u, vW1 + U, s * 1024 + u * 256, rd=[sp(UEV[U])], wr=(['w%d%d' % (s, u)] if first else []))
def unit(U, X, a, ks=range(6), rd=()):
    for s in ks:
        wb = WB + 4 * SL[(U, s)]
        wtr(U, s)
        x = XF[X] + 4 * s
        nm = 'u%d%s' % (U, 'AB'[X])
        n(m32(a, x, wb, a if s else None) if U >= 3 else m32(a, wb, x, a if s else None), rd=[UEV[U]] + list(rd), wr=[nm + str(s)], tag=(nm if s == 5 else 'st' if (U, X, s) == (0, 0, 0) else None))
def cvg(a, dsts, rd=()):
    for g, (d, isq) in enumerate(dsts):
        if isq and QS:
            for i in range(4): n('v_mul_f32 v%d, s3, v%d' % (a + 4 * g + i, a + 4 * g + i))
        for j in range(2): n(pk(d + j, a + 4 * g + 2 * j, a + 4 * g + 2 * j + 1))
def Qa(X): return QB[0] if X == 0 else QB[2]
def Qb(X): return QB[2] if X == 0 else QB[1]
def cvT(U, X, a):
    k = KB[X]
    if U == 0: cvg(a, [(k, 0), (k + 2, 0), (k + 4, 0), (Qa(X), 1)])
    if U == 1: cvg(a, [(Qa(X) + 2, 1), (Qa(X) + 4, 1), (Qb(X), 1), (Qb(X) + 2, 1)])
    if U == 2: cvg(a, [(Qb(X) + 4, 1), (k, 0), (k + 2, 0), (k + 4, 0)])
VD = [[VF, VF + 1, VF + 2, VF + 3, VF + 8, VF + 9, VF + 12], [VF + 4, VF + 5, VF + 6, VF + 7, VF + 10, VF + 11]]
def cvV(X, a):
    d = VD[X]
    for lo, hi in ((0, 4), (4, len(d))):
        n('s_mov_b64 exec, s[56:57]\n' + '\n'.join(pk(d[j], a + 2 * j, a + 2 * j + 1) for j in range(lo, hi)) + '\ns_mov_b64 exec, -1')
def smm(k):
    hb, X = k >> 1, 1 - (k & 1)
    SA_, SB_ = SB[k % 2]
    q = (Qb if hb else Qa)(X)
    o = hb * 2 * HS
    BD = [['u0B0', 'u0B2', 'u0B4', 'u0B5', 'u1B0', 'u1B2', 'u1B4'], ['u1A%d' % M0X] * 7, [], []][k] if XO1 else []
    bd = lambda j: ['ea'] + BD[j:j + 1]
    for j in range(3): r128(SA_ + 4 * j, vBAA + 2 * X, o + j * BPB, rd=bd(j))
    n('s_mov_b64 exec, s[58:59]\nds_read_b32 v%d, v%d offset:%d\ns_mov_b64 exec, -1' % (SA_ + 12, vBAA + 2 * X, o + 3 * BPB + 12), rd=bd(3) + [SA_ + 12])
    for j in range(3): r128(SB_ + 4 * j, vBAA + 2 * X + 1, o + j * BPB, rd=bd(4 + j))
    n(m32(SA_, KB[0], q, SA_)); n(m32(SA_, KB[0] + 4, q + 4, SA_))
    n(m32(SB_, KB[1], q, SB_)); n(m32(SB_, KB[1] + 4, q + 4, SB_), tag='s%d' % k, wr=['s%d' % k])
LE = [None]; NE = [0]
def softmax(k):
    SA_, SB_ = SB[k % 2]
    m, tm = SB_ + 12, SB_ + 13
    regs = [SA_ + i for i in range(13)] + [SB_ + i for i in range(12)]
    n('v_max3_f32 v%d, v%d, v%d, v%d' % (m, regs[0], regs[1], regs[2]))
    for i in range(3, 25, 2): n('v_max3_f32 v%d, v%d, v%d, v%d' % (m, m, regs[i], regs[i + 1]))
    n('v_mov_b32 v%d, v%d' % (tm, m))
    n('v_permlane32_swap_b32 v%d, v%d' % (tm, m))
    n('v_max_f32 v%d, v%d, v%d' % (m, m, tm), tag=('m%d' % k if QS else None))
    if not QS: n('v_mul_f32 v%d, %s, v%d' % (m, f32(-C_EXP), m), tag='m%d' % k)
    def ex(r, mode=0):
        if mode == 1: n('v_pk_fma_f32 v[%d:%d], v[%d:%d], s[4:5], v[%d:%d] op_sel_hi:[1,1,0]' % (r, r + 1, r, r + 1, m, m + 1))
        if mode == 0: n('v_sub_f32 v%d, v%d, v%d' % (r, r, m) if QS else 'v_fmamk_f32 v%d, v%d, %s, v%d' % (r, r, f32(C_EXP), m))
        NE[0] += 1
        LE[0] = n('v_exp_f32 v%d, v%d' % (r, r), after=([(LE[0], 12)] if LE[0] else []), bias=EBIAS, wr=(['X%d' % k] if NE[0] % 25 == opt('edx', 20) else []))
    pairs = [(SA_ + j, SA_ + 2 * j) for j in range(6)] + [(Pc, SA_ + 12)] + [(SA_ + 8 + j, SB_ + 2 * j) for j in range(4)] + [(SA_ + 6, SB_ + 8), (SA_ + 7, SB_ + 10)]
    for i, (d, r) in enumerate(pairs):
        pkf = (opt('pkf', 0) >> k) & 1
        ex(r, 1 if pkf and d != Pc else 0)
        if d != Pc: ex(r + 1, 2 if pkf else 0)
        n(pk(d, r, r + 1 if d != Pc else None), tag=('e%d' % k if i == 12 else None), wr=(['e%d' % k] if i == opt('sxi', 1) else []))
def pv(k):
    P, o = SB[k % 2]
    n(m32(o, VF, P, None))
    n(m8(o, VF + 12, Pc, o))
    n(m32(o, VF + 4, P + 8, o))
    n(m32(o, VF + 8, P + 4, o), tag='p%d' % k, wr=['p%d' % k])
def norm(k):
    P, o = SB[k % 2]
    nb = opt('nb%d' % k, 0)
    n('v_rcp_f32 v%d, v%d' % (o + 13, o + 12), bias=nb)
    if (opt('pkn', 0) >> k) & 1:
        for i in range(0, 12, 2): n('v_pk_mul_f32 v[%d:%d], v[%d:%d], v[%d:%d] op_sel:[0,1] op_sel_hi:[1,1]' % (o + i, o + i + 1, o + i, o + i + 1, o + 12, o + 13), bias=nb)
    else:
        for i in range(12): n('v_mul_f32 v%d, v%d, v%d' % (o + i, o + i, o + 13), bias=nb)
    d = o if not k & 1 else (O1, O2)[k >> 1] + 6
    for j in range(6): n(pk(d + j, o + 2 * j, o + 2 * j + 1), tag=('o%d' % k if j == 5 else None), bias=nb)
def send(k, rd=()):
    o = SB[k % 2][1]
    for j in range(3): w64(o + 2 * j, vOw, (3 * RP if k == 0 else 0) + j * 512, rd=rd, wr=['ow%d%d' % (k, j)], bias=opt('nb%d' % k, 0))
    sig(2 + k // 2, ['ow%d%d' % (k, j) for j in range(3)])
def recv(k):
    c = 'c%d' % (2 + k // 2)
    for j in range(3): r64((O1, O2)[k // 2] + 2 * j, vOr, (3 * RP if k == 0 else 0) + j * 512, rd=[sp(c)])
OAC = [ACC[0], AC3, ACC[1]]
WOB = [WB + 24, WB + 28, QB[0], QB[0] + 4, QB[1], QB[1] + 4, WB, WB + 4, WB + 8, WB + 12, WB + 16, WB + 20, 66, 70]
KSEQ = {0: [0, 1, 2], 1: [2, 0, 1]}[opt('ord6', 1)] + [3, 4, 5]
def wofr(ks, T):
    wb = WOB[(3 * KSEQ.index(ks) + T) % 14]
    for u in range(2):
        g = 2 * (ks % 3) + u
        tr(wb + 2 * u, vTp if g < 3 else vTo, (ks // 3) * 9216 + (g % 3) * 1536 + T * 64, rd=[sp('eo') if KSEQ.index(ks) < 2 else 'eo', 'tp'])
    return wb
def outk(ks, rd=()):
    for T in range(3):
        wb = wofr(ks, T)
        n(m32(OAC[T], wb, O1 + 4 * ks, OAC[T] if KSEQ.index(ks) else None), rd=['eo'] + list(rd), wr=['K%d%d' % (ks, T)], tag=('k%d' % ks if T == 2 else None))
MT = opt('mt', 0); MM = {}
def outk2(k0, k1):
    for T in range(3):
        for ks in (k0, k1):
            wb = wofr(ks, T)
            if MT and (T, ks) != (0, 4): MM[(T, ks)] = m32(OAC[T], wb, O1 + 4 * ks, OAC[T]); continue
            n(m32(OAC[T], wb, O1 + 4 * ks, OAC[T]), rd=['eo'], tag=('k%d' % ks if T == 2 else None), bias=(2 - T) * opt('tb', 40))

a0, a1 = ACC
def fake(rd):
    for T in range(3): n('buffer_store_dwordx4 v[0:3], v%d, s[32:35], 0 offen offset:%d%s' % (vSoB, T * 64, STM), rd=rd)
ev('ea', FA, ad=vF8)
for s in range(6): wtr(0, s, True)
n('s_waitcnt vmcnt(6)\n' + ('s_cmp_ge_i32 s100, 4' if G1L else 's_cmp_ge_u32 s36, 4') + '\ns_cbranch_scc1 L_xw\ns_waitcnt vmcnt(0)\nL_xw:', rd=['ea'] + ['w%d%d' % (s, u) for s in range(6) for u in range(2)], wr=['x'], tag='x')
for s in range(6): r128(XF[0] + 4 * s, vXA, s * 32, rd=['x'], wr=(['xr'] if s == 5 else []))
ev('c1', FX, rd=['xr'])
XO1 = opt('xo1', 1)
if XO1:
    unit(0, 0, a0, range(1))
    for s in range(6):
        if s in (2, 4): unit(0, 0, a0, range(s // 2, s // 2 + 1))
        r128(XF[1] + 4 * s, vXB, s * 32, rd=[sp('c1'), 'u0A%d' % (s // 2)])
    unit(0, 0, a0, range(3, 6)); cvT(0, 0, a0)
else:
    for s in range(6): r128(XF[1] + 4 * s, vXB, s * 32, rd=[sp('c1')])
    unit(0, 0, a0); cvT(0, 0, a0)
unit(0, 1, a1, rd=['c1']); cvT(0, 1, a1)
n(F('v_add_u32 v{vTp}, s14, v{vTo}'), rd=['ea', 'u0B0'], wr=['tp'])
unit(1, 1, a0); cvT(1, 1, a0)
M0X = opt('m0x', 3)
WOA = {0: ['s0', 's0', 's0'], 1: ['u0B2', 'u1B0', 'u1B4']}[opt('woa', 0)]
unit(1, 0, a1, range(M0X))
smm(0)
ph(opt('wop', 1))
n(F('s_mov_b32 m0, s52\ns_nop 0\nbuffer_load_dwordx4 v{v16}, s[24:27], s15 offen lds'), rd=['x', WOA[0]], wr=['ld'])
n(F('buffer_load_dwordx4 v{v16}, s[24:27], s15 offen offset:1024 lds'), rd=['ld', WOA[1]], wr=['ld'])
n(F('s_mov_b64 exec, 0xffff\nbuffer_load_dwordx4 v{v16}, s[24:27], s15 offen offset:2048 lds\n' + dfl('s_mov_b32 m0, s53\ns_nop 0')), rd=['ld', WOA[2]], wr=['ld'])
ph(1); softmax(0)
ph(2)
for j in range(2): n('v_mov_b32 v%d, v%d' % (QB[2] + 6 + j, QB[0] + 6 + j))
ev('ed', FD - 16, ad=vF8, rd=['X0'])
unit(1, 0, a1, range(M0X, 6)); cvT(1, 0, a1)
if opt('m2o', 0): smm(1)
unit(3, 0, a0); cvV(0, a0)
unit(3, 1, a1); cvV(1, a1)
if not opt('m2o', 0): smm(1)
pv(0)
ph(3); softmax(1); norm(0)
if STP == 6: fake(['X1'])
ph(opt('sp0', 4)); send(0)
ph(4)
unit(2, 1, a0); cvT(2, 1, a0)
unit(2, 0, a1); cvT(2, 0, a1)
pv(1)
smm(2)
unit(4, 0, a0); cvV(0, a0)
ph(5); softmax(2); norm(1)
if STP == 4: fake(['X2'])
ph(6)
C2B = opt('c2b', 3)
if C2B < 0: chk(2, rd=['u4A%d' % opt('c2a', 0)]); recv(0)
ev('eo', FO, ad=vF8, rd=['u4A%d' % opt('eoa', 1)])
unit(4, 1, a1); cvV(1, a1)
if 6 > C2B >= 0: chk(2, rd=['u4B%d' % C2B]); recv(0)
smm(3)
if C2B == 6: chk(2, rd=['s3']); recv(0)
pv(2)
if C2B == 7: chk(2, rd=['p2']); recv(0)
for ks in KSEQ[:3]: outk(ks, ['c2'] if ks < 2 else [])
ph(7); norm(2)
ph(opt('sp2', 7)); send(2, ['c2'])
ph(7); softmax(3)
if STP == 5: fake(['X3'])
ph(8)
chk(3); recv(2)
pv(3); outk(3, ['c3']); norm(3)
outk2(4, 5)
for T in range(0 if MT else 3):
    a = OAC[T]
    tz = (2 - T) * opt('tz', 0)
    for j in range(8): n(pk(a + j, a + 2 * j, a + 2 * j + 1), bias=tz)
    for j in range(4): n('v_permlane16_swap_b32 v%d, v%d' % (a + j, a + 4 + j), bias=tz)
    TO = T * {0: 64, 1: 1568, 2: 64, 3: 1536}.get(STP, 64)
    if STP == 2: continue
    n('buffer_store_dwordx4 %s, v%d, s[32:35], 0 offen offset:%d%s' % (qn(a, 4), vSoA, TO, STM), bias=tz)
    if STP < 4: n('buffer_store_dwordx4 %s, v%d, s[32:35], 0 offen offset:%d%s' % (qn(a + 4, 4), vSoB, TO, STM), tag='z%d' % T, bias=tz)

STAGS = (sys.argv[sys.argv.index('--tags') + 1] if '--tags' in sys.argv else 'st,s0,e0,p0,o0,u4A,o1,k2,e3').split(',')
cur = [0]; ORD = []
FIXP = opt('fixp', 0)
def setp(p):
    if FIXP: return
    if p != cur[0]: A('s_setprio %d' % p); cur[0] = p
def emit(N, name):
    out, t = schedule(N, name)
    seen = []
    rng = {}; cph = {}
    import collections
    mtot = collections.Counter(X.ph for tt, X in out if X.kind == 'mfma'); mdone = collections.Counter()
    mtot[8] += len(MM) * opt('mxf', 1)
    m_ = 99
    for tt, X in reversed(out):
        if not (X.kind == 'dsr' or X.ins[0].op.startswith(('v_cmp', 's_cbranch'))): m_ = min(m_, X.ph)
        cph[id(X)] = m_
    for tt, X in out:
        p_ = cph[id(X)]; rng[p_] = (rng.get(p_, (tt, tt))[0], tt)
    for tt, X in out:
        p_ = cph[id(X)]
        a_, b_ = rng[p_]
        if p_ & 1: hi = 1 if tt > a_ + (b_ - a_) * opt('fv', 30) / 100 else 0
        else: hi = 1 if mdone[p_] >= mtot[p_] * opt('fm', 50) / 100 else 0
        if X.kind == 'mfma': mdone[p_] += 1
        if (p_ & 1) and X.ins[0].kind in ('dsr', 'dsw') and opt('lp', 1): setp(3)
        elif (p_ & 1) and cur[0] == 3 and X.ins[0].kind in ('salu', 'wait') and len(X.ins) == 1: pass
        else: setp((PB_ if p_ & 1 else PM) + hi)
        for I in X.ins: A.add(I)
        seen.append(X)
        if id(X) in CHK:
            nm, off, cmpi, tmp = CHK[id(X)]
            rr = [Y.lines[0] for Y in seen if ('f' + nm) in Y.rd and Y.kind == 'dsr']
            slow.append(F('L_z%s:\n%sds_read_b32 v%d, %s\ns_waitcnt lgkmcnt(0)\n%s, v%d\ns_cbranch_vccnz L_z%s\nL_y%s:\n' % (nm, ('s_sub_u32 s101, s101, 1\ns_cmp_lt_i32 s101, 0\ns_cbranch_scc1 L_y%s\n' % nm) if SPIN else '', tmp, off, cmpi, tmp, nm, nm)) + ''.join(l + '\n' for l in rr) + ('s_waitcnt lgkmcnt(0)\n' if rr else '') + 's_branch L_k%s' % nm)
        tg = TAGS.get(id(X))
        if tg: print('  %s@%d' % (tg, tt), end=''); A('; TAG %s' % tg)
        if tg in STAGS: stamp(); ORD.append('%s@%d' % (tg, tt))
    print()
emit(N, 'main')
if MT:
    def cv_(T): return [pk(OAC[T] + j, OAC[T] + 2 * j, OAC[T] + 2 * j + 1) for j in range(8)]
    def pm_(T): return ['v_permlane16_swap_b32 v%d, v%d' % (OAC[T] + j, OAC[T] + 4 + j) for j in range(4)]
    def st_(T): return ['buffer_store_dwordx4 %s, v%d, s[32:35], 0 offen offset:%d%s' % (qn(OAC[T] + 4 * h, 4), (vSoA, vSoB)[h], T * 64, STM) for h in range(2)] + ['@z%d' % T]
    if MT == 1:
        seq = [MM[0, 5], MM[1, 4], MM[1, 5], 's_nop 5', MM[2, 4], 's_nop 2'] + cv_(0)[:3] + [MM[2, 5], '@k5'] + cv_(0)[3:] + pm_(0) + st_(0) + cv_(1) + pm_(1) + st_(1) + cv_(2) + pm_(2) + st_(2)
    if MT == 2:
        seq = [MM[0, 5], MM[1, 4], MM[1, 5], 's_nop 5', MM[2, 4], 's_nop 2'] + cv_(0)[:3] + [MM[2, 5], '@k5'] + cv_(0)[3:] + pm_(0) + cv_(1)[:4] + st_(0)[:1] + cv_(1)[4:] + st_(0)[1:] + pm_(1) + cv_(2)[:4] + st_(1)[:1] + cv_(2)[4:] + st_(1)[1:] + pm_(2) + st_(2)
    if MT == 3:
        seq = [MM[0, 5], MM[1, 4], MM[1, 5], 's_nop 5', MM[2, 4], 's_nop 2'] + cv_(0)[:3] + [MM[2, 5], '@k5'] + cv_(0)[3:] + pm_(0) + cv_(1) + pm_(1) + st_(0) + st_(1) + cv_(2) + pm_(2) + st_(2)
    for l in seq:
        if l[0] == '@':
            A('; TAG %s' % l[1:])
            if l[1:] in STAGS: stamp(); ORD.append(l[1:])
        else: A(l)
open(sys.argv[1] + '.tags', 'w').write(' '.join(['rt0', 'start', 'karg', 'setup', 'main'] + ORD + ['end', 'rt1']))
if STAMP:
    A('s_waitcnt vmcnt(0)')
    stamp(); stamp(True)
    A('s_lshl_b32 s100, s2, 4\ns_add_u32 s100, s100, s36\ns_lshl_b32 s100, s100, 6')
    A('s_waitcnt lgkmcnt(0)')
    A('v_mbcnt_lo_u32_b32 v17, -1, 0\nv_mbcnt_hi_u32_b32 v17, -1, v17\nv_lshlrev_b32 v17, 2, v17')
    for k in range(15 if PST else _st[0]):
        A('v_writelane_b32 v16, s%d, %d' % (64 + 2 * k, k))
    A('s_mov_b64 exec, 0xffff\nbuffer_store_dword v16, v17, s[96:99], s100 offen')
A('s_endpgm')
A.rawmode = True
for s_ in slow: A(s_)
A.rawmode = False
A('L_end:')
A('s_endpgm')
body = A.finalize()

hdr = open('standalone__window_attn_swin__vision.s.ref').read().split('\n')
hdr = [l for l in hdr if l.startswith(';') and '@launch' not in l]
out = '\n'.join(hdr) + '\n; @launch grid=(256,1,1) block=(512,1,1) lds=%d\n' % L_SIZE
out += '''.amdgcn_target "amdgcn-amd-amdhsa--gfx950"
.text
.globl standalone__window_attn_swin__vision_kernel
.p2align 8
.type standalone__window_attn_swin__vision_kernel,@function
standalone__window_attn_swin__vision_kernel:
''' + body + '''.section .rodata,"a"
.p2align 6
.amdhsa_kernel standalone__window_attn_swin__vision_kernel
  .amdhsa_next_free_vgpr 256
  .amdhsa_next_free_sgpr 102
  .amdhsa_accum_offset 256
  .amdhsa_group_segment_fixed_size 0
  .amdhsa_kernarg_size 72
  .amdhsa_user_sgpr_count 2
  .amdhsa_user_sgpr_kernarg_segment_ptr 1
  .amdhsa_system_sgpr_workgroup_id_x 1
.end_amdhsa_kernel
'''
dst = sys.argv[1]
open(dst, 'w').write(out)
print('instructions:', len(body.split('\n')), 'nop states:', A.nnops)
```

```python
from asmlib import Ins, Node
COST = {'ds_write_b128': 20, 'ds_write_b64': 12, 'ds_add_u32': 8, 'ds_write_b32': 8}
PRM = dict(lat=110, lam=6, boost=200, stc=30, brc=10, soft=8, php=1)
def icost(I):
    if I.kind == 'label': return 0
    if I.kind in ('mfma', 'trans', 'perm'): return 8
    if I.kind == 'vst': return PRM['stc']
    if I.op.startswith('s_cbranch'): return PRM['brc']
    return COST.get(I.op, 4)
def isv(I): return I.kind in ('valu', 'trans', 'perm', 'rdlane')
def schedule(nodes, verbose=None):
    LAT = PRM['lat']; lam = PRM['lam']
    n = len(nodes)
    for i, N in enumerate(nodes):
        N.idx = i; N.succ = []; N.npred = 0; N.ready = 0; N.lat = 0
        N.cost = sum(icost(I) for I in N.ins)
    lastw = {}; readers = {}; edges = {}
    def edge(a, b, lat, st=0):
        if a is b: return
        k = (a.idx, b.idx); o = edges.get(k, (0, 0)); edges[k] = (max(o[0], lat), max(o[1], st))
    for N in nodes:
        for P, l_ in N.after: edge(P, N, l_)
        for r in N.rd:
            if r in lastw:
                P = lastw[r]; st = 0
                if isinstance(r, str): lat = P.cost
                elif P.kind == 'mfma':
                    I = N.ins[0]; np_ = P.ins[0].np
                    if N.kind == 'mfma' and r in I.rdC and r not in I.rdA: lat = 4 * np_
                    else: lat = 8 + 4 * (np_ + 4); st = np_ + 4
                elif P.kind == 'dsr': lat = LAT
                elif N.kind in ('mfma', 'perm'): lat = P.cost + 8; st = 2
                elif P.kind == 'trans': lat = P.cost + 4; st = 1
                else: lat = P.cost
                edge(P, N, lat, st)
        for r in N.wr:
            if r in lastw:
                P = lastw[r]
                if P.kind == 'mfma' and not (N.kind == 'mfma' and r in N.ins[0].rdC): edge(P, N, 8 + 4 * (P.ins[0].np + 4), P.ins[0].np + 4)
                elif P.kind == 'dsr': edge(P, N, LAT)
                else: edge(P, N, P.cost)
            for P in readers.get(r, ()):
                st = 0
                if P.kind == 'mfma' and N.kind in ('valu', 'trans', 'perm') and r in P.ins[0].rdC: st = P.ins[0].np - 1
                if P.kind == 'vst': st = 2
                edge(P, N, P.cost + 4 * st, st)
        for r in N.rd: readers.setdefault(r, []).append(N)
        for r in N.wr: lastw[r] = N; readers[r] = []
    for (a, b), (lat, st) in edges.items():
        nodes[a].succ.append((nodes[b], lat, st)); nodes[b].npred += 1
    for N in reversed(nodes):
        N.prio = N.cost + N.bias
        for S, lat, st in N.succ:
            if PRM['php'] and S.ph > N.ph: N.prio = max(N.prio, lat + N.bias)
            else: N.prio = max(N.prio, lat + S.prio + N.bias)
    avail = [N for N in nodes if N.npred == 0]
    t = 0; mfree = 0; lastv = -99; out = []; stall = {}; pos = 0
    lg = []
    import collections
    early = lambda N: N.kind == 'dsr' or N.ins[0].op.startswith(('v_cmp', 's_cbranch'))
    left = collections.Counter(N.ph for N in nodes if not early(N)); tot = dict(left)
    while avail:
        best = None
        cur = min(p_ for p_, c_ in left.items() if c_ > 0) if any(left.values()) else 99
        for N in avail:
            I0 = N.ins[0]
            nxt = N.ph > cur
            softok = (cur % 2 == 0 and left[cur] <= PRM['soft'] and N.kind != 'mfma')
            if PRM.get('vl') and early(N):
                if cur % 2 == 0:
                    if N.ph > cur + 2: continue
                else:
                    if N.ph > cur + 1: continue
                    lim = PRM['vt1'] if cur == 1 else PRM['vt']
                    if N.ins[0].kind == 'dsr' and id(N) not in PRM.get('free', ()) and not (tot[cur] - left[cur] <= PRM['vh'] or left[cur] <= lim): continue
            elif N.ph > cur + (1 if (early(N) or softok) else 0): continue
            w = 0
            touch = N.rd | N.wr
            for d, ti in lg:
                if d & touch: w = 4; break
            e = max(t + w, N.ready, t + 4 * max(0, N.lat - pos))
            why = 'dep'
            if N.kind == 'mfma' and mfree > e: e = mfree; why = 'pipe'
            isl = I0.kind in ('dsr', 'dsw', 'vst')
            if isl and lastv + 12 > e: e = lastv + 12; why = 'v2l'
            sl = e - t - w
            sc = N.prio - lam * sl
            if I0.kind == 'dsr' and sl == 0: sc += PRM['boost']
            if nxt: sc -= PRM.get('nxp', 1000) if not early(N) else PRM.get('nxd', 300)
            key = (sc, -N.idx)
            if best is None or key > best[0]: best = (key, N, e, w, why, sl)
        _, N, e, w, why, sl = best
        if sl: stall[why] = stall.get(why, 0) + sl
        if w:
            touch = N.rd | N.wr
            idx = max(j for j, (d, ti) in enumerate(lg) if d & touch)
            while idx + 1 < len(lg) and lg[idx + 1][1] <= e - PRM.get('safe', 150): idx += 1
            lg = lg[idx + 1:]; pos += 1
        pos = max(pos, N.lat)
        t = e
        avail.remove(N); out.append((t, N))
        if not early(N): left[N.ph] -= 1
        if N.kind == 'mfma': mfree = t + 4 * N.ins[0].np
        tt = t
        for I in N.ins:
            I.t = tt
            c = icost(I)
            if isv(I): lastv = tt + c - 4
            if I.kind == 'dsr': lg.append((set(I.wr), tt))
            if I.kind == 'dsw': lg.append((set(), tt))
            if I.kind != 'label': pos += 1
            tt += c
        for S, lat, st in N.succ:
            S.ready = max(S.ready, t + lat); S.npred -= 1
            S.lat = max(S.lat, pos + st)
            if S.npred == 0: avail.append(S)
        t += N.cost
    assert len(out) == n
    if verbose: print('%s: %d nodes, est %d cycles, stall %s' % (verbose, n, t, stall))
    return out, t
```

```python
import struct, sys, math
import asmlib
from asmlib import Asm, Node
import sched6 as sched2
from sched6 import schedule
def f32(x): return '0x%08x' % struct.unpack('<I', struct.pack('<f', x))[0]
SCALE = 24 ** -0.5
C_EXP = SCALE * math.log2(math.e)
INV = 24 ** 0.5
STAMP = '--stamp' in sys.argv
XNT = ' nt'
STM = {0: ' nt', 1: ' sc0 sc1 nt', 2: ' sc1', 3: ' sc0 sc1', 4: ' sc1 nt'}[int(([a.split('=')[1] for a in sys.argv if a.startswith('--stm=')] + ['0'])[0])]
def opt(name, dflt):
    for a in sys.argv:
        if a.startswith('--%s=' % name): return int(a.split('=')[1])
    return dflt
sched2.PRM.update(nxp=1000, nxd=100, lam=60, vl=1, vh=4, vt=0, vt1=12)
for k_ in ('lat', 'lam', 'boost', 'stc', 'soft', 'php', 'nxp', 'nxd', 'vl', 'vh', 'vt', 'vt1'): sched2.PRM[k_] = opt(k_, sched2.PRM[k_])
asmlib.SAFE = sched2.PRM['safe'] = opt('safe', 150)
PM = opt('pm', 2)
PB_ = opt('pb', 0)
SYNC = opt('sync', 60)
EBIAS = opt('ebias', 4)
BAR = opt('bar', 0)
QS = opt('qs', 0)
SPIN = opt('spin', 0)
if QS: INV = math.log2(math.e)
MK = 0xc310 if QS else 0xc3f5

BPB = 160
TSZ = 2080; HS = 4160
L_BI = 512
L_RP = L_BI + 4 * HS
L_W = 21504
assert L_RP + 4096 <= L_W and L_W % 256 == 0
L_WO = L_W + 55296
L_R = L_WO + 18432
LS = opt('ls', 0)
RP, PBO, RS = 1616, 912, (8224 if LS else 6432)
XO0 = 6688 if LS else 3 * RP
STG0 = 1536
L_SIZE = opt('lds', 163840)
assert L_R + 8 * RS <= L_SIZE
ZF = L_W // 8

OOBL = 0x28000
FA, FD, FO, FX, FC = 0, 32, 48, 96, 128

(vW1, vW2, vW3, vWa, vWb, vTo, vBAA, vBAB, vBBA, vBBB, vSoA, vSoB, vFg, vPw, vF8, vOne, vSp, vOw, vOr, v16, vXA, vXB, Pc, Zr, T0, T1) = range(26)
vTp = vW1
XF = [26, 50]
WB = 74
ACC = [106, 122]
QB = [138, 146, 154]
KB = [162, 170]
VF = 178
SB = [[192, 208], [224, 240]]
O1, O2, AC3 = 26, 38, 50
tL, tN, tH, tG, tR, tCc, tX, tA, tB, tC, tD, tE, tO, tP, tRp, tJ, tHh, tI, rA, cA, rB, cB, tF, tK = range(192, 216)
Z = 216
PL = 220
U0 = 228
def qn(b, n): return 'v[%d:%d]' % (b, b + n - 1)

A = Asm()
_st = [0]
def stamp(real=False):
    if not STAMP: return
    k = _st[0]; _st[0] += 1
    assert k < 16
    A('%s s[%d:%d]' % ('s_memrealtime' if real else 's_memtime', 64 + 2 * k, 65 + 2 * k))
class D(dict):
    def __missing__(self, k): return globals()[k]
def F(t): return t.format_map(D())
PST = opt('pst', 0) if STAMP else 0
G0L = opt('g0l', 0); G1L = opt('g1l', 0); S0 = opt('s0', 0); S1 = opt('s1', 0); HM = opt('hm', 255)
STG = G0L or G1L or S0 or S1
def slp(n): return 's_sleep %d\n' % n if n else ''
def B(t):
    t = F(t)
    t = t.replace('@LATE', 's_and_b32 s100, s2, %d\ns_bcnt1_i32_b32 s100, s100\ns_and_b32 s100, s100, 1' % HM if STG else '')
    for k in range(4): t = t.replace('@T%d' % k, 's_memtime s[%d:%d]' % (86 + 2 * k, 87 + 2 * k) if PST == 1 else '')
    for k in range(4): t = t.replace('@U%d' % k, 's_memtime s[%d:%d]' % (86 + 2 * k, 87 + 2 * k) if PST == 2 else '')
    A(t)
def m32(d, a, b, c): return 'v_mfma_f32_32x32x16_bf16 %s, %s, %s, %s' % (qn(d, 16), qn(a, 4), qn(b, 4), qn(c, 16) if c is not None else '0')
def m8(d, a, b, c): return 'v_mfma_f32_32x32x8_bf16 %s, %s, %s, %s' % (qn(d, 16), qn(a, 2), qn(b, 2), qn(c, 16))
def pk(d, a, b_): return 'v_cvt_pk_bf16_f32 v%d, v%d, %s' % (d, a, 'v%d' % b_ if b_ is not None else '0')
Z1, Z2, Z3 = Z + 1, Z + 2, Z + 3
PL1, PL2, PL3, PL4, PL5 = range(PL + 1, PL + 6)
U1, U2, U3, U4, U5, U6, U7 = range(U0 + 1, U0 + 8)

B('''
s_cmp_ge_u32 s2, 256
s_cbranch_scc1 L_end
''')
stamp(True); stamp()
ZF = L_W // 4
def xa(r, e=1): return ('s_mov_b64 exec, s[62:63]\n' if e else '') + 's_add_u32 m0, s47, %d\ns_add_u32 s54, s45, s%d\nbuffer_load_dwordx4 v{tX}, s[16:19], s54 offen{XNT} lds\n' % (r * RP, 41 + r)
def xb(r, e=1): return ('s_mov_b64 exec, s[60:61]\n' if e else '') + 's_add_u32 m0, s47, %d\ns_add_u32 s54, s46, s%d\nbuffer_load_dwordx4 v{tX}, s[16:19], s54 offen{XNT} lds\n' % (r * RP + PBO, 41 + r)
X0 = 's_mov_b64 exec, -1\n'
def wd(sl, sg, ks, dc=0):
    return 's_add_u32 m0, s%d, %d\ns_add_u32 s54, s%d, %d\nbuffer_load_dwordx4 v{tP}, s[20:23], s54 offen lds\n' % (sl, ks * 1024 + dc * 6144, sg, ks * 9216 + dc * 128)
def dfl(m0): return 's_mov_b64 exec, 1\n%s\nbuffer_load_dword off, s[28:31], 0 lds\ns_mov_b64 exec, -1\n' % m0
XO = opt('xo', 0)
XL = [xa(0), xa(1, 0), xa(2, 0), xa(3, 0), xb(0), xb(1, 0), xb(2, 0), xb(3, 0)] if XO == 0 else [f(r) for r in range(4) for f in (xa, xb)]
WV = """v_lshrrev_b32 v{tB}, 3, v{tL}
v_and_b32 v{tC}, 7, v{tL}
v_mul_u32_u24 v{tB}, 1152, v{tB}
v_lshl_add_u32 v{tP}, v{tC}, 4, v{tB}    ; W voffset
s_mov_b32 s23, 0x00020000
s_mov_b32 s22, 55296
s_and_b32 s51, s36, 3
s_lshl_b32 s49, s51, 10
s_add_u32 s49, s49, {L_W}             ; ks = w & 3
s_mul_i32 s50, s51, 9216
s_and_b32 s51, s38, 1                 ; i & 1
s_mul_i32 s52, s51, 9216
s_lshl_b32 s51, s51, 10
s_add_u32 s51, s51, {L_W}             ; ks = 4 + (i & 1)
s_mul_i32 s53, s37, 24576
s_add_u32 s53, s53, s51
s_lshl_b32 s55, s37, 9
s_add_u32 s55, s55, s52
"""
XPOS = opt('xpos', 3)
NW1 = opt('nw1', 5)
B("""
s_load_dwordx2 s[20:21], s[0:1], 8
s_load_dwordx2 s[16:17], s[0:1], 0
v_readfirstlane_b32 s36, v0
s_load_dwordx2 s[28:29], s[0:1], 24
s_load_dwordx2 s[12:13], s[0:1], 32
v_and_b32 v{tL}, 63, v0                  ; lane
s_lshr_b32 s39, s2, 3                 ; wy
s_lshr_b32 s36, s36, 6                ; wave
s_xor_b32 s36, s36, 4
s_and_b32 s37, s36, 1                 ; p
s_lshr_b32 s38, s36, 1                ; i
v_lshlrev_b32 v{v16}, 4, v{tL}
s_mul_i32 s47, s36, {RS}
s_add_u32 s47, s47, {L_R}             ; own region
s_mov_b32 s31, 0x00020000
s_mov_b32 s30, 1352
@LATE
s_cmp_ge_u32 s36, 4
s_cselect_b64 vcc, -1, 0
s_cbranch_scc1 L_g1
s_setprio %d
s_lshl_b32 s49, s36, 3
s_lshr_b32 s49, 0x20000027, s49
s_and_b32 s49, s49, 0xff
s_lshl_b32 s49, s49, 4                ; first rpb byte staged by this wave
s_lshl_b32 s50, s36, 10
s_add_u32 s50, s50, {L_RP}
L_x:
v_mul_u32_u24 v{tX}, 5, v{tL}
s_and_b32 s40, s2, 7
s_lshl2_add_u32 s40, s40, s38         ; wx
v_lshrrev_b32 v{tX}, 6, v{tX}            ; tau
s_mul_i32 s41, s39, %d
s_add_u32 s41, s41, %d                ; row 0 of the window
s_add_u32 s44, s41, %d                ; row 3
v_sub_u32 v{tX}, v{tL}, v{tX}
s_add_u32 s42, s41, %d                ; row 6
s_cmp_eq_u32 s39, 31
s_cselect_b32 s42, %d, s42
v_lshlrev_b32 v{tX}, 4, v{tX}
s_cmp_eq_u32 s37, 1
s_cselect_b32 s41, s42, s41           ; row' 0
s_mov_b32 s43, %d
s_cselect_b32 s43, s43, %d             ; step
s_add_u32 s42, s41, s43
s_add_u32 s43, s42, s43
s_mul_i32 s45, s40, 1344
s_add_u32 s45, s45, 576
s_add_u32 s46, s45, 768
s_cmp_eq_u32 s40, 31
s_cselect_b32 s46, 0, s46
s_mov_b32 s19, 0x00020000
s_mov_b32 s18, 9633792
s_mov_b32 s62, -1
s_mov_b32 s63, 0xfffff                ; 52 lanes
s_mov_b32 s60, -1
s_mov_b32 s61, 0x7f                   ; 39 lanes
s_mov_b32 m0, s50
s_waitcnt lgkmcnt(0)
""" % (opt('pp', 2), 7 * 43008, 3 * 43008, 3 * 43008, 6 * 43008, 2 * 43008, -43008 & 0xffffffff, 43008))
stamp()
XFL = 's_xor_b32 s54, s36, 1\n' + dfl('s_lshl2_add_u32 m0, s54, {FX}\ns_nop 0')
LW = [wd(49, 50, 0, 3), wd(49, 50, 0, 7), wd(49, 50, 0, 8), wd(53, 55, 4, 3), wd(51, 52, 4, 8)]
LWF = ''.join(LW) + dfl('s_add_u32 m0, s3, {FD}\ns_nop 0')
S4 = f32(INV)
cv = ''
QD = [U0, U0 + 4, U0 + 8, U0 + 12]
for e in range(4):
    for d in range(2):
        cv += 'v_lshlrev_b32 v%d, 16, v%d\nv_and_b32 v%d, 0xffff0000, v%d\n' % (QD[2 * d] + 3 - e, PL + 2 * e + d, QD[2 * d + 1] + e, PL + 2 * e + d)
def pm(h): return ''.join('v_pk_mul_f32 v[%d:%d], v[%d:%d], s[8:9]\n' % (QD[h] + 2 * k, QD[h] + 2 * k + 1, QD[h] + 2 * k, QD[h] + 2 * k + 1) for k in range(2))
def bw(h): return 'ds_write_b128 v%d, v[%d:%d] offset:%d\n' % (tA if h & 1 else tB, QD[h], QD[h] + 3, L_BI + h * HS)
B("""s_cbranch_vccnz L_x1
buffer_load_dwordx4 v{v16}, s[28:31], s49 offen lds
s_mov_b64 s[28:29], s[12:13]
s_load_dwordx2 s[24:25], s[0:1], 16
L_x1:
""" + ('s_cmp_eq_u32 s100, 0\ns_cbranch_scc1 L_x2\ns_cbranch_vccz %s\n' % ('L_x3' if G0L else 'L_x2') + (LWF if G1L else '') + slp(S1) + 'L_x2:\n' if STG else '') + ''.join(XL) + X0 + """L_x3:
@U1
s_load_dwordx2 s[32:33], s[0:1], 48
s_cbranch_vccnz L_g1r
s_branch L_setup
""")
BIAS = """s_lshl_b32 s54, s37, 6
s_add_u32 s54, s54, 1
v_add_u32 v{tJ}, s54, v{tL}              ; L
s_cmp_eq_u32 s38, 1                   ; V table
s_movk_i32 s8, 205
s_cmovk_i32 s8, 158
s_cselect_b32 s9, 0, -184
s_cselect_b32 s10, 0, 1248
v_mul_u32_u24 v{tI}, s8, v{tJ}
s_sub_u32 s50, s50, s49
s_add_u32 s10, s10, s50
v_lshl_add_u32 v{tC}, v{tJ}, 3, s10
v_lshrrev_b32 v{tI}, 11, v{tI}           ; L / 10 | L / 13
s_cmp_eq_u32 s38, 1
s_cselect_b32 s8, 160, 16
v_mad_i32_i24 v{tC}, v{tI}, s9, v{tC}    ; staged source
s_movk_i32 s9, -320
s_cmovk_i32 s9, -2064
s_movk_i32 s10, 1920
s_cmovk_i32 s10, {TSZ}
s_movk_i32 s11, 2064
s_cmovk_i32 s11, %d
v_mul_u32_u24 v{tA}, s8, v{tJ}
@T0
s_waitcnt vmcnt(9)
@T1
s_cbranch_scc1 L_bv
ds_read2_b64 v[{PL}:{PL3}], v{tC} offset1:1
ds_read2_b64 v[{PL4}:{PL7}], v{tC} offset0:2 offset1:3
s_branch L_bw
L_bv:
ds_read2_b64 v[{PL}:{PL3}], v{tC} offset1:13
ds_read2_b64 v[{PL4}:{PL7}], v{tC} offset0:26 offset1:39
L_bw:
v_mad_i32_i24 v{tA}, v{tI}, s9, v{tA}
s_mov_b32 s8, %s
s_mov_b32 s9, %s
v_add_u32 v{tA}, s10, v{tA}              ; odd heads
v_sub_u32 v{tB}, s11, v{tA}              ; even heads (mirrored)
s_waitcnt lgkmcnt(0)
""" % (2064 + 2 * TSZ, S4, S4) + cv + pm(0) + pm(1) + bw(0) + pm(2) + bw(1) + pm(3) + bw(2) + bw(3) + """s_mov_b64 exec, 1
ds_write_b32 v{vFg}, v{vOne} offset:%d
s_mov_b64 exec, -1
@T2
""" % (FA + 16)
PL7 = PL + 7
WF = [wd(49, 50, 0, 1), wd(49, 50, 0, 0), wd(49, 50, 0, 4), wd(49, 50, 0, 2), wd(49, 50, 0, 5), wd(49, 50, 0, 6), wd(53, 55, 4, 0), wd(53, 55, 4, 1), wd(53, 55, 4, 2)]
PFC = ("""s_cmp_lg_u32 s36, 4
s_cbranch_scc1 L_npf
s_mul_i32 s54, s39, 2304
v_lshl_add_u32 v{tRp}, v{tL}, 7, s54
s_mov_b64 exec, 0x3ffff
s_cmp_ge_u32 s39, 24
s_cbranch_scc1 L_pf2
buffer_load_dword v{PL}, v{tRp}, s[20:23], 0 offen
s_branch L_pf3
L_pf2:
v_subrev_u32 v{tRp}, 55296, v{tRp}
buffer_load_dword v{PL}, v{tRp}, s[24:27], 0 offen
L_pf3:
s_mov_b64 exec, -1
L_npf:
""" if opt('pf', 1) else '')
PFP = opt('pfp', NW1)
if PFP: WF[PFP - 1] += PFC
else: WF[0] = PFC + WF[0]
B("""L_g1:
s_setprio %d
s_load_dwordx2 s[24:25], s[0:1], 16
v_mov_b32 v{Z}, 0
v_mov_b32 v{Z1}, 0
v_lshlrev_b32 v{tA}, 3, v{tL}
ds_write_b64 v{tA}, v[{Z}:{Z1}]
""" % opt('p1', 3) + WV + """s_and_b32 s3, s36, 3
s_lshl_b32 s3, s3, 2
s_mov_b32 s27, 0x00020000
s_mov_b32 s26, 18432
s_waitcnt lgkmcnt(0)
s_mov_b64 s[28:29], s[12:13]
@T0
""" + ''.join(WF[:NW1]) + """@T1
s_setprio %d
s_branch L_setup
L_g1b:
s_mov_b64 vcc, -1
@T2
""" % opt('p2', 0) + ''.join(WF[NW1:]) + dfl('s_mov_b32 m0, s3\ns_nop 0') + """@T3
s_branch L_x
L_g1r:
""" + XFL + ('s_cmp_lg_u32 s100, 0\ns_cbranch_scc1 L_q%d\n' % XPOS if G1L else '') + LWF + """@U2
s_branch L_q%d
""" % XPOS)
def g1x(k):
    if k == XPOS: return 's_barrier\ns_cmp_ge_u32 s36, 4\ns_cbranch_scc1 L_g1b\n@U0\n' + ('s_cmp_eq_u32 s100, 0\ns_cbranch_scc1 L_x4\n' + slp(S0) + ''.join(XL) + X0 + 'L_x4:\n' if G0L else '') + XFL + '@U2\nL_q%d:\n' % k
    return ''
A('L_setup:')
if SPIN: A('s_mov_b32 s101, 100000')
if STAMP: B('s_load_dwordx2 s[96:97], s[0:1], 64\ns_mov_b32 s98, 0x200000\ns_mov_b32 s99, 0x00020000')
B('''
s_lshl_b32 s10, s36, 2
v_mov_b32 v{vFg}, s10
s_xor_b32 s10, s10, 4
v_mov_b32 v{tA}, {OOBL}
v_mov_b32 v{tB}, s10
v_cmp_eq_u32 vcc, 0, v{tL}
v_and_b32 v{vF8}, 7, v{tL}
v_mov_b32 v{vOne}, 1
v_lshlrev_b32 v{vF8}, 2, v{vF8}
v_cndmask_b32 v{vPw}, v{tA}, v{tB}, vcc
''')
def lit4(a): return '0x%08x' % sum((x & 255) << (8 * i) for i, x in enumerate(a))
t = '''
v_and_b32 v{tN}, 31, v{tL}
v_lshrrev_b32 v{tH}, 5, v{tL}            ; hf
v_bfe_u32 v{tG}, v{tL}, 4, 1
v_bfe_u32 v{tR}, v{tL}, 2, 2
v_and_b32 v{tCc}, 3, v{tL}               ; also i
v_bfe_u32 v{tJ}, v{tL}, 3, 2             ; j
v_bfe_u32 v{tHh}, v{tL}, 2, 1            ; h
s_xor_b32 s48, s36, 1
s_mul_i32 s48, s48, {RS}
s_add_u32 s48, s48, {L_R}
v_cmp_eq_u32 s[4:5], 1, v{tHh}
v_cmp_eq_u32 s[6:7], 3, v{tJ}
v_add_u32 v{tA}, 4, v{tJ}
v_add_u32 v{tB}, 3, v{tCc}
v_cmp_lt_u32 s[8:9], 31, v{tL}
v_cndmask_b32 v{rA}, v{tJ}, v{tCc}, s[4:5]
v_cndmask_b32 v{cA}, v{tCc}, v{tA}, s[4:5]
v_cndmask_b32 v{rB}, v{tA}, v{tB}, s[4:5]
v_cndmask_b32 v{cB}, v{tB}, v{tJ}, s[4:5]
v_cndmask_b32 v{rA}, v{rA}, 3, s[6:7]
v_cndmask_b32 v{cA}, v{cA}, 3, s[6:7]
v_cndmask_b32 v{rB}, v{rB}, 3, s[6:7]
v_cndmask_b32 v{cB}, v{cB}, 3, s[6:7]
s_mul_i32 s10, s37, 6
s_cmp_eq_u32 s37, 1
s_cselect_b32 s11, -1, 1
v_mad_i32_i24 v{tA}, v{cA}, s11, s10
'''
t = t[:t.index('v_mad_i32_i24')]
def absx(d, s): return 'v_sub_u32 v%d, 6, v%d\nv_cndmask_b32 v%d, v%d, v%d, s[12:13]\n' % (d, s, d, s, d)
t += 's_cselect_b64 s[12:13], -1, 0\n'
def xcol(d, c, tmp):
    return 'v_mul_u32_u24 v%d, 208, v%d\nv_cmp_lt_u32 vcc, 3, v%d\nv_add_u32 v%d, %d, v%d\nv_cndmask_b32 v%d, v%d, v%d, vcc\n' % (d, c, c, tmp, PBO - 832, d, d, d, tmp)
t += absx(U0, cA) + absx(U1, rA) + absx(U2, cB) + absx(U3, rB)
t += xcol(tA, U0, tB) + '''v_mul_u32_u24 v{tB}, {RP}, v{rA}
v_lshl_add_u32 v{tA}, v{tH}, 4, v{tA}
v_add3_u32 v{vXA}, v{tA}, v{tB}, s47
''' + xcol(tA, U2, tB) + '''v_sub_u32 v{tB}, 6, v{rB}
v_mul_u32_u24 v{tB}, {RP}, v{tB}
v_lshl_add_u32 v{tA}, v{tH}, 4, v{tA}
v_mov_b32 v{tC}, s47
v_mov_b32 v{tD}, s48
v_cmp_eq_u32 vcc, 3, v{rB}
v_add_u32 v{tA}, v{tA}, v{tB}
v_cndmask_b32 v{tC}, v{tD}, v{tC}, vcc
v_add_u32 v{vXB}, v{tA}, v{tC}
; W bases
v_lshrrev_b32 v{tA}, 1, v{tCc}
v_lshl_add_u32 v{tA}, v{tG}, 1, v{tA}    ; g
v_lshlrev_b32 v{tA}, 3, v{tA}            ; 8 g
v_and_b32 v{tB}, 1, v{tCc}
v_lshlrev_b32 v{tB}, 3, v{tB}            ; 8 sub
v_and_b32 v{tC}, 1, v{tR}
v_mul_u32_u24 v{tC}, 576, v{tC}
s_mul_i32 s10, s37, 48
v_add3_u32 v{tB}, v{tB}, v{tC}, s10      ; 8 sub + 576 parity + 48 p
v_lshrrev_b32 v{tC}, 1, v{tR}
v_lshl_add_u32 v{tC}, v{tH}, 2, v{tC}
v_lshlrev_b32 v{tC}, 7, v{tC}
v_add_u32 v{tC}, {L_W}, v{tC}            ; common
'''
TG = [[12, 13, 14, 0], [1, 2, 6, 7], [8, 18, 19, 20], [24, 25, 26, 27], [30, 31, 32, 33]]
for k, gq in enumerate(TG):
    t += '''s_mov_b32 s10, %s
v_lshrrev_b32 v{tD}, v{tA}, s10
v_and_b32 v{tD}, 0xff, v{tD}
v_lshl_add_u32 v{tD}, v{tD}, 4, v{tB}
v_lshrrev_b32 v{tE}, 7, v{tD}
v_and_b32 v{tD}, 127, v{tD}
v_mul_u32_u24 v{tE}, 6144, v{tE}
v_add3_u32 v%d, v{tD}, v{tE}, v{tC}
''' % (lit4(gq), vW1 + k)
t += '''v_lshl_add_u32 v{tC}, v{tH}, 2, v{tR}    ; 4 hf + tR
v_mul_u32_u24 v{tC}, 192, v{tC}
v_and_b32 v{tA}, 1, v{tCc}
v_lshl_add_u32 v{tC}, v{tA}, 5, v{tC}
v_lshl_add_u32 v{tC}, v{tG}, 4, v{tC}
v_lshrrev_b32 v{tA}, 1, v{tCc}
v_lshl_add_u32 v{tC}, v{tA}, 3, v{tC}
s_mul_i32 s10, s37, 4608
s_add_u32 s10, s10, {L_WO}
v_add_u32 v{vTo}, s10, v{tC}
s_mul_i32 s14, s37, 9216
s_sub_u32 s14, 4608, s14              ; partner heads - own heads
; bias bases
s_mul_i32 s10, s37, {HS}
s_add_u32 s10, s10, %d
v_mov_b32 v{tK}, {BPB}
v_mul_u32_u24 v{tF}, %d, v{tH}
v_cndmask_b32 v{U4}, v{tK}, 16, s[8:9]   ; row multiplier
v_cndmask_b32 v{U5}, 16, v{tK}, s[8:9]   ; col multiplier
v_add_u32 v{tF}, s10, v{tF}              ; base, key tile A
v_mul_u32_u24 v{tK}, %d, v{tH}
v_mul_u32_u24 v{tA}, v{rA}, v{U4}
v_mul_u32_u24 v{tB}, v{rB}, v{U4}
v_sub_u32 v{tK}, %d, v{tK}               ; key tile B - A
v_mad_u32_u24 v{tA}, v{cA}, v{U5}, v{tA}
v_mad_u32_u24 v{tB}, v{cB}, v{U5}, v{tB}
v_sub_u32 v{vBAA}, v{tF}, v{tA}
v_sub_u32 v{vBBA}, v{tF}, v{tB}
v_add_u32 v{vBAB}, v{vBAA}, v{tK}
v_add_u32 v{vBBB}, v{vBBA}, v{tK}
''' % (L_BI + 6 * BPB + 96, TSZ + 4 * BPB, 8 * BPB, 4 * BPB + 48)
t += '''; store offsets
s_mul_i32 s10, s40, 7
s_add_u32 s10, s10, 3
s_mul_i32 s11, s39, 7
s_add_u32 s11, s11, 3
v_add_u32 v{tA}, s10, v{U0}
v_add_u32 v{tB}, s11, v{U1}
v_subrev_u32 v{tC}, 224, v{tA}
v_subrev_u32 v{tD}, 224, v{tB}
v_min_u32 v{tA}, v{tA}, v{tC}
v_min_u32 v{tB}, v{tB}, v{tD}
v_mul_u32_u24 v{tA}, 192, v{tA}
v_mul_u32_u24 v{tB}, 43008, v{tB}
v_mov_b32 v{tO}, 0x80000000
s_sub_u32 s10, 24, s37
v_add_u32 v{tA}, v{tA}, v{tB}
v_cmp_lt_u32 vcc, s10, v{tN}             ; invalid for the store
v_lshrrev_b32 v{tD}, 4, v{tL}
v_lshlrev_b32 v{tD}, 4, v{tD}
v_cndmask_b32 v{tA}, v{tA}, v{tO}, vcc
s_mov_b32 s35, 0x00020000
s_mov_b32 s34, 9633792
@SOF
@STP
; O exchange
v_lshl_add_u32 v{vOw}, v{tL}, 3, s47
v_xor_b32 v{tA}, 3, v{tL}
v_lshlrev_b32 v{tB}, 4, v{tJ}
v_sub_u32 v{tA}, v{tA}, v{tB}
v_add_u32 v{tA}, 16, v{tA}               ; j -> 2 - j, i -> 3 - i
v_lshlrev_b32 v{tB}, 5, v{tH}
v_add_u32 v{tB}, 24, v{tB}
v_cndmask_b32 v{tA}, v{tA}, v{tB}, s[6:7]
v_lshl_add_u32 v{vOr}, v{tA}, 3, s48
v_mov_b32 v{Zr}, 0
; aug slots
s_cmp_eq_u32 s39, 31
s_cselect_b32 s10, 3, 99
s_cmp_eq_u32 s40, 31
s_cselect_b32 s11, 3, 99
s_mov_b32 s56, 0x3f80
s_mov_b32 s57, 0
s_mov_b32 s58, 0xffff
s_mov_b32 s59, 0
v_mov_b32 v{tE}, 0x%04x%04x
v_cmp_lt_u32 vcc, 24, v{tN}
v_mov_b32 v{tA}, 0xff00
v_mov_b32 v{tF}, 0x3f80
v_cndmask_b32 v{tK}, 0, v{tA}, vcc       ; invalid key
''' % (MK, MK)
for X in range(2):
    c_, r_ = (U0, U1) if X == 0 else (U2, U3)
    q, k = QB[X] + 6, KB[X] + 6
    t += '''v_cmp_lt_u32 vcc, s10, v%d
v_cmp_lt_u32 s[12:13], s11, v%d
v_cndmask_b32 v{tA}, 0, 32, vcc
v_cndmask_b32 v{tB}, 0, 16, s[12:13]
v_add_u32 v{tA}, v{tA}, v{tB}
v_lshlrev_b64 v[{U4}:{U5}], v{tA}, s[56:57]
v_lshlrev_b64 v[{U6}:{U7}], v{tA}, s[58:59]
v_cndmask_b32 v%d, v{U4}, v{tF}, s[8:9]
v_cndmask_b32 v%d, v{U5}, 0, s[8:9]
v_bfi_b32 v{U6}, v{U6}, 0, v{tE}
v_bfi_b32 v{U7}, v{U7}, 0, v{tE}
v_cndmask_b32 v%d, v{U6}, v{tK}, s[8:9]
v_cndmask_b32 v%d, v{U7}, 0, s[8:9]
''' % (r_, c_, q, q + 1, k, k + 1)
t += 'v_mov_b32 v%d, v%d\nv_mov_b32 v%d, v%d\n' % (QB[2] + 6, QB[1] + 6, QB[2] + 7, QB[1] + 7)
for i in range(14): t += 'v_mov_b32 v%d, 0x3f803f80\n' % (VF + i)
t += """s_mov_b32 s56, 0x00ffffff
s_mov_b32 s57, 0x00ffffff
s_mov_b32 s58, -1
s_mov_b32 s59, 0
"""
STP = opt('stp', 0)
STPC = {0: '', 2: '', 4: '', 5: '', 6: '', 7: '', 1: """s_lshl_b32 s10, s2, 3
s_add_u32 s10, s10, s36
s_mul_i32 s10, s10, 4704
v_lshl_add_u32 v{vSoA}, v{tL}, 4, s10
v_cmp_lt_u32 vcc, 48, v{tL}
v_cndmask_b32 v{vSoA}, v{vSoA}, v{tO}, vcc
v_add_u32 v{vSoB}, 784, v{vSoA}
""", 3: """s_lshl_b32 s10, s2, 3
s_add_u32 s10, s10, s36
s_mul_i32 s10, s10, 4608
v_lshl_add_u32 v{vSoA}, v{tL}, 4, s10
v_cmp_lt_u32 vcc, 47, v{tL}
v_cndmask_b32 v{vSoA}, v{vSoA}, v{tO}, vcc
v_add_u32 v{vSoB}, 768, v{vSoA}
"""}[STP]
t = t.replace('@STP\n', STPC)
if LS == 2:
    a_ = t.index('; store offsets\n'); b_ = t.index('@SOF\n')
    t = t[:a_] + '''; store offsets
s_mov_b32 s35, 0x00020000
s_mov_b32 s34, 9633792
v_mul_u32_u24 v{tB}, 89, v{rA}
s_and_b32 s10, s38, 1
s_xor_b32 s10, s10, 1                 ; par
s_lshl_b32 s11, s10, 3
s_sub_u32 s11, -32, s11               ; row 3, p = 0: -36 + 4 (1 - 2 par)
s_cmp_eq_u32 s37, 1
s_cselect_b32 s11, 0, s11
v_mad_u32_u24 v{tB}, v{U0}, 12, v{tB}
s_lshl_b32 s10, s10, 6
s_add_u32 s10, s10, s47
v_add_u32 v{tD}, s11, v{tB}
v_cmp_eq_u32 vcc, 3, v{rA}
s_add_u32 s10, s10, {STG0}
v_mov_b32 v{tC}, {OOBL}
v_cndmask_b32 v{tB}, v{tB}, v{tD}, vcc
v_cmp_lt_u32 vcc, 24, v{tN}
v_lshl_add_u32 v{tB}, v{tH}, 1, v{tB}
v_lshl_add_u32 v{tB}, v{tB}, 4, s10
v_cndmask_b32 v{vSoB}, v{tB}, v{tC}, vcc
''' + t[b_ + 5:]
t = t.replace('@SOF\n', '''v_lshl_add_u32 v{vSoA}, v{tH}, 5, v{tA}
v_mul_u32_u24 v{tB}, 91, v{rA}
v_mul_u32_u24 v{tD}, 12, v{U0}
s_mul_i32 s10, s37, 36
s_add_u32 s10, s10, 236               ; 272 - 36 (1 - p)
v_mad_u32_u24 v{tB}, v{U0}, 13, v{tB}
v_add_u32 v{tD}, s10, v{tD}
v_cmp_eq_u32 vcc, 3, v{rA}
s_add_u32 s10, s47, {STG0}
v_mov_b32 v{tC}, {OOBL}
v_cndmask_b32 v{tB}, v{tB}, v{tD}, vcc
v_cmp_lt_u32 vcc, 24, v{tN}
v_lshl_add_u32 v{tB}, v{tH}, 1, v{tB}
v_lshl_add_u32 v{tB}, v{tB}, 4, s10
v_cndmask_b32 v{vSoB}, v{tB}, v{tC}, vcc
''' if LS else '''v_mov_b32 v{tB}, v{tA}
s_nop 1
v_permlane16_swap_b32 v{tA}, v{tB}
v_add_u32 v{vSoA}, v{tA}, v{tD}
v_add_u32 v{vSoB}, v{tB}, v{tD}
''')
MARK = ['; begin', '; W bases', '; bias bases', '; store offsets', '; O exchange', '; aug slots', '; end']
t = '; begin\n' + t + '; end\n'
for k, mk in enumerate(MARK): t = t.replace(mk + '\n', g1x(k) + mk + '\n')
B(t)
stamp()
B('s_setprio %d\ns_cmp_ge_u32 s36, 4\ns_cbranch_scc1 L_main\ns_setprio %d\n' % ((opt('g1p', 0), opt('g0p', 3)) if opt('fixp', 0) else (0, 2)) + BIAS + 'L_main:\n')
B('s_mov_b32 s27, 0x00020000\ns_mov_b32 s26, 18432\ns_mul_i32 s15, s36, 2304\ns_add_u32 s52, s15, {L_WO}\ns_lshl2_add_u32 s53, s36, {FO}' + ('\ns_lshl_b32 s100, s100, 2\ns_sub_u32 s100, s36, s100' if G1L else ''))
if LS == 2:
    B('''s_and_b32 s10, s38, 1
s_xor_b32 s10, s10, 1                 ; par
s_lshl_b32 s11, s10, 6
s_sub_u32 s12, s45, s11
s_add_u32 s16, s41, s12               ; B(0,0)
s_add_u32 s17, s16, 1024              ; B(1,0)
s_add_u32 s19, s42, s12
s_add_u32 s18, s19, -384              ; B(1,1)
s_add_u32 s19, s19, 640               ; B(2,1)
s_add_u32 s22, s43, s12
s_add_u32 s20, s22, -768              ; B(2,2)
s_add_u32 s21, s22, 256               ; B(3,2)
s_add_u32 s22, s22, 1280              ; B(4,2)
s_lshl_b32 s13, s10, 7
s_add_u32 s13, s13, 512
s_cmp_eq_u32 s37, 1
s_cselect_b32 s13, 0, s13
s_add_u32 s23, s44, s12
s_add_u32 s23, s23, s13
s_add_u32 s23, s23, -128              ; B(4,3)
s_lshl_b32 s10, s10, 2                ; 4 par
s_lshl_b64 s[4:5], -1, s10            ; mask 0
s_add_u32 s11, s10, 20
s_lshl_b64 s[6:7], 15, s11
s_not_b64 s[6:7], s[6:7]              ; mask 1
s_add_u32 s11, s10, 44
s_lshl_b64 s[8:9], 15, s11
s_not_b64 s[8:9], s[8:9]              ; mask 2
s_sub_u32 s11, 12, s10                ; p = 0: 8 + 4 (1 - par)
s_add_u32 s12, s10, 8
s_cmp_eq_u32 s37, 1
s_cselect_b32 s11, s12, s11
s_cselect_b32 s12, 36, 48
s_bfm_b64 s[60:61], s12, s11
s_add_u32 s10, s10, 4
s_bfm_b32 s10, s10, 0
s_or_b32 s60, s60, s10                ; mask 4
''')
if BAR:
    B('s_waitcnt vmcnt(0)\ns_barrier')
if QS: A('s_mov_b32 s3, %s' % f32(C_EXP))
if opt('pkf', 0): A('s_mov_b32 s4, %s\ns_mov_b32 s5, %s' % (f32(C_EXP), f32(C_EXP)))
A('v_mov_b32 v%d, 0\nv_mov_b32 v%d, 0' % (SB[0][0] + 12, SB[1][0] + 12))
A('s_waitcnt lgkmcnt(0)'); A('s_nop 1')
stamp()

slow = []
TAGS = {}
N = []
PH = [0]
def ph(k): PH[0] = k if not opt('noph', 0) else 0
LM = [None]
def n(t, tag=None, **k):
    X = Node(t, **k); N.append(X); X.ph = PH[0]
    if X.kind == 'mfma':
        if LM[0] is not None and not opt('nolm', 0): X.after.append((LM[0], 32))
        LM[0] = X
    if tag: TAGS[id(X)] = tag
    return X
_tmp = [0]
CHK = {}
def check(name, off, cmpi, rd=(), after=(), bias=0, ad=vFg):
    tmp = (T0, T1)[_tmp[0] % 2]; _tmp[0] += 1
    off = 'v%d offset:%d' % (ad, off)
    n(F('ds_read_b32 v%d, %s' % (tmp, off)), rd=rd, wr=['f' + name], after=after, bias=bias)
    C = n('%s, v%d' % (cmpi, tmp), wr=['vcc'], bias=bias)
    Bn = n('s_cbranch_vccnz L_z%s\nL_k%s:' % (name, name), rd=['vcc', 'f' + name], wr=[name], after=[(C, 24)], bias=bias, tag=name)
    CHK[id(Bn)] = (name, off, cmpi, tmp)
def sp(c): return 'f' + c
def ev(name, off, **k): check(name, off, 'v_cmp_eq_u32 vcc, 0', **k)
SG = {}
def sig(k, rd): SG[k] = n(F('ds_add_u32 v{vPw}, v{vOne} offset:{FC}'), rd=list(rd) + ['sig'], wr=['sig', 'sg%d' % k], bias=opt('nb%d' % (2 * k - 4), 0))
def chk(k, rd=()): check('c%d' % k, FC, 'v_cmp_gt_u32 vcc, %d' % (k - 1), rd=rd, after=[(SG[k], opt('sync%d' % k, SYNC))])
def tr(dst, addr, off, **k): n('ds_read_b64_tr_b16 %s, v%d offset:%d' % (qn(dst, 2), addr, off), **k)
def r128(dst, addr, off, **k): n('ds_read_b128 %s, v%d offset:%d' % (qn(dst, 4), addr, off), **k)
def r64(dst, addr, off, **k): n('ds_read_b64 %s, v%d offset:%d' % (qn(dst, 2), addr, off), **k)
def w64(src, addr, off, **k): n('ds_write_b64 v%d, %s offset:%d' % (addr, qn(src, 2), off), **k)

UEV = ['ea', 'ea', 'ed', 'ed', 'ed']
ORDU = [0, 1, 3, 2, 4]
SL = {(U, s): (6 * ORDU.index(U) + s) % 8 for U in range(5) for s in range(6)}
PRE = set()
def wtr(U, s, first=False):
    if (U, s) in PRE: return
    PRE.add((U, s))
    wb = WB + 4 * SL[(U, s)]
    for u in range(2): tr(wb + 2 * u, vW1 + U, s * 1024 + u * 256, rd=[sp(UEV[U])], wr=(['w%d%d' % (s, u)] if first else []))
def unit(U, X, a, ks=range(6), rd=()):
    for s in ks:
        wb = WB + 4 * SL[(U, s)]
        wtr(U, s)
        x = XF[X] + 4 * s
        nm = 'u%d%s' % (U, 'AB'[X])
        n(m32(a, x, wb, a if s else None) if U >= 3 else m32(a, wb, x, a if s else None), rd=[UEV[U]] + list(rd), wr=[nm + str(s)], tag=(nm if s == 5 else 'st' if (U, X, s) == (0, 0, 0) else None))
def cvg(a, dsts, rd=()):
    for g, (d, isq) in enumerate(dsts):
        if isq and QS:
            for i in range(4): n('v_mul_f32 v%d, s3, v%d' % (a + 4 * g + i, a + 4 * g + i))
        for j in range(2): n(pk(d + j, a + 4 * g + 2 * j, a + 4 * g + 2 * j + 1))
def Qa(X): return QB[0] if X == 0 else QB[2]
def Qb(X): return QB[2] if X == 0 else QB[1]
def cvT(U, X, a):
    k = KB[X]
    if U == 0: cvg(a, [(k, 0), (k + 2, 0), (k + 4, 0), (Qa(X), 1)])
    if U == 1: cvg(a, [(Qa(X) + 2, 1), (Qa(X) + 4, 1), (Qb(X), 1), (Qb(X) + 2, 1)])
    if U == 2: cvg(a, [(Qb(X) + 4, 1), (k, 0), (k + 2, 0), (k + 4, 0)])
VD = [[VF, VF + 1, VF + 2, VF + 3, VF + 8, VF + 9, VF + 12], [VF + 4, VF + 5, VF + 6, VF + 7, VF + 10, VF + 11]]
def cvV(X, a):
    d = VD[X]
    for lo, hi in ((0, 4), (4, len(d))):
        n('s_mov_b64 exec, s[56:57]\n' + '\n'.join(pk(d[j], a + 2 * j, a + 2 * j + 1) for j in range(lo, hi)) + '\ns_mov_b64 exec, -1')
def smm(k):
    hb, X = k >> 1, 1 - (k & 1)
    SA_, SB_ = SB[k % 2]
    q = (Qb if hb else Qa)(X)
    o = hb * 2 * HS
    BD = [['u0B0', 'u0B2', 'u0B4', 'u0B5', 'u1B0', 'u1B2', 'u1B4'], ['u1A%d' % M0X] * 7, [], []][k] if XO1 else []
    bd = lambda j: ['ea'] + BD[j:j + 1]
    for j in range(3): r128(SA_ + 4 * j, vBAA + 2 * X, o + j * BPB, rd=bd(j))
    n('s_mov_b64 exec, s[58:59]\nds_read_b32 v%d, v%d offset:%d\ns_mov_b64 exec, -1' % (SA_ + 12, vBAA + 2 * X, o + 3 * BPB + 12), rd=bd(3) + [SA_ + 12])
    for j in range(3): r128(SB_ + 4 * j, vBAA + 2 * X + 1, o + j * BPB, rd=bd(4 + j))
    n(m32(SA_, KB[0], q, SA_)); n(m32(SA_, KB[0] + 4, q + 4, SA_))
    n(m32(SB_, KB[1], q, SB_)); n(m32(SB_, KB[1] + 4, q + 4, SB_), tag='s%d' % k, wr=['s%d' % k])
LE = [None]; NE = [0]
def softmax(k):
    SA_, SB_ = SB[k % 2]
    m, tm = SB_ + 12, SB_ + 13
    regs = [SA_ + i for i in range(13)] + [SB_ + i for i in range(12)]
    n('v_max3_f32 v%d, v%d, v%d, v%d' % (m, regs[0], regs[1], regs[2]))
    for i in range(3, 25, 2): n('v_max3_f32 v%d, v%d, v%d, v%d' % (m, m, regs[i], regs[i + 1]))
    n('v_mov_b32 v%d, v%d' % (tm, m))
    n('v_permlane32_swap_b32 v%d, v%d' % (tm, m))
    n('v_max_f32 v%d, v%d, v%d' % (m, m, tm), tag=('m%d' % k if QS else None))
    if not QS: n('v_mul_f32 v%d, %s, v%d' % (m, f32(-C_EXP), m), tag='m%d' % k)
    def ex(r, mode=0):
        if mode == 1: n('v_pk_fma_f32 v[%d:%d], v[%d:%d], s[4:5], v[%d:%d] op_sel_hi:[1,1,0]' % (r, r + 1, r, r + 1, m, m + 1))
        if mode == 0: n('v_sub_f32 v%d, v%d, v%d' % (r, r, m) if QS else 'v_fmamk_f32 v%d, v%d, %s, v%d' % (r, r, f32(C_EXP), m))
        NE[0] += 1
        LE[0] = n('v_exp_f32 v%d, v%d' % (r, r), after=([(LE[0], 12)] if LE[0] else []), bias=EBIAS, wr=(['X%d' % k] if NE[0] % 25 == opt('edx', 20) else []))
    pairs = [(SA_ + j, SA_ + 2 * j) for j in range(6)] + [(Pc, SA_ + 12)] + [(SA_ + 8 + j, SB_ + 2 * j) for j in range(4)] + [(SA_ + 6, SB_ + 8), (SA_ + 7, SB_ + 10)]
    for i, (d, r) in enumerate(pairs):
        pkf = (opt('pkf', 0) >> k) & 1
        ex(r, 1 if pkf and d != Pc else 0)
        if d != Pc: ex(r + 1, 2 if pkf else 0)
        n(pk(d, r, r + 1 if d != Pc else None), tag=('e%d' % k if i == 12 else None), wr=(['e%d' % k] if i == opt('sxi', 1) else []))
H3 = opt('h3', 0)
def pv(k, part=3):
    P, o = SB[k % 2]
    if k == 3 and H3: o = SB[0][0]
    if part & 1:
        n(m32(o, VF, P, None))
        n(m8(o, VF + 12, Pc, o))
        n(m32(o, VF + 4, P + 8, o))
    if part & 2: n(m32(o, VF + 8, P + 4, o), tag='p%d' % k, wr=['p%d' % k])
def norm(k):
    P, o = SB[k % 2]
    if k == 3 and H3: o = SB[0][0]
    nb = opt('nb%d' % k, 0)
    n('v_rcp_f32 v%d, v%d' % (o + 13, o + 12), bias=nb)
    if (opt('pkn', 0) >> k) & 1:
        for i in range(0, 12, 2): n('v_pk_mul_f32 v[%d:%d], v[%d:%d], v[%d:%d] op_sel:[0,1] op_sel_hi:[1,1]' % (o + i, o + i + 1, o + i, o + i + 1, o + 12, o + 13), bias=nb)
    else:
        for i in range(12): n('v_mul_f32 v%d, v%d, v%d' % (o + i, o + i, o + 13), bias=nb)
    d = o if not k & 1 else (O1, O2)[k >> 1] + 6
    for j in range(6): n(pk(d + j, o + 2 * j, o + 2 * j + 1), tag=('o%d' % k if j == 5 else None), bias=nb)
def send(k, rd=()):
    o = SB[k % 2][1]
    for j in range(3): w64(o + 2 * j, vOw, (XO0 if k == 0 else 0) + j * 512, rd=rd, wr=['ow%d%d' % (k, j)], bias=opt('nb%d' % k, 0))
    sig(2 + k // 2, ['ow%d%d' % (k, j) for j in range(3)])
def recv(k):
    c = 'c%d' % (2 + k // 2)
    for j in range(3): r64((O1, O2)[k // 2] + 2 * j, vOr, (XO0 if k == 0 else 0) + j * 512, rd=[sp(c)])
OAC = [ACC[0], AC3, ACC[1]]
WOB = [WB + 24, WB + 28, QB[0], QB[0] + 4, QB[1], QB[1] + 4, WB, WB + 4, WB + 8, WB + 12, WB + 16, WB + 20, 66, 70]
KSEQ = {0: [0, 1, 2], 1: [2, 0, 1]}[opt('ord6', 1)] + [3, 4, 5]
def wofr(ks, T):
    wb = WOB[(3 * KSEQ.index(ks) + T) % 14]
    for u in range(2):
        g = 2 * (ks % 3) + u
        tr(wb + 2 * u, vTp if g < 3 else vTo, (ks // 3) * 9216 + (g % 3) * 1536 + T * 64, rd=[sp('eo') if KSEQ.index(ks) < 2 else 'eo', 'tp'])
    return wb
def outk(ks, rd=()):
    for T in range(3):
        wb = wofr(ks, T)
        n(m32(OAC[T], wb, O1 + 4 * ks, OAC[T] if KSEQ.index(ks) else None), rd=['eo'] + list(rd), wr=['K%d%d' % (ks, T)], tag=('k%d' % ks if T == 2 else None))
MT = opt('mt', 0); MM = {}
def outk2(k0, k1):
    for T in range(3):
        for ks in (k0, k1):
            wb = wofr(ks, T)
            if MT and (T, ks) != (0, 4): MM[(T, ks)] = m32(OAC[T], wb, O1 + 4 * ks, OAC[T]); continue
            n(m32(OAC[T], wb, O1 + 4 * ks, OAC[T]), rd=['eo'], tag=('k%d' % ks if T == 2 else None), bias=(2 - T) * opt('tb', 40))

a0, a1 = ACC
def fake(rd):
    for T in range(3): n('buffer_store_dwordx4 v[0:3], v%d, s[32:35], 0 offen offset:%d%s' % (vSoB, T * 64, STM), rd=rd)
ev('ea', FA, ad=vF8)
for s in range(6): wtr(0, s, True)
n('s_waitcnt vmcnt(6)\n' + ('s_cmp_ge_i32 s100, 4' if G1L else 's_cmp_ge_u32 s36, 4') + '\ns_cbranch_scc1 L_xw\ns_waitcnt vmcnt(0)\nL_xw:', rd=['ea'] + ['w%d%d' % (s, u) for s in range(6) for u in range(2)], wr=['x'], tag='x')
for s in range(6): r128(XF[0] + 4 * s, vXA, s * 32, rd=['x'], wr=(['xr'] if s == 5 else []))
ev('c1', FX, rd=['xr'])
XO1 = opt('xo1', 1)
if XO1:
    unit(0, 0, a0, range(1))
    for s in range(6):
        if s in (2, 4): unit(0, 0, a0, range(s // 2, s // 2 + 1))
        r128(XF[1] + 4 * s, vXB, s * 32, rd=[sp('c1'), 'u0A%d' % (s // 2)])
    unit(0, 0, a0, range(3, 6)); cvT(0, 0, a0)
else:
    for s in range(6): r128(XF[1] + 4 * s, vXB, s * 32, rd=[sp('c1')])
    unit(0, 0, a0); cvT(0, 0, a0)
unit(0, 1, a1, rd=['c1']); cvT(0, 1, a1)
n(F('v_add_u32 v{vTp}, s14, v{vTo}'), rd=['ea', 'u0B0'], wr=['tp'])
unit(1, 1, a0); cvT(1, 1, a0)
M0X = opt('m0x', 3)
WOA = {0: ['s0', 's0', 's0'], 1: ['u0B2', 'u1B0', 'u1B4']}[opt('woa', 0)]
unit(1, 0, a1, range(M0X))
smm(0)
ph(opt('wop', 1))
n(F('s_mov_b32 m0, s52\ns_nop 0\nbuffer_load_dwordx4 v{v16}, s[24:27], s15 offen lds'), rd=['x', WOA[0]], wr=['ld'])
n(F('buffer_load_dwordx4 v{v16}, s[24:27], s15 offen offset:1024 lds'), rd=['ld', WOA[1]], wr=['ld'])
n(F('s_mov_b64 exec, 0xffff\nbuffer_load_dwordx4 v{v16}, s[24:27], s15 offen offset:2048 lds\n' + dfl('s_mov_b32 m0, s53\ns_nop 0')), rd=['ld', WOA[2]], wr=['ld'])
ph(1); softmax(0)
ph(2)
for j in range(2): n('v_mov_b32 v%d, v%d' % (QB[2] + 6 + j, QB[0] + 6 + j))
ev('ed', FD - 16, ad=vF8, rd=['X0'])
unit(1, 0, a1, range(M0X, 6)); cvT(1, 0, a1)
if opt('m2o', 0): smm(1)
unit(3, 0, a0); cvV(0, a0)
unit(3, 1, a1); cvV(1, a1)
if not opt('m2o', 0): smm(1)
pv(0)
ph(3); softmax(1); norm(0)
if STP == 6: fake(['X1'])
ph(opt('sp0', 4)); send(0)
ph(4)
unit(2, 1, a0); cvT(2, 1, a0)
unit(2, 0, a1); cvT(2, 0, a1)
pv(1)
smm(2)
unit(4, 0, a0); cvV(0, a0)
ph(5); softmax(2); norm(1)
if STP == 4: fake(['X2'])
ph(6)
C2B = opt('c2b', 3)
if C2B < 0: chk(2, rd=['u4A%d' % opt('c2a', 0)]); recv(0)
ev('eo', FO, ad=vF8, rd=['u4A%d' % opt('eoa', 1)])
unit(4, 1, a1); cvV(1, a1)
if 6 > C2B >= 0: chk(2, rd=['u4B%d' % C2B]); recv(0)
smm(3)
if C2B == 6: chk(2, rd=['s3']); recv(0)
pv(2)
if C2B == 7: chk(2, rd=['p2']); recv(0)
for ks in KSEQ[:3]: outk(ks, ['c2'] if ks < 2 else [])
ph(7); norm(2)
ph(opt('sp2', 7)); send(2, ['c2'])
GT = KB[1]; vRd = KB[0] + 7
RD = [vRd, KB[0] + 4, KB[0] + 5, vRd, KB[0] + 6]
if LS == 2:
    ph(opt('tbp', 6))
    tb_ = opt('tbb', 0)
    AF = ['s3'] if opt('tba', 1) else []
    ADR = []; n_ = n
    if opt('adt', 1):
        def n(t, **k): ADR.extend(t.split('\n'))
    n('v_add_u32 v%d, s47, v%d' % (vRd, v16), bias=tb_, rd=AF)
    n('v_add_u32 v%d, s16, v%d' % (GT, v16), bias=tb_, rd=AF, wr=['g0'])
    n('v_add_u32 v%d, s21, v%d' % (GT + 3, v16), bias=tb_, rd=AF, wr=['g3'])
    for i, sa, ln in ((1, 17, 24), (2, 19, 48), (4, 22, 8)):
        n('v_add_u32 v%d, s%d, v%d' % (GT + i, sa, v16), bias=tb_, rd=AF)
        n('v_add_u32 v%d, s47, v%d' % (RD[i], v16), bias=tb_, rd=AF)
        n('s_lshl_b64 exec, -1, %d\nv_add_u32 v%d, s%d, v%d\nv_add_u32 v%d, 16, v%d\ns_mov_b64 exec, -1' % (ln, GT + i, sa + 1, v16, RD[i], RD[i]), rd=[GT + i], bias=tb_, wr=['g%d' % i])
    n('s_cmp_eq_u32 s40, 31\ns_cbranch_scc1 L_wrap\nL_wrapr:', rd=['g%d' % i for i in range(5)] + [GT + i for i in range(5)], wr=[GT + i for i in range(5)], bias=tb_)
    wl = 'L_wrap:\ns_mov_b32 s10, -43008\n'
    for i, (lo, hi) in enumerate(((0, 0xffff0000), (0xfffff, 0), (0xffffff00, 0xfff), (0, 0xffffffff))):
        wl += 's_mov_b32 exec_lo, 0x%x\ns_mov_b32 exec_hi, 0x%x\nv_add_u32 v%d, s10, v%d\n' % (lo, hi, GT + i, GT + i)
    wl += 's_cmp_eq_u32 s37, 1\ns_cselect_b32 exec_lo, 15, 0xff00000f\ns_cselect_b32 exec_hi, 0, 0xfffffff\nv_add_u32 v%d, s10, v%d\ns_mov_b64 exec, -1\ns_nop 4\ns_branch L_wrapr' % (GT + 4, GT + 4)
    slow.append(wl)
    n = n_
if LS == 1:
    ph(opt('tbp', 7))
    n0 = len(N)
    tb_ = opt('tbb', 0)
    n('v_mov_b32 v%d, 0x80000000' % (KB[0] + 6), bias=tb_)
    n('v_add_u32 v%d, s47, v%d' % (vRd, v16), bias=tb_)
    n('s_mov_b64 exec, s[58:59]\nds_write_b32 v%d, v%d offset:192\ns_mov_b64 exec, -1' % (vSoB, KB[0] + 6), rd=['c2', vSoB, KB[0] + 6], wr=['tb'], bias=tb_)
    for j, o_ in enumerate((0, 16, 64, 80, 128, 144)):
        if o_: n('v_add_u32 v%d, %d, v%d' % (KB[0] + j, o_, vSoA), bias=tb_)
        n('ds_write_b32 v%d, v%d offset:%d' % (vSoB, KB[0] + j if o_ else vSoA, o_), rd=['tb'], wr=['tb%d' % j], bias=tb_)
    for i in range(5): n('ds_read_b32 v%d, v%d offset:%d' % (GT + i, vRd, STG0 + 1024 * i), rd=['tb%d' % j for j in range(6)], bias=tb_)
    sched2.PRM['free'] = set(id(X) for X in N[n0:])
ph(7); softmax(3)
if STP == 5: fake(['X3'])
if H3:
    if H3 & 2:
        n0 = len(N); chk(3); recv(2)
        sched2.PRM['free'] = set(id(X) for X in N[n0:])
        outk(3, ['c3'])
    pv(3, 1)
    ph(8)
    if not H3 & 2: chk(3); recv(2)
    pv(3, 2)
    if not H3 & 2: outk(3, ['c3'])
    norm(3)
else:
    ph(8)
    chk(3); recv(2)
    pv(3); outk(3, ['c3']); norm(3)
outk2(4, 5)
for T in range(0 if MT else 3):
    a = OAC[T]
    tz = (2 - T) * opt('tz', 0)
    for j in range(8): n(pk(a + j, a + 2 * j, a + 2 * j + 1), bias=tz)
    for j in range(4): n('v_permlane16_swap_b32 v%d, v%d' % (a + j, a + 4 + j), bias=tz)
    TO = T * {0: 64, 1: 1568, 2: 64, 3: 1536}.get(STP, 64)
    if STP == 2: continue
    n('buffer_store_dwordx4 %s, v%d, s[32:35], 0 offen offset:%d%s' % (qn(a, 4), vSoA, TO, STM), bias=tz)
    if STP < 4: n('buffer_store_dwordx4 %s, v%d, s[32:35], 0 offen offset:%d%s' % (qn(a + 4, 4), vSoB, TO, STM), tag='z%d' % T, bias=tz)

STAGS = (sys.argv[sys.argv.index('--tags') + 1] if '--tags' in sys.argv else 'st,s0,e0,p0,o0,u4A,o1,k2,e3').split(',')
cur = [0]; ORD = []
FIXP = opt('fixp', 0)
def setp(p):
    if FIXP: return
    if p != cur[0]: A('s_setprio %d' % p); cur[0] = p
def emit(N, name):
    out, t = schedule(N, name)
    seen = []
    rng = {}; cph = {}
    import collections
    mtot = collections.Counter(X.ph for tt, X in out if X.kind == 'mfma'); mdone = collections.Counter()
    mtot[8] += len(MM) * opt('mxf', 1)
    m_ = 99
    for tt, X in reversed(out):
        if not (X.kind == 'dsr' or X.ins[0].op.startswith(('v_cmp', 's_cbranch'))): m_ = min(m_, X.ph)
        cph[id(X)] = m_
    for tt, X in out:
        p_ = cph[id(X)]; rng[p_] = (rng.get(p_, (tt, tt))[0], tt)
    for tt, X in out:
        p_ = cph[id(X)]
        a_, b_ = rng[p_]
        if p_ & 1: hi = 1 if tt > a_ + (b_ - a_) * opt('fv', 30) / 100 else 0
        else: hi = 1 if mdone[p_] >= mtot[p_] * opt('fm', 50) / 100 else 0
        if X.kind == 'mfma': mdone[p_] += 1
        if (p_ & 1) and X.ins[0].kind in ('dsr', 'dsw') and opt('lp', 1): setp(3)
        elif (p_ & 1) and cur[0] == 3 and X.ins[0].kind in ('salu', 'wait') and len(X.ins) == 1: pass
        else: setp((PB_ if p_ & 1 else PM) + hi)
        for I in X.ins: A.add(I)
        seen.append(X)
        if id(X) in CHK:
            nm, off, cmpi, tmp = CHK[id(X)]
            rr = [Y.lines[0] for Y in seen if ('f' + nm) in Y.rd and Y.kind == 'dsr']
            slow.append(F('L_z%s:\n%sds_read_b32 v%d, %s\ns_waitcnt lgkmcnt(0)\n%s, v%d\ns_cbranch_vccnz L_z%s\nL_y%s:\n' % (nm, ('s_sub_u32 s101, s101, 1\ns_cmp_lt_i32 s101, 0\ns_cbranch_scc1 L_y%s\n' % nm) if SPIN else '', tmp, off, cmpi, tmp, nm, nm)) + ''.join(l + '\n' for l in rr) + ('s_waitcnt lgkmcnt(0)\n' if rr else '') + 's_branch L_k%s' % nm)
        tg = TAGS.get(id(X))
        if tg: print('  %s@%d' % (tg, tt), end=''); A('; TAG %s' % tg)
        if tg in STAGS: stamp(); ORD.append('%s@%d' % (tg, tt))
    print()
emit(N, 'main')
if MT:
    def cv_(T): return [pk(OAC[T] + j, OAC[T] + 2 * j, OAC[T] + 2 * j + 1) for j in range(8)]
    def pm_(T): return ['v_permlane16_swap_b32 v%d, v%d' % (OAC[T] + j, OAC[T] + 4 + j) for j in range(4)]
    def st_(T): return ['buffer_store_dwordx4 %s, v%d, s[32:35], 0 offen offset:%d%s' % (qn(OAC[T] + 4 * h, 4), (vSoA, vSoB)[h], T * 64, STM) for h in range(2)] + ['@z%d' % T]
    if MT == 1:
        seq = [MM[0, 5], MM[1, 4], MM[1, 5], 's_nop 5', MM[2, 4], 's_nop 2'] + cv_(0)[:3] + [MM[2, 5], '@k5'] + cv_(0)[3:] + pm_(0) + st_(0) + cv_(1) + pm_(1) + st_(1) + cv_(2) + pm_(2) + st_(2)
    if MT == 2:
        seq = [MM[0, 5], MM[1, 4], MM[1, 5], 's_nop 5', MM[2, 4], 's_nop 2'] + cv_(0)[:3] + [MM[2, 5], '@k5'] + cv_(0)[3:] + pm_(0) + cv_(1)[:4] + st_(0)[:1] + cv_(1)[4:] + st_(0)[1:] + pm_(1) + cv_(2)[:4] + st_(1)[:1] + cv_(2)[4:] + st_(1)[1:] + pm_(2) + st_(2)
    if MT == 3:
        seq = [MM[0, 5], MM[1, 4], MM[1, 5], 's_nop 5', MM[2, 4], 's_nop 2'] + cv_(0)[:3] + [MM[2, 5], '@k5'] + cv_(0)[3:] + pm_(0) + cv_(1) + pm_(1) + st_(0) + st_(1) + cv_(2) + pm_(2) + st_(2)
    if LS:
        RB = SB[1][0] if not H3 else SB[0][1]
        def wr_(T): return ['ds_write_b128 v%d, %s offset:%d' % (vSoB, qn(OAC[T] + 4 * h, 4), T * 64 + h * 16) for h in range(2)]
        rd_ = ['ds_read_b128 %s, v%d offset:%d' % (qn(RB + 4 * i, 4), vRd, STG0 + 1024 * i) for i in range(5)]
        sx_ = ['buffer_store_dwordx4 %s, v%d, s[32:35], 0 offen%s' % (qn(RB + 4 * i, 4), GT + i, STM) for i in range(5)]
        if LS == 2:
            rd_ = ['ds_read_b128 %s, v%d offset:%d' % (qn(RB + 4 * i, 4), RD[i], STG0 + 1024 * i + 16 * (0, 0, 1, 2, 2)[i]) for i in range(5)]
            sx_ = [('s_mov_b64 exec, %s\n' % ('s[4:5]', 's[6:7]', 's[8:9]', '-1', 's[60:61]')[i]) + sx_[i] for i in range(5)]
        seq = [MM[0, 5], MM[1, 4], MM[1, 5], 's_nop 5', MM[2, 4], 's_nop 2'] + cv_(0)[:3] + [MM[2, 5], '@k5'] + cv_(0)[3:] + wr_(0) + cv_(1) + wr_(1) + cv_(2) + wr_(2) + rd_ + sx_[:1] + ['@z0'] + sx_[1:] + ['@z2'] + (['s_mov_b64 exec, -1'] if STAMP else [])
    if LS == 2 and ADR:
        c_ = [int(x) for x in str(opt('adc', 567))]
        a0_, a1_, a2_ = c_[0], c_[0] + c_[1], c_[0] + c_[1] + c_[2]
        k_ = seq.index(MM[2, 5])
        seq = [MM[0, 5]] + ADR[:a0_] + [MM[1, 4]] + ADR[a0_:a1_] + [MM[1, 5]] + ADR[a1_:a2_] + [MM[2, 4]] + ADR[a2_:] + cv_(0)[:1] + [MM[2, 5], '@k5'] + cv_(0)[1:3] + seq[k_ + 2:]
    HS_ = opt('hs', 0)
    if HS_:
        A('s_and_b32 s10, s2, %d\ns_bcnt1_i32_b32 s10, s10\ns_bitcmp1_b32 s10, 0\ns_cselect_b32 s34, 0, s34' % HS_)
    for l in seq:
        if l[0] == '@':
            A('; TAG %s' % l[1:])
            if l[1:] in STAGS: stamp(); ORD.append(l[1:])
        else: A(l)
open(sys.argv[1] + '.tags', 'w').write(' '.join(['rt0', 'start', 'karg', 'setup', 'main'] + ORD + ['end', 'rt1']))
if STAMP:
    A('s_waitcnt vmcnt(0)')
    stamp(); stamp(True)
    A('s_lshl_b32 s100, s2, 4\ns_add_u32 s100, s100, s36\ns_lshl_b32 s100, s100, 6')
    A('s_waitcnt lgkmcnt(0)')
    A('v_mbcnt_lo_u32_b32 v17, -1, 0\nv_mbcnt_hi_u32_b32 v17, -1, v17\nv_lshlrev_b32 v17, 2, v17')
    for k in range(15 if PST else _st[0]):
        A('v_writelane_b32 v16, s%d, %d' % (64 + 2 * k, k))
    A('s_mov_b64 exec, 0xffff\nbuffer_store_dword v16, v17, s[96:99], s100 offen')
A('s_endpgm')
A.rawmode = True
for s_ in slow: A(s_)
A.rawmode = False
A('L_end:')
A('s_endpgm')
body = A.finalize()

hdr = open('standalone__window_attn_swin__vision.s.ref').read().split('\n')
hdr = [l for l in hdr if l.startswith(';') and '@launch' not in l]
out = '\n'.join(hdr) + '\n; @launch grid=(256,1,1) block=(512,1,1) lds=%d\n' % L_SIZE
out += '''.amdgcn_target "amdgcn-amd-amdhsa--gfx950"
.text
.globl standalone__window_attn_swin__vision_kernel
.p2align 8
.type standalone__window_attn_swin__vision_kernel,@function
standalone__window_attn_swin__vision_kernel:
''' + body + '''.section .rodata,"a"
.p2align 6
.amdhsa_kernel standalone__window_attn_swin__vision_kernel
  .amdhsa_next_free_vgpr 256
  .amdhsa_next_free_sgpr 102
  .amdhsa_accum_offset 256
  .amdhsa_group_segment_fixed_size 0
  .amdhsa_kernarg_size 72
  .amdhsa_user_sgpr_count 2
  .amdhsa_user_sgpr_kernarg_segment_ptr 1
  .amdhsa_system_sgpr_workgroup_id_x 1
.end_amdhsa_kernel
'''
dst = sys.argv[1]
open(dst, 'w').write(out)
print('instructions:', len(body.split('\n')), 'nop states:', A.nnops)
```
